```python
import torch

def _softmax(x, axis=-1):
    return torch.softmax(x, dim=axis)

def _gelu(x):
    return torch.nn.functional.gelu(x, approximate='tanh')

def _silu(x):
    return torch.nn.functional.silu(x)

def _sigmoid(x):
    return torch.sigmoid(x)

def _layernorm(x, axis=-1, eps=1e-05):
    m = x.mean(dim=axis, keepdim=True)
    v = x.var(dim=axis, keepdim=True, unbiased=False)
    return (x - m) / torch.sqrt(v + eps)

def _scatter_add(tgt, idx, src, axis=0):
    return tgt.clone().index_add_(axis, idx, src)

def _segment_sum(src, seg, n):
    out = torch.zeros((n,) + src.shape[1:], dtype=src.dtype)
    return out.index_add_(0, seg, src)

def _pad(x, pw):
    flat = tuple((v for pair in reversed(pw) for v in pair))
    return torch.nn.functional.pad(x, flat)
kernel_name = 'sequential_preLN__memory_aug_recurrent_mem_tr__mixer_gmlp__prompt'

def setup_inputs():

    _w = lambda a: (lambda t: t.to(torch.bfloat16) if t.is_floating_point() else t)(torch.as_tensor(a))

    def _A_setup():
        B, S, Dm = (1, 2048, 512)
        H, Dh = (32, 128)
        M, seg = (8, 32)
        seg = min(seg, S)
        S = S // seg * seg
        return {'x': _w((lambda *s: torch.randn(*s, dtype=torch.bfloat16) * 0.05)(B, S, Dm)), 'mem0': _w((lambda *s: torch.randn(*s, dtype=torch.bfloat16) * 0.2)(B, M, Dm)), 'Wq': _w((lambda *s: torch.randn(*s, dtype=torch.bfloat16) * 1.6)(Dm, H, Dh) * Dm ** (-0.5)), 'Wk': _w((lambda *s: torch.randn(*s, dtype=torch.bfloat16) * 1.6)(Dm, H, Dh) * Dm ** (-0.5)), 'Wv': _w((lambda *s: torch.randn(*s, dtype=torch.bfloat16) * 0.2)(Dm, H, Dh) * Dm ** (-0.5)), 'Wo': _w((lambda *s: torch.randn(*s, dtype=torch.bfloat16) * 0.2)(H, Dh, Dm) * (H * Dh) ** (-0.5)), 'seg_len': seg}
    _A_in = _A_setup()

    def _B_setup():
        B, S, D, F = (1, 2048, 512, 1376)
        Fh = F // 2
        return {'x': _w((lambda *s: torch.randn(*s, dtype=torch.bfloat16) * 0.05)(B, S, D)), 'w_in': _w((lambda *s: torch.randn(*s, dtype=torch.bfloat16) * 0.4)(D, 2 * Fh)), 'w_sp': _w(0.01 * (lambda *s: torch.randn(*s, dtype=torch.bfloat16) * 0.4)(S, S)), 'b_sp': _w(1.0 + 0.01 * (lambda *s: torch.randn(*s, dtype=torch.bfloat16) * 0.05)(S)), 'w_out': _w((lambda *s: torch.randn(*s, dtype=torch.bfloat16) * 0.05)(Fh, D))}
    _B_in = _B_setup()
    return {'A_x': _A_in['x'], 'A_mem0': _A_in['mem0'], 'A_Wq': _A_in['Wq'], 'A_Wk': _A_in['Wk'], 'A_Wv': _A_in['Wv'], 'A_Wo': _A_in['Wo'], 'A_seg_len': _A_in['seg_len'], 'B_x': _B_in['x'], 'B_w_in': _B_in['w_in'], 'B_w_sp': _B_in['w_sp'], 'B_b_sp': _B_in['b_sp'], 'B_w_out': _B_in['w_out']}

def reference(A_x, A_mem0, A_Wq, A_Wk, A_Wv, A_Wo, A_seg_len, B_x, B_w_in, B_w_sp, B_b_sp, B_w_out):

    def _A_ref(x, mem0, Wq, Wk, Wv, Wo, seg_len):
        B, S, Dm = x.shape
        H, Dh = (Wq.shape[1], Wq.shape[2])
        M = mem0.shape[1]
        scale = Dh ** (-0.5)
        n_seg = S // seg_len
        L = M + seg_len
        idx = torch.arange(L)
        mask = (idx[:, None] < M) | (idx[:, None] >= idx[None, :])
        mem = mem0
        outs = []
        for s in range(n_seg):
            xs = x[:, s * seg_len:(s + 1) * seg_len, :].clone()
            h = torch.concatenate([mem, xs], axis=1)
            q = torch.einsum('btd,dhe->bhte', h, Wq)
            k = torch.einsum('btd,dhe->bhte', h, Wk)
            v = torch.einsum('btd,dhe->bhte', h, Wv)
            scores = torch.einsum('bhqe,bhke->bhqk', q, k) * scale
            scores = torch.where(mask[None, None], scores, -1000000000.0)
            p = _softmax(scores, axis=-1)
            o = torch.einsum('bhqk,bhke->bhqe', p, v)
            o = torch.einsum('bhte,hed->btd', o, Wo)
            mem = o[:, :M, :].clone()
            outs.append(o[:, M:, :])
        return torch.concatenate(outs, axis=1)

    def _B_ref(x, w_in, w_sp, b_sp, w_out):
        B, S, D = x.shape
        F = w_in.shape[-1]
        Fh = F // 2
        z = _gelu(torch.einsum('bsd,df->bsf', x, w_in))
        z1 = z[..., :Fh].clone()
        z2 = _layernorm(z[..., Fh:], axis=-1)
        g = torch.einsum('ts,bsf->btf', w_sp, z2) + b_sp[None, :, None]
        return torch.einsum('bsf,fd->bsd', z1 * g, w_out)
    x = A_x
    h = x + _A_ref(_layernorm(x, axis=-1), A_mem0, A_Wq, A_Wk, A_Wv, A_Wo, A_seg_len)
    h2 = h + _B_ref(_layernorm(h, axis=-1), B_w_in, B_w_sp, B_b_sp, B_w_out)
    return h2
```

```python
import re, copy

def v(i, n=1):
    return f"v{i}" if n == 1 else f"v[{i}:{i+n-1}]"
def a(i, n=1):
    return f"a{i}" if n == 1 else f"a[{i}:{i+n-1}]"
def s(i, n=1):
    return f"s{i}" if n == 1 else f"s[{i}:{i+n-1}]"
def R(i, n=1):
    if i >= 256:
        return a(i - 256, n)
    assert i + n <= 256
    return v(i, n)

_reg_re = re.compile(r'^(-|\|)?(abs\()?([vas])(\d+)\)?\|?$')
_rng_re = re.compile(r'^(-)?([vas])\[(\d+):(\d+)\]$')

def parse_operand(op):
    op = op.strip()
    m = _reg_re.match(op)
    if m:
        return {(m.group(3), int(m.group(4)))}
    m = _rng_re.match(op)
    if m:
        return {(m.group(2), i) for i in range(int(m.group(3)), int(m.group(4)) + 1)}
    if op == 'vcc':
        return {('s', 'vcc')}
    if op == 'exec':
        return {('s', 'exec')}
    if op == 'm0':
        return {('s', 'm0')}
    return set()

TRANS = ('v_exp_f32', 'v_log_f32', 'v_rcp_f32', 'v_rsq_f32', 'v_sqrt_f32', 'v_sin_f32', 'v_cos_f32')

class Ins:
    __slots__ = ('text', 'op', 'ops', 'kind', 'dst', 'src', 'passes', 'csrc', 'absrc', 'nochk', 'dpp', 'data', 'line')
    def __init__(self, text, nochk=False):
        self.text = text
        self.nochk = nochk
        t = text.split(';')[0].strip()
        parts = t.split(None, 1)
        self.op = parts[0]
        rest = parts[1] if len(parts) > 1 else ''
        ops = [x.strip() for x in rest.split(',')] if rest else []
        mods = ''
        if ops:
            last = ops[-1].split(None, 1)
            ops[-1] = last[0]
            mods = last[1] if len(last) > 1 else ''
        self.ops = ops
        P = [parse_operand(x) for x in ops]
        U = lambda l: set().union(*l) if l else set()
        op = self.op
        self.passes = 0
        self.csrc = set(); self.absrc = set(); self.data = set()
        self.dpp = ('_dpp' in op) or ('row_' in mods) or ('quad_perm' in mods)
        if op.startswith('v_mfma'):
            self.kind = 'mfma'
            self.dst = P[0]; self.absrc = P[1] | P[2]; self.csrc = P[3]; self.src = self.absrc | self.csrc
            self.passes = 8 if '32x32' in op else 4
        elif op.startswith('v_smfmac'):
            self.kind = 'mfma'
            self.dst = P[0]; self.absrc = P[1] | P[2] | P[3]; self.csrc = P[0]; self.src = self.absrc | self.csrc
            self.passes = 8 if '32x32' in op else 4
        elif op.startswith('v_'):
            self.kind = 'valu'
            if 'permlane' in op and 'swap' in op or op.startswith('v_swap'):
                self.dst = P[0] | P[1]; self.src = P[0] | P[1]
            elif op.startswith(('v_add_co', 'v_sub_co', 'v_addc_co', 'v_subb_co', 'v_div_scale', 'v_mad_u64')):
                self.dst = P[0] | P[1]; self.src = U(P[2:])
            else:
                self.dst = P[0]; self.src = U(P[1:])
                if op.startswith(('v_fmac', 'v_dot2c', 'v_pk_fmac', 'v_writelane')) or self.dpp:
                    self.src |= P[0]
                if op.startswith('v_cndmask') and len(ops) == 3:
                    self.src |= {('s', 'vcc')}
                if op.startswith('v_div_fmas'):
                    self.src |= {('s', 'vcc')}
        elif op.startswith('ds_'):
            self.kind = 'ds'
            if op.startswith(('ds_read', 'ds_bpermute', 'ds_permute', 'ds_swizzle')) or '_rtn' in op:
                self.dst = P[0]; self.src = U(P[1:])
            else:
                self.dst = set(); self.src = U(P)
        elif op.startswith(('global_', 'buffer_')):
            self.kind = 'vmem'
            islds = ('_lds_' in op) or re.search(r'\blds\b', mods) is not None
            if op in ('buffer_wbl2', 'buffer_inv'):
                self.dst = set(); self.src = set()
            elif islds:
                self.dst = set(); self.src = U(P) | {('s', 'm0')}
            elif 'load' in op:
                self.dst = P[0]; self.src = U(P[1:])
            elif 'atomic' in op:
                if 'sc0' in mods and op.startswith('global_'):
                    self.dst = P[0]; self.src = U(P[1:])
                else:
                    self.dst = set(); self.src = U(P)
            else:
                self.dst = set(); self.src = U(P)
                if 'x4' in op or 'x3' in op:
                    self.data = P[1] if op.startswith('global_') else P[0]
        elif op.startswith(('s_load', 's_memtime', 's_memrealtime', 's_buffer_load', 's_atomic')):
            self.kind = 'smem'
            self.dst = P[0]; self.src = U(P[1:])
        elif op.startswith('s_'):
            self.kind = 'salu'
            if op.startswith(('s_cmp', 's_bitcmp', 's_waitcnt', 's_nop', 's_barrier', 's_branch', 's_cbranch', 's_endpgm', 's_sleep', 's_setprio', 's_setreg')):
                self.dst = set(); self.src = U(P)
                if 'vcc' in op: self.src |= {('s', 'vcc')}
            else:
                self.dst = P[0] if P else set(); self.src = U(P[1:])
                if 'saveexec' in op: self.dst |= {('s', 'exec')}
        else:
            raise ValueError("unknown instruction: " + text)

class Asm:
    guid = 0
    def __init__(self):
        self.items = []
        self.uid = 0
    def __call__(self, text, nochk=False):
        for ln in text.split('\n'):
            ln = ln.strip()
            if not ln: continue
            if ln.startswith(';'):
                self.items.append(('t', '    ' + ln))
            else:
                self.items.append(('i', Ins(ln, nochk)))
    def label(self, name):
        self.items.append(('l', name))
    def raw(self, text):
        self.items.append(('t', text))
    def newlabel(self, p='L'):
        Asm.guid += 1
        return f"{p}_{Asm.guid}"
    def text(self):
        out = []
        for k, x in self.items:
            if k == 'i': out.append('    ' + x.text)
            elif k == 'l': out.append(x + ':')
            else: out.append(x)
        return '\n'.join(out) + '\n'
    def ninstr(self):
        return sum(1 for k, _ in self.items if k == 'i')

    def check(self, verbose=True):
        labels = {x: i for i, (k, x) in enumerate(self.items) if k == 'l'}
        errs = []
        seen_err = set()
        class St:
            pass
        def fresh():
            st = St()
            st.t = 0
            st.mfma_free = 0
            st.valu_w = {}
            st.trans_w = {}
            st.mfma_w = {}
            st.mfma_c = {}
            st.salu_m0 = -99
            st.store_data = {}
            st.vm = []
            st.lg = []
            return st
        def err(idx, msg):
            key = (idx, msg)
            if key in seen_err: return
            seen_err.add(key)
            errs.append(f"[{idx}] {self.items[idx][1].text}  :: {msg}")
        def step(st, idx):
            I = self.items[idx][1]
            op = I.op
            t = st.t
            if I.kind == 'mfma':
                t = max(t, st.mfma_free)
            def need(prev, n, msg):
                if t - prev - 1 < n:
                    err(idx, f"{msg}: have {t-prev-1} need {n}")
            touched = I.src | I.dst
            if not I.nochk:
                for d in st.vm:
                    if d & touched: err(idx, f"uses reg of outstanding vmem load {sorted(d & touched, key=str)[:3]}")
                for k, d in st.lg:
                    if d & touched: err(idx, f"uses reg of outstanding lgkm op {sorted(d & touched, key=str)[:3]}")
            if I.kind == 'mfma':
                for r in I.src:
                    if r in st.valu_w: need(st.valu_w[r], 2, f"VALU->MFMA {r}")
                for r in I.absrc:
                    if r in st.mfma_w:
                        tt, p, _ = st.mfma_w[r]; need(tt, {4: 8, 8: 12}[p], f"MFMA D->MFMA AB {r}")
                for r in I.csrc:
                    if r in st.mfma_w:
                        tt, p, ds = st.mfma_w[r]
                        if not (ds[0] == frozenset(I.csrc) and ds[1] == I.op):
                            need(tt, {4: 6, 8: 10}[p], f"MFMA D->MFMA C overlap {r}")
                for r in I.dst - I.csrc:
                    if r in st.mfma_w:
                        tt, p, ds = st.mfma_w[r]
                        if p != I.passes: need(tt, {4: 6, 8: 10}[p], f"MFMA WAW {r}")
            elif I.kind in ('valu', 'ds', 'vmem'):
                for r in touched:
                    if r in st.mfma_w:
                        tt, p, _ = st.mfma_w[r]; need(tt, {4: 8, 8: 12}[p], f"MFMA D->{I.kind} {r}")
                if I.kind == 'valu':
                    for r in I.dst:
                        if r in st.mfma_c:
                            tt, p = st.mfma_c[r]; need(tt, {4: 3, 8: 7}[p], f"MFMA C WAR {r}")
                        if r in st.store_data: need(st.store_data[r], 2, f"store data WAR {r}")
                    isperm = 'permlane' in op
                    for r in I.src:
                        if r in st.valu_w:
                            if r[0] in 'va':
                                if isperm or I.dpp: need(st.valu_w[r], 2, f"VALU->permlane/dpp {r}")
                                if op.startswith(('v_readfirstlane', 'v_readlane')): need(st.valu_w[r], 1, f"VALU->readlane {r}")
                            else:
                                need(st.valu_w[r], 2, f"VALU sgpr->VALU {r}")
                        if r in st.trans_w and not op.startswith(TRANS): need(st.trans_w[r], 1, f"trans->VALU {r}")
                else:
                    for r in I.dst:
                        if r in st.store_data: need(st.store_data[r], 1, f"store data WAR {r}")
                if I.kind == 'vmem':
                    for r in I.src:
                        if r[0] == 's' and r in st.valu_w: need(st.valu_w[r], 5, f"VALU sgpr->VMEM {r}")
                    if ('s', 'm0') in I.src: need(st.salu_m0, 1, "M0->LDS DMA")
            if I.kind == 'mfma':
                for r in I.dst:
                    st.mfma_w[r] = (t, I.passes, (frozenset(I.dst), I.op)); st.valu_w.pop(r, None); st.trans_w.pop(r, None)
                for r in I.csrc: st.mfma_c[r] = (t, I.passes)
                st.mfma_free = t + I.passes
            elif I.kind == 'valu':
                for r in I.dst:
                    st.valu_w[r] = t; st.mfma_w.pop(r, None)
                    if op.startswith(TRANS): st.trans_w[r] = t
                    else: st.trans_w.pop(r, None)
            elif I.kind == 'ds':
                st.lg.append(('ds', set() if I.nochk else set(I.dst)))
            elif I.kind == 'smem':
                st.lg.append(('smem', set(I.dst)))
            elif I.kind == 'vmem':
                st.vm.append(set() if I.nochk else set(I.dst))
                for r in I.data: st.store_data[r] = t
                if len(st.vm) > 63: err(idx, "more than 63 vmem outstanding")
            elif I.kind == 'salu':
                for r in I.dst: st.valu_w.pop(r, None)
                if ('s', 'm0') in I.dst: st.salu_m0 = t
                if op == 's_waitcnt':
                    m = re.search(r'vmcnt\((\d+)\)', I.text)
                    if m:
                        n = int(m.group(1))
                        while len(st.vm) > n: st.vm.pop(0)
                    m = re.search(r'lgkmcnt\((\d+)\)', I.text)
                    if m:
                        n = int(m.group(1))
                        assert n <= 15
                        if n > 0 and any(k == 'smem' for k, _ in st.lg): err(idx, "counted lgkmcnt with smem outstanding")
                        while len(st.lg) > n: st.lg.pop(0)
            dt = 1
            if op == 's_nop': dt = int(I.ops[0], 0) + 1
            st.t = t + dt
        def run(start, st, limit, depth):
            i = start; n = 0
            while i < len(self.items) and n < limit:
                k, x = self.items[i]
                if k == 'i':
                    step(st, i); n += 1
                    if x.op == 's_endpgm':
                        if depth > 0: return
                        st = fresh()
                    elif x.op.startswith(('s_cbranch', 's_branch')):
                        tgt = labels[x.ops[0]]
                        if depth < 1:
                            run(tgt, copy.deepcopy(st), 4000, depth + 1)
                        if x.op == 's_branch':
                            if depth > 0:
                                if tgt > i: i = tgt; continue
                                return
                            st = fresh()
                i += 1
        run(0, fresh(), 10**9, 0)
        if verbose:
            for e in errs[:60]: print("HAZARD", e)
            print(f"checker: {len(errs)} findings, {self.ninstr()} instructions")
        return errs
```

```python
from asmlib import *
NAME = "sequential_preLN__memory_aug_recurrent_mem_tr__mixer_gmlp__prompt"
KA = dict(x=0, mem0=8, Wq=16, Wk=24, Wv=32, Wo=40, seg=48, Bx=56, w_in=64, w_sp=72, b_sp=80, w_out=88, out=96, dbg=104, ws=112)
WS_XN   = 0x0000000
WS_KV   = 0x0200000
WS_KM   = 0x2200000
WS_O    = 0x3200000
WS_INB  = 0x4200000
WS_MEM  = 0x4280000
WS_FLAG = 0x4380000
WS_PROF = 0x4400000
WS_PART = 0x4800000
WS_H    = 0x5800000
WS_HN   = 0x5A00000
WS_Z    = 0x5C00000
SEG_Z   = 176 * 512
WS_Z2   = 0x6200000
SEG_F   = 88 * 512
WS_Y    = 0x6500000
FL_KV   = WS_FLAG
FL_PROG = WS_FLAG + 0x2000
FL_SEG  = WS_FLAG + 0x4000
FO_O, FO_P, FO_HN, FO_Z, FO_Z2 = 0, 32, 48, 50, 61
FL_Y    = WS_FLAG + 0x8000
FL_BYTES = 0x9000
SPIN_MAX = 40000

def add64(A, d, src, imm):
    A(f"s_add_u32 {s(d)}, {s(src)}, {imm}")
    A(f"s_addc_u32 {s(d+1)}, {s(src+1)}, 0")

class Lane:
    def __init__(self, A, lane, tmp):
        self.A, self.L, self.t = A, lane, tmp
    def acc(self, dst, fields, add=False):
        for k, (lo, n, sh) in enumerate(fields):
            self.A(f"v_bfe_u32 {v(self.t)}, {v(self.L)}, {lo}, {n}")
            if k == 0 and not add: self.A(f"v_lshlrev_b32 {v(dst)}, {sh}, {v(self.t)}")
            else: self.A(f"v_lshl_add_u32 {v(dst)}, {v(self.t)}, {sh}, {v(dst)}")

def seq(A, items):
    for x in items:
        if isinstance(x, (list, tuple)): seq(A, x)
        elif x and x.startswith('!'): A(x[1:], nochk=True)
        elif x: A(x)

def load_weight_units(A, units, vSrc, vTr, sLB, SRD, sOff, sTmp):
    pend = []
    def issue(i):
        setup, off, dst, n = units[i]
        if setup: setup()
        for m in range(n):
            r_, imm = off(m)
            A(f"s_add_u32 m0, {s(sLB)}, {(i % 8) * 4096 + m * 1024}")
            A(f"s_add_u32 {s(sOff)}, {s(r_)}, {imm}")
            A(f"buffer_load_dwordx4 {v(vSrc)}, {s(SRD,4)}, {s(sOff)} offen lds")
    N = len(units)
    for i in range(min(8, N)): issue(i)
    for i in range(N):
        younger = sum(units[k][3] for k in range(i + 1, min(i + 8, N)))
        A(f"s_waitcnt vmcnt({younger})")
        _, _, dst, n = units[i]
        for m in range(n):
            for q in range(2):
                A(f"ds_read_b64_tr_b16 {R(dst+4*m+2*q,2)}, {v(vTr)} offset:{(i%8)*4096+m*1024+q*256}")
        A(f"s_waitcnt lgkmcnt(0)")
        if i + 8 < N: issue(i + 8)

def weight_lane_consts(A, ln, vSrc, vTr, sLB, sStride, tmp2):
    A(f"v_lshrrev_b32 {v(tmp2)}, 2, {v(ln.L)}")
    A(f"v_mul_lo_u32 {v(vSrc)}, {v(tmp2)}, {s(sStride)}")
    ln.acc(vSrc, [(0, 2, 4)], add=True)
    ln.acc(vTr, [(5, 1, 9), (2, 2, 6), (4, 1, 5), (0, 1, 4), (1, 1, 3)])
    A(f"v_add_u32 {v(vTr)}, {s(sLB)}, {v(vTr)}")
```

```python
from common import *
dppadd = lambda r_, n: f"v_add_f32_dpp {v(r_)}, {v(r_)}, {v(r_)} row_ror:{n} row_mask:0xf bank_mask:0xf"

def allreduce(A, r_, t, TPW):
    n = TPW
    while n < 16:
        A("s_nop 1"); A(dppadd(r_, n)); n *= 2
    for op in ('v_permlane16_swap_b32', 'v_permlane32_swap_b32'):
        A(f"v_mov_b32 {v(t)}, {v(r_)}")
        A("s_nop 1")
        A(f"{op} {v(r_)}, {v(t)}")
        A(f"v_add_f32 {v(r_)}, {v(r_)}, {v(t)}")

def unpack(A, dst, src, n):
    for i in range(n):
        A(f"v_lshlrev_b32 {v(dst+2*i)}, 16, {v(src+i)}")
        A(f"v_and_b32 {v(dst+2*i+1)}, 0xffff0000, {v(src+i)}")

def rnd1(A, r_):
    A(f"v_cvt_pk_bf16_f32 {v(r_)}, {v(r_)}, {v(r_)}")
    A(f"v_and_b32 {v(r_)}, 0xffff0000, {v(r_)}")

def ln_core(A, X, n, D, TPW, out, t, tailmask=None, ntail=0):
    s0, s1, m, mb = t, t + 1, t + 2, t + 3
    A(f"v_add_f32 {v(s0)}, {v(X)}, {v(X+1)}")
    A(f"v_add_f32 {v(s1)}, {v(X+2)}, {v(X+3)}")
    for i in range(4, n): A(f"v_add_f32 {v(s0+i%2)}, {v(s0+i%2)}, {v(X+i)}")
    A(f"v_add_f32 {v(s0)}, {v(s0)}, {v(s1)}")
    allreduce(A, s0, s1, TPW)
    import struct
    inv = struct.unpack('<I', struct.pack('<f', 1.0 / D))[0]
    A(f"v_mul_f32 {v(m)}, {hex(inv)}, {v(s0)}")
    A(f"v_mov_b32 {v(mb)}, {v(m)}")
    rnd1(A, mb)
    A(f"v_mov_b32 {v(s0)}, 0"); A(f"v_mov_b32 {v(s1)}, 0")
    d = t + 4
    for i in range(n):
        if tailmask is not None and i == n - ntail: A(f"s_mov_b64 exec, {s(tailmask,2)}")
        A(f"v_sub_f32 {v(d+i%2)}, {v(X+i)}, {v(m)}")
        A(f"v_fmac_f32 {v(s0+i%2)}, {v(d+i%2)}, {v(d+i%2)}")
    if tailmask is not None: A(f"s_mov_b64 exec, -1")
    A(f"v_add_f32 {v(s0)}, {v(s0)}, {v(s1)}")
    allreduce(A, s0, s1, TPW)
    A(f"v_mul_f32 {v(s0)}, {hex(inv)}, {v(s0)}")
    rnd1(A, s0)
    A(f"v_add_f32 {v(s0)}, 0x3727c5ac, {v(s0)}")
    rnd1(A, s0)
    A(f"v_sqrt_f32 {v(s0)}, {v(s0)}")
    A(f"s_nop 0")
    rnd1(A, s0)
    A(f"v_rcp_f32 {v(s0)}, {v(s0)}")
    for i in range(0, n, 2):
        A(f"v_sub_f32 {v(X+i)}, {v(X+i)}, {v(mb)}")
        A(f"v_sub_f32 {v(X+i+1)}, {v(X+i+1)}, {v(mb)}")
        A(f"v_cvt_pk_bf16_f32 {v(d)}, {v(X+i)}, {v(X+i+1)}")
        A(f"v_lshlrev_b32 {v(X+i)}, 16, {v(d)}")
        A(f"v_and_b32 {v(X+i+1)}, 0xffff0000, {v(d)}")
        A(f"v_mul_f32 {v(X+i)}, {v(X+i)}, {v(s0)}")
        A(f"v_mul_f32 {v(X+i+1)}, {v(X+i+1)}, {v(s0)}")
        A(f"v_cvt_pk_bf16_f32 {v(out+i//2)}, {v(X+i)}, {v(X+i+1)}")

def ln1_kernel(A):
    TPW = 4
    A("s_cmp_ge_u32 s2, 128"); A("s_cbranch_scc1 LN1_exit")
    A(f"s_load_dwordx2 s[4:5], s[0:1], {KA['x']}")
    A(f"s_load_dwordx2 s[6:7], s[0:1], {KA['ws']}")
    A("v_and_b32 v1, 63, v0")
    ln = Lane(A, 0, 2)
    ln.acc(3, [(6, 2, 12), (0, 2, 10), (2, 4, 4)])
    ln.acc(4, [(2, 4, 9), (6, 2, 6), (0, 2, 4)])
    A("s_lshl_b32 s8, s2, 14")
    A("s_lshr_b32 s9, s2, 1"); A("s_lshl_b32 s9, s9, 15"); A("s_and_b32 s10, s2, 1"); A("s_lshl_b32 s10, s10, 8"); A("s_add_u32 s9, s9, s10")
    A("s_waitcnt lgkmcnt(0)")
    add64(A, 4, 4, "s8")
    for j in range(4): A(f"global_load_dwordx4 {v(16+4*j,4)}, v3, s[4:5] offset:{256*j}")
    A("s_cmp_lg_u32 s2, 0"); A("s_cbranch_scc1 LN1_nf")
    A("v_lshlrev_b32 v5, 4, v0")
    A("v_mov_b64 v[8:9], 0"); A("v_mov_b64 v[10:11], 0")
    for q in range(FL_BYTES // 4096):
        add64(A, 12, 6, WS_FLAG + 4096 * q)
        A(f"global_store_dwordx4 v5, v[8:11], s[12:13]")
    A.label("LN1_nf")
    add64(A, 6, 6, "s9")
    if WS_XN: add64(A, 6, 6, WS_XN)
    A("s_waitcnt vmcnt(0)")
    unpack(A, 32, 16, 16)
    ln_core(A, 32, 32, 512, TPW, 16, 8)
    for j in range(4):
        A(f"global_store_dwordx4 v4, {v(16+4*j,4)}, s[6:7]")
        if j < 3: add64(A, 6, 6, 8192)
    A.label("LN1_exit")
    A("s_endpgm")
```

```python
from common import *
import ln
sW, sRole, sSeg, sTmp, sTmp2, sSpin = 3, 4, 5, 6, 7, 8
sWS, sA, sB, sIn, sOut, sFl, sMask, sP1, sP2, sGot = 10, 12, 14, 16, 18, 20, 22, 24, 26, 28
SRD, sLB, sOff, sCol, sStride, sBuf, sNx, sFo = 32, 36, 37, 38, 39, 40, 41, 42
vL16, vL4, T = 0, 1, 8
L, tb = 16, 17

def start(A, ptrs):
    A(f"v_lshrrev_b32 {v(T)}, 6, v0")
    A(f"s_load_dwordx2 {s(sWS,2)}, s[0:1], {KA['ws']}")
    for r_, k in ptrs: A(f"s_load_dwordx2 {s(r_,2)}, s[0:1], {KA[k]}")
    A(f"v_readfirstlane_b32 {s(sW)}, {v(T)}")
    A(f"v_and_b32 {v(L)}, 63, v0")
    A(f"v_lshlrev_b32 {v(vL16)}, 4, {v(L)}")
    A(f"v_lshlrev_b32 {v(vL4)}, 2, {v(L)}")
    A(f"s_lshl_b32 {s(sLB)}, {s(sW)}, 15")
    return Lane(A, L, tb)

def base(A, dst, terms, imm, src=sWS):
    A(f"s_mov_b32 {s(sTmp2)}, {imm}")
    for r_, mul in terms:
        A(f"s_mul_i32 {s(sTmp)}, {s(r_)}, {mul}")
        A(f"s_add_u32 {s(sTmp2)}, {s(sTmp2)}, {s(sTmp)}")
    add64(A, dst, src, s(sTmp2))

def seg_addr(A, dst, src, sS, stride):
    A(f"s_mul_i32 {s(sTmp)}, {s(sS)}, {stride}")
    add64(A, dst, src, s(sTmp))

def wait_flags(A, sS, stride=256, sleep=1):
    lw, ld = A.newlabel('P_w'), A.newlabel('P_d')
    seg_addr(A, sB, sFl, sS, stride)
    A(f"s_mov_b32 {s(sSpin)}, {SPIN_MAX*8}")
    A.label(lw)
    A(f"global_load_dword {v(T)}, {v(vL4)}, {s(sB,2)} sc1")
    A(f"s_waitcnt vmcnt(0)")
    A(f"v_cmp_ne_u32 {s(sGot,2)}, 0, {v(T)}")
    A(f"s_nop 3")
    A(f"s_andn2_b64 {s(sGot,2)}, {s(sMask,2)}, {s(sGot,2)}")
    A(f"s_cbranch_scc0 {ld}")
    if sleep: A(f"s_sleep {sleep}")
    A(f"s_sub_u32 {s(sSpin)}, {s(sSpin)}, 1")
    A(f"s_cbranch_scc0 {lw}")
    A.label(ld)

def signal(A, sS, stride=256):
    nf = A.newlabel('P_nf')
    A(f"s_cmp_lg_u32 {s(sW)}, 0"); A(f"s_cbranch_scc1 {nf}")
    A(f"s_mul_i32 {s(sTmp)}, {s(sS)}, {stride}")
    A(f"s_add_u32 {s(sTmp)}, {s(sTmp)}, {s(sFo)}")
    A(f"v_mov_b32 {v(T)}, {s(sTmp)}"); A(f"v_mov_b32 {v(T+1)}, 1")
    A(f"global_store_dword {v(T)}, {v(T+1)}, {s(sFl,2)} sc1")
    A.label(nf)

def srd(A, ptr, nbytes):
    A(f"s_mov_b32 {s(SRD)}, {s(ptr)}"); A(f"s_and_b32 {s(SRD+1)}, {s(ptr+1)}, 0xffff")
    A(f"s_mov_b32 {s(SRD+2)}, {nbytes}"); A(f"s_mov_b32 {s(SRD+3)}, 0x20000")

def ws_weights(A, lane, stride, nk, W):
    A(f"s_mov_b32 {s(sStride)}, {stride}")
    weight_lane_consts(A, lane, 18, 19, sLB, sStride, 20)
    units = []
    for u in range((nk + 3) // 4):
        units.append((None, (lambda m, u=u: (sCol, (64*u + 16*m) * stride)), W + 16*u, min(4, nk - 4*u)))
    load_weight_units(A, units, 18, 19, sLB, SRD, sOff, sTmp)
    A(f"s_barrier")

def act_dma(A, nk, sS, segstride):
    seg_addr(A, sA, sIn, sS, segstride)
    A(f"s_lshl_b32 {s(sTmp2)}, {s(sW)}, 10")
    A(f"s_add_u32 {s(sTmp2)}, {s(sTmp2)}, {s(sBuf)}")
    n = (nk + 3) // 4
    skip = None
    for q in range(n):
        if 4 * q + 3 >= nk:
            skip = A.newlabel('P_sk')
            A(f"s_cmp_ge_u32 {s(sW)}, {nk - 4*q}"); A(f"s_cbranch_scc1 {skip}")
        A(f"s_add_u32 m0, {s(sTmp2)}, {4096*q}")
        if q: add64(A, sA, sA, 4096)
        else: A("s_nop 0")
        A(f"global_load_lds_dwordx4 {v(vL16)}, {s(sA,2)} sc1")
    if skip: A.label(skip)

def gemm_loop(A, name, nk, W, ACC, segstride, step, flags, epilogue, bufbytes, pre=None):
    XF = 16
    LOOP = f"{name}_loop"
    A(f"s_mov_b32 {s(sBuf)}, 0")
    A.label(LOOP)
    if flags: wait_flags(A, sSeg)
    act_dma(A, nk, sSeg, segstride)
    if pre: pre()
    A(f"v_add_u32 {v(T+2)}, {s(sBuf)}, {v(vL16)}")
    A(f"s_waitcnt vmcnt(0)")
    A(f"s_barrier")
    rd = lambda k: f"ds_read_b128 {v(XF+4*(k%8),4)}, {v(T+2)} offset:{1024*k}"
    for k in range(6): A(rd(k))
    for k in range(nk):
        A(f"s_waitcnt lgkmcnt({min(5, nk-1-k)})")
        A(f"v_mfma_f32_32x32x16_bf16 {v(ACC,16)}, {R(W+4*k,4)}, {v(XF+4*(k%8),4)}, {v(ACC,16) if k else 0}")
        if k + 6 < nk: A(rd(k + 6))
    A(f"s_xor_b32 {s(sBuf)}, {s(sBuf)}, {bufbytes}")
    epilogue()
    if flags == 'sig':
        A(f"s_waitcnt vmcnt(0)")
        A(f"s_barrier")
        signal(A, sSeg)
    A(f"s_add_u32 {s(sSeg)}, {s(sSeg)}, {step}")
    A(f"s_cmp_lt_u32 {s(sSeg)}, 64")
    A(f"s_cbranch_scc1 {LOOP}")

def r3(A, step, flags):
    lane = start(A, [(sP1, 'Wo')])
    A(f"s_lshr_b32 {s(sNx)}, {s(sRole)}, 2")
    A(f"s_and_b32 {s(sBuf)}, {s(sRole)}, 3")
    A(f"s_waitcnt lgkmcnt(0)")
    srd(A, sP1, 0x400000)
    A(f"s_lshl_b32 {s(sCol)}, {s(sNx)}, 20"); A(f"s_lshl_b32 {s(sTmp)}, {s(sBuf)}, 8"); A(f"s_add_u32 {s(sCol)}, {s(sCol)}, {s(sTmp)}")
    A(f"s_lshl_b32 {s(sTmp)}, {s(sW)}, 6"); A(f"s_add_u32 {s(sCol)}, {s(sCol)}, {s(sTmp)}")
    base(A, sIn, [(sNx, 65536), (sW, 1024)], WS_O)
    base(A, sOut, [(sNx, 32768), (sBuf, 8192), (sW, 2048)], WS_PART)
    base(A, sFl, [], FL_SEG)
    A(f"s_lshl_b32 {s(sTmp)}, {s(sNx)}, 3"); A(f"s_lshl_b64 {s(sMask,2)}, 0xff, {s(sTmp)}")
    A(f"s_lshl_b32 {s(sFo)}, {s(sRole)}, 2"); A(f"s_add_u32 {s(sFo)}, {s(sFo)}, {4*FO_P}")
    ws_weights(A, lane, 1024, 64, 256)
    ACC = 48
    def epi():
        seg_addr(A, sA, sOut, sSeg, 131072)
        A("s_nop 7")
        for i in range(8): A(f"v_cvt_pk_bf16_f32 {v(64+i)}, {v(ACC+2*i)}, {v(ACC+2*i+1)}")
        A(f"global_store_dwordx4 {v(vL16)}, {v(64,4)}, {s(sA,2)} sc1")
        A(f"global_store_dwordx4 {v(vL16)}, {v(68,4)}, {s(sA,2)} offset:1024 sc1")
    gemm_loop(A, "R3", 64, 256, ACC, 262144, step, 'sig' if flags else None, epi, 65536)
    A("s_endpgm")

def r4(A, step, flags):
    lane = start(A, [(sP1, 'x')])
    vC, vX = 2, 3
    lane.acc(vC, [(2, 4, 9), (0, 2, 4)])
    lane.acc(vX, [(0, 2, 10), (2, 4, 4)])
    A(f"s_waitcnt lgkmcnt(0)")
    base(A, sIn, [(sRole, 256), (sW, 64)], WS_PART)
    base(A, sOut, [(sRole, 256), (sW, 64)], WS_H)
    base(A, sP2, [(sRole, 16384), (sW, 4096)], 0, sP1)
    base(A, sFl, [], FL_SEG)
    A(f"s_mov_b32 {s(sMask)}, 0"); A(f"s_mov_b32 {s(sMask+1)}, 0xffff")
    A(f"s_lshl_b32 {s(sFo)}, {s(sRole)}, 2"); A(f"s_add_u32 {s(sFo)}, {s(sFo)}, {4*FO_HN}")
    A.label("R4_loop")
    XR, PR, X = 16, 32, 96
    seg_addr(A, sA, sP2, sSeg, 32768)
    for j in range(4): A(f"global_load_dwordx4 {v(XR+4*j,4)}, {v(vX)}, {s(sA,2)} offset:{256*j}")
    if flags: wait_flags(A, sSeg)
    seg_addr(A, sA, sIn, sSeg, 131072)
    for p in range(4):
        for j in range(4):
            A(f"global_load_dwordx4 {v(PR+16*p+4*j,4)}, {v(vC)}, {s(sA,2)} sc1")
            add64(A, sA, sA, 8192)
    A(f"s_waitcnt vmcnt(12)")
    ln.unpack(A, X, PR, 16)
    for p in range(1, 4):
        A(f"s_waitcnt vmcnt({12-4*p})")
        for i in range(16):
            A(f"v_lshlrev_b32 {v(T)}, 16, {v(PR+16*p+i)}")
            A(f"v_and_b32 {v(T+1)}, 0xffff0000, {v(PR+16*p+i)}")
            A(f"v_add_f32 {v(X+2*i)}, {v(X+2*i)}, {v(T)}")
            A(f"v_add_f32 {v(X+2*i+1)}, {v(X+2*i+1)}, {v(T+1)}")
    for i in range(16):
        A(f"v_cvt_pk_bf16_f32 {v(T+2)}, {v(X+2*i)}, {v(X+2*i+1)}")
        A(f"v_lshlrev_b32 {v(T)}, 16, {v(XR+i)}")
        A(f"v_and_b32 {v(T+1)}, 0xffff0000, {v(XR+i)}")
        A(f"v_lshlrev_b32 {v(X+2*i)}, 16, {v(T+2)}")
        A(f"v_and_b32 {v(X+2*i+1)}, 0xffff0000, {v(T+2)}")
        A(f"v_add_f32 {v(T)}, {v(T)}, {v(X+2*i)}")
        A(f"v_add_f32 {v(T+1)}, {v(T+1)}, {v(X+2*i+1)}")
        A(f"v_cvt_pk_bf16_f32 {v(PR+i)}, {v(T)}, {v(T+1)}")
    ln.unpack(A, X, PR, 16)
    seg_addr(A, sA, sOut, sSeg, 32768)
    add64(A, sB, sA, WS_HN - WS_H)
    for j in range(4):
        A(f"global_store_dwordx4 {v(vC)}, {v(PR+4*j,4)}, {s(sA,2)} sc1")
        if j < 3: add64(A, sA, sA, 8192)
    ln.ln_core(A, X, 32, 512, 4, XR, T)
    for j in range(4):
        A(f"global_store_dwordx4 {v(vC)}, {v(XR+4*j,4)}, {s(sB,2)} sc1")
        if j < 3: add64(A, sB, sB, 8192)
    A(f"s_waitcnt vmcnt(0)")
    if flags:
        A(f"s_barrier"); signal(A, sSeg)
    A(f"s_add_u32 {s(sSeg)}, {s(sSeg)}, {step}")
    A(f"s_cmp_lt_u32 {s(sSeg)}, 64")
    A(f"s_cbranch_scc1 R4_loop")
    A("s_endpgm")

def r5(A, step, flags):
    lane = start(A, [(sP1, 'w_in')])
    A(f"s_lshl_b32 {s(sNx)}, {s(sRole)}, 2"); A(f"s_add_u32 {s(sNx)}, {s(sNx)}, {s(sW)}")
    A(f"s_lshl_b32 {s(sCol)}, {s(sNx)}, 6")
    A(f"s_cmp_ge_u32 {s(sNx)}, 22"); A(f"s_cselect_b32 {s(sTmp)}, 32, 0"); A(f"s_sub_u32 {s(sCol)}, {s(sCol)}, {s(sTmp)}")
    A(f"s_waitcnt lgkmcnt(0)")
    srd(A, sP1, 512 * 2752)
    base(A, sIn, [(sW, 1024)], WS_HN)
    base(A, sOut, [(sNx, 2048)], WS_Z)
    base(A, sFl, [], FL_SEG)
    A(f"s_mov_b32 {s(sMask)}, 0"); A(f"s_mov_b32 {s(sMask+1)}, {3 << (FO_HN-32)}")
    A(f"s_lshl_b32 {s(sFo)}, {s(sRole)}, 2"); A(f"s_add_u32 {s(sFo)}, {s(sFo)}, {4*FO_Z}")
    ws_weights(A, lane, 2752, 32, 256)
    import struct, math
    f2u = lambda x: hex(struct.unpack('<I', struct.pack('<f', x))[0])
    k0 = -2.0 * math.log2(math.e) * math.sqrt(2.0 / math.pi)
    sK0, sK1 = 44, 45
    A(f"s_mov_b32 {s(sK1)}, {f2u(k0 * 0.044715)}")
    A(f"v_mov_b32 {v(4)}, {f2u(k0)}")
    ACC, U = 48, 64
    def epi():
        seg_addr(A, sA, sOut, sSeg, SEG_Z)
        A("s_nop 7")
        for i in range(8): A(f"v_cvt_pk_bf16_f32 {v(80+i)}, {v(ACC+2*i)}, {v(ACC+2*i+1)}")
        ln.unpack(A, ACC, 80, 8)
        for i in range(16): A(f"v_mul_f32 {v(U+i)}, {v(ACC+i)}, {v(ACC+i)}")
        for i in range(16): A(f"v_fma_f32 {v(U+i)}, {v(U+i)}, {s(sK1)}, {v(4)}")
        for i in range(16): A(f"v_mul_f32 {v(U+i)}, {v(U+i)}, {v(ACC+i)}")
        for i in range(16): A(f"v_exp_f32 {v(U+i)}, {v(U+i)}")
        for i in range(16): A(f"v_add_f32 {v(U+i)}, 1.0, {v(U+i)}")
        for i in range(16): A(f"v_rcp_f32 {v(U+i)}, {v(U+i)}")
        for i in range(16): A(f"v_mul_f32 {v(U+i)}, {v(U+i)}, {v(ACC+i)}")
        for i in range(8): A(f"v_cvt_pk_bf16_f32 {v(80+i)}, {v(U+2*i)}, {v(U+2*i+1)}")
        A(f"global_store_dwordx4 {v(vL16)}, {v(80,4)}, {s(sA,2)} sc1")
        A(f"global_store_dwordx4 {v(vL16)}, {v(84,4)}, {s(sA,2)} offset:1024 sc1")
    gemm_loop(A, "R5", 32, 256, ACC, 32768, step, 'sig' if flags else None, epi, 32768)
    A("s_endpgm")

def r5b(A, step, flags):
    lane = start(A, [])
    vC = 2
    lane.acc(vC, [(2, 4, 9), (0, 2, 4)])
    sTail = 44
    A(f"v_cmp_gt_u32 {s(sTail,2)}, 24, {v(L)}")
    A(f"s_waitcnt lgkmcnt(0)")
    base(A, sIn, [(sRole, 256), (sW, 64)], WS_Z + SEG_F)
    base(A, sOut, [(sRole, 256), (sW, 64)], WS_Z2)
    base(A, sFl, [], FL_SEG)
    A(f"s_mov_b32 {s(sMask)}, 0"); A(f"s_mov_b32 {s(sMask+1)}, {0x3f << (FO_Z+5-32)}")
    A(f"s_lshl_b32 {s(sFo)}, {s(sRole)}, 2"); A(f"s_add_u32 {s(sFo)}, {s(sFo)}, {4*FO_Z2}")
    A.label("R5b_loop")
    PR, X = 16, 48
    if flags: wait_flags(A, sSeg)
    seg_addr(A, sA, sIn, sSeg, SEG_Z)
    A(f"v_mov_b64 {v(PR+20,2)}, 0"); A(f"v_mov_b64 {v(PR+22,2)}, 0")
    for j in range(6):
        if j == 5: A(f"s_mov_b64 exec, {s(sTail,2)}")
        A(f"global_load_dwordx4 {v(PR+4*j,4)}, {v(vC)}, {s(sA,2)} sc1")
        if j < 5: add64(A, sA, sA, 8192)
    A(f"s_mov_b64 exec, -1")
    seg_addr(A, sA, sOut, sSeg, SEG_F)
    A(f"s_waitcnt vmcnt(0)")
    ln.unpack(A, X, PR, 24)
    ln.ln_core(A, X, 48, 688, 4, PR, T, tailmask=sTail, ntail=8)
    for j in range(6):
        if j == 5: A(f"s_mov_b64 exec, {s(sTail,2)}")
        A(f"global_store_dwordx4 {v(vC)}, {v(PR+4*j,4)}, {s(sA,2)} sc1")
        if j < 5: add64(A, sA, sA, 8192)
    A(f"s_mov_b64 exec, -1")
    A(f"s_waitcnt vmcnt(0)")
    if flags:
        A(f"s_barrier"); signal(A, sSeg)
    A(f"s_add_u32 {s(sSeg)}, {s(sSeg)}, {step}")
    A(f"s_cmp_lt_u32 {s(sSeg)}, 64")
    A(f"s_cbranch_scc1 R5b_loop")
    A("s_endpgm")

def r6(A, flags):
    lane = start(A, [(sP1, 'w_sp'), (sP2, 'b_sp')])
    vS0, vS1, vR0, vR1, vWs = 2, 3, 4, 5, 6
    sTg, sFh, sWsp = 44, 45, 46
    A(f"s_lshr_b32 {s(sTg)}, {s(sRole)}, 1"); A(f"s_and_b32 {s(sFh)}, {s(sRole)}, 1")
    A(f"s_lshl_b32 {s(sTg)}, {s(sTg)}, 2"); A(f"s_add_u32 {s(sTg)}, {s(sTg)}, {s(sW)}")
    lane.acc(vS0, [(5, 1, 6)])
    A(f"v_xor_b32 {v(vS0)}, {v(vS0)}, {v(vL16)}")
    A(f"s_and_b32 {s(sTmp)}, {s(sW)}, 1"); A(f"s_lshl_b32 {s(sTmp)}, {s(sTmp)}, 7")
    A(f"v_xor_b32 {v(vS0)}, {s(sTmp)}, {v(vS0)}")
    lane.acc(vR0, [(5, 1, 7), (2, 2, 4)])
    lane.acc(vR1, [(0, 1, 6), (4, 1, 7)])
    A(f"v_xor_b32 {v(vR0)}, {v(vR0)}, {v(vR1)}")
    lane.acc(vR0, [(4, 1, 10), (0, 1, 9), (1, 1, 3)], add=True)
    A(f"v_xor_b32 {v(vR1)}, 64, {v(vR0)}")
    lane.acc(vWs, [(0, 5, 12), (5, 1, 4)])
    A(f"s_waitcnt lgkmcnt(0)")
    base(A, sIn, [(sFh, 22528), (sW, 1024)], WS_Z2)
    base(A, sWsp, [(sTg, 131072)], 0, sP1)
    base(A, sFl, [], FL_SEG)
    A(f"s_mov_b32 {s(sMask)}, 0"); A(f"s_mov_b32 {s(sMask+1)}, {3 << (FO_Z2-32)}")
    ACC, WB, AF = 256, 24, 48
    for i in range(176): A(f"v_accvgpr_write_b32 {a(i)}, 0")
    A(f"s_mov_b32 {s(sSeg)}, 0")
    A(f"s_mov_b32 {s(sBuf)}, 0")
    A.label("R6_loop")
    A(f"global_load_dwordx4 {v(WB,4)}, {v(vWs)}, {s(sWsp,2)}")
    A(f"global_load_dwordx4 {v(WB+4,4)}, {v(vWs)}, {s(sWsp,2)} offset:32")
    add64(A, sWsp, sWsp, 64)
    if flags: wait_flags(A, sSeg)
    seg_addr(A, sA, sIn, sSeg, SEG_F)
    A(f"s_lshl_b32 {s(sTmp2)}, {s(sW)}, 10"); A(f"s_add_u32 {s(sTmp2)}, {s(sTmp2)}, {s(sBuf)}")
    for q in range(6):
        if q == 5:
            A(f"s_cmp_ge_u32 {s(sW)}, 2"); A(f"s_cbranch_scc1 R6_sk")
        A(f"s_add_u32 m0, {s(sTmp2)}, {4096*q}")
        if q: add64(A, sA, sA, 4096)
        else: A("s_nop 0")
        A(f"global_load_lds_dwordx4 {v(vS0)}, {s(sA,2)} sc1")
    A.label("R6_sk")
    A(f"v_add_u32 {v(T+2)}, {s(sBuf)}, {v(vR0)}")
    A(f"v_add_u32 {v(T+3)}, {s(sBuf)}, {v(vR1)}")
    A(f"s_waitcnt vmcnt(0)")
    A(f"s_barrier")
    def rd(i):
        f, k = i // 2, i % 2
        d = AF + 4 * (i % 8)
        A(f"ds_read_b64_tr_b16 {v(d,2)}, {v(T+2)} offset:{2048*f+256*k}")
        A(f"ds_read_b64_tr_b16 {v(d+2,2)}, {v(T+3)} offset:{2048*f+256*k}")
    for i in range(5): rd(i)
    for i in range(22):
        A(f"s_waitcnt lgkmcnt({2*min(4, 21-i)})")
        A(f"v_mfma_f32_32x32x16_bf16 {R(ACC+16*(i//2),16)}, {v(AF+4*(i%8),4)}, {v(WB+4*(i%2),4)}, {R(ACC+16*(i//2),16)}")
        if i + 5 < 22: rd(i + 5)
    A(f"s_xor_b32 {s(sBuf)}, {s(sBuf)}, 32768")
    A(f"s_add_u32 {s(sSeg)}, {s(sSeg)}, 1")
    A(f"s_cmp_lt_u32 {s(sSeg)}, 64")
    A(f"s_cbranch_scc1 R6_loop")
    Z1 = 24
    base(A, sA, [(sTg, SEG_Z), (sFh, 22528)], WS_Z)
    if flags:
        A(f"s_mov_b32 {s(sMask+1)}, {0x3f << (FO_Z-32)}")
        wait_flags(A, sTg)
    for i in range(22):
        A(f"global_load_dwordx4 {v(Z1+4*i,4)}, {v(vL16)}, {s(sA,2)} offset:{1024*(i%4)} sc1")
        if i % 4 == 3: add64(A, sA, sA, 4096)
    A(f"v_and_b32 {v(T)}, 31, {v(L)}"); A(f"v_lshlrev_b32 {v(T)}, 1, {v(T)}")
    base(A, sB, [(sTg, 64)], 0, sP2)
    A(f"global_load_ushort {v(T+1)}, {v(T)}, {s(sB,2)}")
    base(A, sA, [(sTg, SEG_F), (sFh, 22528)], WS_Y)
    A(f"s_waitcnt vmcnt(0)")
    A(f"v_lshlrev_b32 {v(T+1)}, 16, {v(T+1)}")
    G = 112
    for i in range(22):
        for q in range(8): A(f"v_accvgpr_read_b32 {v(G+q)}, {a(8*i+q)}")
        for q in range(4): A(f"v_cvt_pk_bf16_f32 {v(G+8+q)}, {v(G+2*q)}, {v(G+2*q+1)}")
        ln.unpack(A, G, G + 8, 4)
        for q in range(8): A(f"v_add_f32 {v(G+q)}, {v(G+q)}, {v(T+1)}")
        for q in range(4): A(f"v_cvt_pk_bf16_f32 {v(G+8+q)}, {v(G+2*q)}, {v(G+2*q+1)}")
        ln.unpack(A, G, G + 8, 4)
        ln.unpack(A, G + 8, Z1 + 4 * i, 4)
        for q in range(8): A(f"v_mul_f32 {v(G+q)}, {v(G+q)}, {v(G+8+q)}")
        for q in range(4): A(f"v_cvt_pk_bf16_f32 {v(Z1+4*i+q)}, {v(G+2*q)}, {v(G+2*q+1)}")
        A(f"global_store_dwordx4 {v(vL16)}, {v(Z1+4*i,4)}, {s(sA,2)} offset:{1024*(i%4)} sc1")
        if i % 4 == 3: add64(A, sA, sA, 4096)
    A("s_endpgm")

def r7(A, step, flags):
    lane = start(A, [(sP1, 'w_out'), (sP2, 'out')])
    vO = 2
    sHh = 44
    lane.acc(vO, [(0, 5, 10), (5, 1, 4)])
    A(f"s_lshl_b32 {s(sCol)}, {s(sRole)}, 8"); A(f"s_lshl_b32 {s(sTmp)}, {s(sW)}, 6"); A(f"s_add_u32 {s(sCol)}, {s(sCol)}, {s(sTmp)}")
    A(f"s_waitcnt lgkmcnt(0)")
    srd(A, sP1, 688 * 1024)
    base(A, sIn, [(sW, 1024)], WS_Y)
    base(A, sOut, [(sCol, 1)], 0, sP2)
    base(A, sHh, [(sRole, 8192), (sW, 2048)], WS_H)
    ws_weights(A, lane, 1024, 43, 256)
    ACC, H = 48, 64
    def pre():
        seg_addr(A, sB, sHh, sSeg, 32768)
        A(f"global_load_dwordx4 {v(H,4)}, {v(vL16)}, {s(sB,2)} sc1")
        A(f"global_load_dwordx4 {v(H+4,4)}, {v(vL16)}, {s(sB,2)} offset:1024 sc1")
    def epi():
        seg_addr(A, sA, sOut, sSeg, 32768)
        ln.unpack(A, 80, H, 8)
        for i in range(8): A(f"v_cvt_pk_bf16_f32 {v(H+i)}, {v(ACC+2*i)}, {v(ACC+2*i+1)}")
        ln.unpack(A, ACC, H, 8)
        for i in range(16): A(f"v_add_f32 {v(ACC+i)}, {v(ACC+i)}, {v(80+i)}")
        for i in range(8): A(f"v_cvt_pk_bf16_f32 {v(96+i)}, {v(ACC+2*i)}, {v(ACC+2*i+1)}")
        A(f"global_store_dwordx4 {v(vO)}, {v(96,4)}, {s(sA,2)}")
        A(f"global_store_dwordx4 {v(vO)}, {v(100,4)}, {s(sA,2)} offset:32")
    gemm_loop(A, "R7", 43, 256, ACC, SEG_F, step, None, epi, 65536, pre)
    A("s_endpgm")
```

```python
from common import *

L_MEM, L_KX, L_VX, L_Q, L_O = 0, 8192, 16384, 24576, 26624
L_K = L_MEM
L_SEL, L_ONES, L_MW, L_ZERO = 28672, 29696, 30720, 31744
L_W = 32768
vL16, vIdx, vInbW, vLdsW, vMemL, vQW, vQR, vKR, vOW, vDum = range(10)
PZ = 10
T0, T1, T2, T3 = 12, 13, 14, 15
MA, WIN, AQ, AK, AV, VX = 16, 48, 96, 104, 112, 120
sW, sH, sStep, sSpin, sTmp, sTmp2 = 3, 4, 5, 6, 7, 8
sC = 9
sHi = 10
sKV, sKM, sINBw, sINBp, sINBr, sMEMr, sMEMw, sFKV, sPROG = 12, 14, 16, 18, 20, 22, 24, 26, 28
sWS, sDBG = 30, 32
sTag = 34
SRD = 36
sPTR = 40
sM0P = 48
sPROF = 50
sRdy = 52
sMode = 54
sKXM0 = 56
sLB = 57
sCnt1, sCnt2 = 58, 59
sKV2 = 40
sSlot = 49
sMA, sMB, sMC = 60, 62, 36
sTM = 64
NST = 12

perm_units = [('K', j) for j in range(8)] + [('V', j) for j in range(8)] + [('Q', j) for j in range(3, 8)] + [('O', (0, 0)), ('O', (0, 1)), ('O', (1, 0))]
lds_units = [('Q', 0), ('Q', 1), ('Q', 2), ('O', (1, 1)), ('O', (2, 0)), ('O', (2, 1)), ('O', (3, 0)), ('O', (3, 1))]
units = perm_units + lds_units
PERM = {u: 128 + 16 * i for i, u in enumerate(perm_units)}
LDSU = {u: i for i, u in enumerate(lds_units)}
QWIN = {0: WIN + 16, 1: WIN + 32, 2: WIN}
OWIN = {(1, 1): WIN + 32, (2, 0): WIN + 16, (2, 1): WIN, (3, 0): MA, (3, 1): MA + 16}

def frag(M, j, t):
    u = (M, j)
    if u in PERM: return R(PERM[u] + 8 * t, 8)
    if M == 'Q': return R(QWIN[j] + 8 * t, 8)
    return R(OWIN[j] + 8 * t, 8)

def SM(acc, areg, b):
    return f"v_smfmac_f32_16x16x64_bf16 {v(acc,4)}, {v(areg,4)}, {b}, {v(vIdx)}"

def win_reads(ulist):
    out = []
    for u in ulist:
        base = QWIN[u[1]] if u[0] == 'Q' else OWIN[u[1]]
        for q in range(4):
            out.append(f"ds_read_b128 {v(base+4*q,4)}, {v(vLdsW)} offset:{LDSU[u]*4096+q*1024}")
    return out

def team_prologue(A, use_flags, prof):
    A(f"s_lshr_b32 {s(sH)}, s2, 3")
    A(f"v_lshrrev_b32 {v(T0)}, 6, v0")
    A(f"s_load_dwordx8 {s(sPTR,8)}, s[0:1], {KA['Wq']}")
    A(f"s_load_dwordx2 {s(sM0P,2)}, s[0:1], {KA['mem0']}")
    A(f"s_load_dwordx2 {s(sDBG,2)}, s[0:1], {KA['dbg']}")
    A(f"s_load_dwordx2 {s(sWS,2)}, s[0:1], {KA['ws']}")
    A(f"v_readfirstlane_b32 {s(sW)}, {v(T0)}")
    A(f"v_and_b32 v16, 63, v0")
    L = 16
    n16, g4, ta, tb, tc = 17, 18, 19, 20, 21
    vSrcP, vSrcO, vTr0, vTr1, vCol, vMemW = 22, 23, 24, 25, 26, 27
    def bits(dst, lo, n): A(f"v_bfe_u32 {v(dst)}, {v(L)}, {lo}, {n}")
    def acc(dst, lo, n, sh, first=False, tmp=tb):
        bits(tmp, lo, n)
        if first: A(f"v_lshlrev_b32 {v(dst)}, {sh}, {v(tmp)}")
        else: A(f"v_lshl_add_u32 {v(dst)}, {v(tmp)}, {sh}, {v(dst)}")
    def addw(dst, sh, imm=0):
        A(f"s_lshl_b32 {s(sTmp)}, {s(sW)}, {sh}")
        if imm: A(f"s_add_u32 {s(sTmp)}, {s(sTmp)}, {imm}")
        A(f"v_add_u32 {v(dst)}, {s(sTmp)}, {v(dst)}")
    A(f"v_lshlrev_b32 {v(vL16)}, 4, {v(L)}")
    A(f"v_and_b32 {v(n16)}, 15, {v(L)}")
    A(f"v_cmp_lt_u32 {s(sHi,2)}, 7, {v(n16)}")
    bits(ta, 1, 1)
    A(f"v_cmp_eq_u32 vcc, 1, {v(ta)}")
    A(f"v_mov_b32 {v(ta)}, 0x44444444")
    A(f"v_mov_b32 {v(tb)}, 0xeeeeeeee")
    A(f"v_cndmask_b32 {v(vIdx)}, {v(ta)}, {v(tb)}, vcc")
    acc(vInbW, 3, 3, 13, True); acc(vInbW, 0, 3, 3); addw(vInbW, 16)
    acc(vMemW, 4, 2, 4, True); acc(vMemW, 0, 2, 2)
    A(f"s_lshl_b32 {s(sLB)}, {s(sW)}, 15")
    A(f"s_add_u32 {s(sLB)}, {s(sLB)}, {L_W}")
    A(f"v_add_u32 {v(vLdsW)}, {s(sLB)}, {v(vL16)}")
    A(f"v_mov_b32 {v(vMemL)}, {v(vL16)}"); addw(vMemL, 11)
    A(f"s_add_u32 {s(sKXM0)}, {s(sTmp)}, {L_KX}")
    acc(vQW, 0, 4, 4, True); acc(vQW, 4, 2, 2); addw(vQW, 9, L_Q)
    acc(vQR, 5, 1, 9, True); acc(vQR, 4, 1, 7); acc(vQR, 2, 2, 4); acc(vQR, 0, 1, 3)
    acc(vKR, 5, 1, 10, True); acc(vKR, 0, 2, 7); acc(vKR, 1, 1, 5); acc(vKR, 4, 1, 6); acc(vKR, 2, 2, 3)
    acc(vOW, 5, 1, 8, True); acc(vOW, 1, 2, 6); acc(vOW, 4, 1, 5); acc(vOW, 0, 1, 4); acc(vOW, 3, 1, 3); addw(vOW, 9)
    acc(ta, 2, 1, 4, True)
    A(f"v_mov_b32 {v(tc)}, 0x3f80")
    A(f"v_lshlrev_b32 {v(tc)}, {v(ta)}, {v(tc)}")
    acc(ta, 0, 2, 1, True); acc(ta, 3, 1, 0)
    for q in range(4):
        A(f"v_cmp_eq_u32 vcc, {q}, {v(ta)}")
        A(f"s_nop 1")
        A(f"v_cndmask_b32 {v(28+q)}, 0, {v(tc)}, vcc")
    A(f"ds_write_b128 {v(vL16)}, {v(28,4)} offset:{L_SEL}")
    for q in range(4): A(f"v_mov_b32 {v(40+q)}, 0x3f803f80")
    A(f"ds_write_b128 {v(vL16)}, {v(40,4)} offset:{L_ONES}")
    A(f"ds_write_b32 {v(vL16)}, {v(vMemW)} offset:{L_MW}")
    for q in range(4): A(f"v_mov_b32 {v(44+q)}, 0")
    A(f"ds_write_b128 {v(vL16)}, {v(44,4)} offset:{L_ZERO}")
    bits(ta, 1, 1); bits(tc, 4, 1)
    A(f"v_xor_b32 {v(ta)}, {v(ta)}, {v(tc)}")
    A(f"v_lshlrev_b32 {v(vCol)}, 5, {v(ta)}")
    acc(vCol, 0, 1, 4)
    acc(ta, 4, 2, 2, True); acc(ta, 2, 1, 0); acc(ta, 3, 1, 4)
    A(f"v_lshl_add_u32 {v(vSrcP)}, {v(ta)}, 13, {v(vCol)}")
    acc(ta, 4, 1, 4, True); acc(ta, 5, 1, 3); acc(ta, 3, 1, 2); acc(ta, 2, 1, 0)
    A(f"v_lshl_add_u32 {v(vSrcO)}, {v(ta)}, 10, {v(vCol)}")
    acc(vTr0, 2, 4, 6, True); acc(vTr0, 4, 1, 5); acc(vTr0, 0, 2, 3)
    A(f"v_add_u32 {v(vTr0)}, {s(sLB)}, {v(vTr0)}")
    A(f"v_xor_b32 {v(vTr1)}, 32, {v(vTr0)}")
    A(f"s_waitcnt lgkmcnt(0)")
    def base(dst, terms, imm):
        A(f"s_mov_b32 {s(sTmp2)}, {imm}")
        for r_, sh in terms:
            A(f"s_lshl_b32 {s(sTmp)}, {s(r_)}, {sh}")
            A(f"s_add_u32 {s(sTmp2)}, {s(sTmp2)}, {s(sTmp)}")
        add64(A, dst, sWS, s(sTmp2))
    base(sKV, [(sH, 14)], WS_KV)
    base(sKM, [(sH, 13)], WS_KM + 4096)
    base(sINBr, [(sH, 13)], WS_INB)
    base(sINBw, [(sH, 6)], WS_INB + 4096)
    A(f"s_lshr_b32 {s(sCnt1)}, {s(sH)}, 3")
    A(f"s_and_b32 {s(sCnt2)}, {s(sH)}, 1")
    A(f"s_bfe_u32 {s(sSpin)}, {s(sH)}, 0x20001")
    base(sMEMw, [(sW, 11), (sCnt1, 9), (sCnt2, 8), (sSpin, 6)], WS_MEM)
    base(sMEMr, [], WS_MEM)
    base(sFKV, [(sH, 8)], FL_KV)
    base(sPROG, [(sH, 6), (sW, 2)], FL_PROG)
    if prof: base(sPROF, [(sH, 15), (sW, 13)], WS_PROF)
    A(f"s_mov_b32 {s(sC)}, 0x3e0293ee")
    for q in range(4): A(f"v_mov_b32 {v(28+q)}, -1")
    for off in (0, 1024):
        A(f"global_store_dwordx4 {v(vMemL)}, {v(28,4)}, {s(sINBr,2)} offset:{off} sc1")
    for q in range(4):
        A(f"v_add_u32 {v(ta)}, {8192*q}, {v(vMemW)}")
        A(f"global_store_dword {v(ta)}, {v(28)}, {s(sMEMw,2)} sc1")
    acc(ta, 2, 2, 11, True); acc(ta, 0, 1, 10); acc(ta, 5, 1, 8); acc(ta, 4, 1, 4); acc(ta, 1, 1, 5); addw(ta, 6)
    TMPA = 32
    for b in range(2):
        A(f"global_load_dwordx4 {v(TMPA+4*b,4)}, {v(ta)}, {s(sM0P,2)} offset:{512*b}")
    A(f"s_mov_b32 {s(SRD+2)}, 0x400000")
    A(f"s_mov_b32 {s(SRD+3)}, 0x20000")
    sCol, sColO, sOff = 60, 61, 62
    A(f"s_lshl_b32 {s(sCol)}, {s(sH)}, 8")
    A(f"s_lshl_b32 {s(sTmp)}, {s(sW)}, 6")
    A(f"s_add_u32 {s(sCol)}, {s(sCol)}, {s(sTmp)}")
    A(f"s_lshl_b32 {s(sColO)}, {s(sH)}, 17")
    A(f"s_lshl_b32 {s(sTmp)}, {s(sW)}, 8")
    A(f"s_add_u32 {s(sColO)}, {s(sColO)}, {s(sTmp)}")
    A(f"s_lshl_b32 {s(sTmp2)}, {s(sW)}, 1")
    cur = [None]
    def issue(i):
        M, j = units[i]
        slot = i % 8
        if cur[0] != M:
            p = sPTR + 2 * 'QKVO'.index(M)
            A(f"s_mov_b32 {s(SRD)}, {s(p)}")
            A(f"s_and_b32 {s(SRD+1)}, {s(p+1)}, 0xffff")
            cur[0] = M
        if M == 'O':
            p_, kb2 = j
            b0 = 64 * kb2 * 1024 + p_ * 64
            for m in range(4):
                A(f"s_add_u32 m0, {s(sLB)}, {slot*4096 + m*1024}")
                A(f"s_add_u32 {s(sOff)}, {s(sColO)}, {b0 + (32*(m//2) + 2*(m%2)) * 1024}")
                A(f"buffer_load_dwordx4 {v(vSrcO)}, {s(SRD,4)}, {s(sOff)} offen lds")
        else:
            A(f"s_xor_b32 {s(sTmp)}, {s(sTmp2)}, {j}")
            A(f"s_lshr_b32 {s(sTmp)}, {s(sTmp)}, 1")
            A(f"s_lshl_b32 {s(sTmp)}, {s(sTmp)}, 18")
            A(f"s_add_u32 {s(sTmp)}, {s(sTmp)}, {s(sCol)}")
            for m in range(4):
                A(f"s_add_u32 m0, {s(sLB)}, {slot*4096 + m*1024}")
                A(f"s_add_u32 {s(sOff)}, {s(sTmp)}, {(256*(j%2) + 128*(m//2) + 2*(m%2)) * 8192}")
                A(f"buffer_load_dwordx4 {v(vSrcP)}, {s(SRD,4)}, {s(sOff)} offen lds")
    for i in range(8): issue(i)
    A(f"s_waitcnt vmcnt(32)")
    A(f"s_barrier")
    lab = A.newlabel('T_noarr')
    A(f"s_cmp_lg_u32 {s(sW)}, 0")
    A(f"s_cbranch_scc1 {lab}")
    A(f"s_getreg_b32 {s(sTmp)}, hwreg(HW_REG_XCC_ID)")
    A(f"s_and_b32 {s(sTmp)}, {s(sTmp)}, 7")
    A(f"s_lshl_b32 {s(sTmp)}, {s(sTmp)}, 2")
    A(f"v_mov_b32 {v(ta)}, {s(sTmp)}")
    A(f"v_mov_b32 {v(tb)}, 1")
    A(f"s_mov_b64 exec, 1")
    A(f"global_atomic_add {v(ta)}, {v(tb)}, {s(sDBG,2)} sc1")
    A(f"s_mov_b64 exec, -1")
    A(f"s_waitcnt vmcnt(0)")
    A.label(lab)
    TW = 48
    for i in range(32):
        slot = i % 8
        A(f"s_waitcnt vmcnt({min(31 - i, 7) * 4})")
        dst = PERM[units[i]] if units[i] in PERM else TW
        for t in range(2):
            for m in range(4):
                A(f"ds_read_b64_tr_b16 {R(dst+8*t+2*m,2)}, {v(vTr1 if t else vTr0)} offset:{slot*4096+m*1024}")
        A(f"s_waitcnt lgkmcnt(0)")
        if i + 8 < 32: issue(i + 8)
        if units[i] not in PERM:
            for q in range(4):
                A(f"ds_write_b128 {v(vLdsW)}, {v(TW+4*q,4)} offset:{slot*4096+q*1024}")
            A(f"s_waitcnt lgkmcnt(0)")
    for q in range(8): A(f"v_mov_b32 {v(MA+q)}, {v(TMPA+q)}")
    A(f"s_mov_b32 {s(sSpin)}, {SPIN_MAX}")
    A(f"v_lshrrev_b32 {v(T0)}, 2, {v(vL16)}")
    A(f"v_and_b32 {v(T0)}, 28, {v(T0)}")
    lw, ld = A.newlabel('T_bar'), A.newlabel('T_bard')
    A.label(lw)
    A(f"global_load_dword {v(T1)}, {v(T0)}, {s(sDBG,2)} sc1")
    A(f"s_waitcnt vmcnt(0)")
    A(f"v_cmp_eq_u32 {s(sMode,2)}, 32, {v(T1)}")
    A(f"s_mov_b32 {s(sTmp)}, 0")
    for q in range(8):
        A(f"v_readlane_b32 {s(sTmp2)}, {v(T1)}, {q}")
        A(f"s_add_u32 {s(sTmp)}, {s(sTmp)}, {s(sTmp2)}")
    A(f"s_cmp_ge_u32 {s(sTmp)}, 32")
    A(f"s_cbranch_scc1 {ld}")
    A(f"s_sub_u32 {s(sSpin)}, {s(sSpin)}, 1")
    A(f"s_cmp_lg_u32 {s(sSpin)}, 0")
    A(f"s_cbranch_scc1 {lw}")
    A.label(ld)
    A(f"s_mov_b32 {s(sStep)}, 0")
    A(f"s_mov_b64 {s(sRdy,2)}, 0")
    if use_flags:
        wait_flag(A, 0)
        wait_flag(A, 1)
    add64(A, sKV2, sKV, 8192)
    for x in k_dma() + v_dma(): A(x)
    add64(A, sKV, sKV, 0x80000)
    add64(A, sKV2, sKV2, 0x80000)
    A(f"s_mov_b32 {s(sTag)}, 0")
    A(f"s_mov_b32 {s(sSlot)}, 0")
    A(f"s_cmp_ge_u32 {s(sW)}, 2"); A(f"s_cselect_b64 {s(sMB,2)}, -1, 1")
    A(f"s_cmp_eq_u32 {s(sW)}, 3"); A(f"s_cselect_b64 {s(sMC,2)}, -1, 1")
    for x in win_reads([('Q', 0), ('Q', 1), ('Q', 2)]): A(x)
    zero_acc(A)
    A(f"ds_read_b32 {v(PZ)}, {v(vL16)} offset:{L_MW}")
    A(f"s_waitcnt lgkmcnt(0)")
    for x in pre_step(): A(x)
    A(f"s_waitcnt vmcnt(0) lgkmcnt(0)")

def wait_flag(A, ahead):
    lw, ld = A.newlabel('T_fw'), A.newlabel('T_fd')
    A(f"s_add_u32 {s(sTmp)}, {s(sStep)}, {ahead}")
    A(f"s_min_u32 {s(sTmp)}, {s(sTmp)}, 63")
    A(f"s_bitcmp1_b64 {s(sRdy,2)}, {s(sTmp)}")
    A(f"s_cbranch_scc1 {ld}")
    A(f"s_mov_b32 {s(sSpin)}, {SPIN_MAX*4}")
    A(f"v_lshrrev_b32 {v(T0)}, 2, {v(vL16)}")
    A.label(lw)
    A(f"global_load_dword {v(T1)}, {v(T0)}, {s(sFKV,2)} sc1")
    A(f"s_waitcnt vmcnt(0)")
    A(f"v_cmp_ne_u32 {s(sRdy,2)}, 0, {v(T1)}")
    A(f"s_nop 3")
    A(f"s_bitcmp1_b64 {s(sRdy,2)}, {s(sTmp)}")
    A(f"s_cbranch_scc1 {ld}")
    A(f"s_sub_u32 {s(sSpin)}, {s(sSpin)}, 1")
    A(f"s_cmp_lg_u32 {s(sSpin)}, 0")
    A(f"s_cbranch_scc1 {lw}")
    A.label(ld)

def k_dma():
    return [f"s_mov_b32 m0, {s(sKXM0)}", "s_nop 0",
            f"global_load_lds_dwordx4 {v(vMemL)}, {s(sKV,2)} sc1",
            f"global_load_lds_dwordx4 {v(vMemL)}, {s(sKV,2)} offset:1024 sc1"]
def v_dma():
    return [f"s_add_u32 m0, {s(sKXM0)}, {L_VX-L_KX}", "s_nop 0",
            f"global_load_lds_dwordx4 {v(vMemL)}, {s(sKV2,2)} sc1",
            f"global_load_lds_dwordx4 {v(vMemL)}, {s(sKV2,2)} offset:1024 sc1"]

def zero_acc(A):
    for q in range(0, 24, 2): A(f"v_mov_b64 {v(AQ+q,2)}, 0")

XA = [MA + 12, MA + 20, MA + 28]
tZero, tProg, tMP, tC0, tC1 = MA + 8, MA + 9, MA + 10, MA + 16, MA + 17
tNeg = MA + 11
def pre_step():
    o = [f"v_xor_b32 {v(XA[jj])}, {2048*(jj+1)}, {v(vMemL)}" for jj in range(3)]
    o += [f"v_mov_b32 {v(tZero)}, 0", f"v_mov_b32 {v(tProg)}, {s(sStep)}",
          f"s_xor_b32 {s(sTmp)}, {s(sSlot)}, 0x4000",
          f"v_add_u32 {v(tMP)}, {s(sTmp)}, {v(PZ)}",
          f"v_lshrrev_b32 {v(PZ)}, 2, {v(vL16)}",
          f"v_mov_b32 {v(tNeg)}, -1"]
    return o

def team_loop(A, fast, use_flags, prof, endlabel, cfg):
    sc = "" if fast else " sc1"
    tag = 'F' if fast else 'S'
    ENTRY = f"T_entry_{tag}"
    def stamp(k):
        if prof and k in prof: A(f"s_memtime {s(sTM+2*prof.index(k),2)}")
    lg = lambda n: f"s_waitcnt lgkmcnt({n})"
    def seq(items):
        for x in items:
            if isinstance(x, (list, tuple)): seq(x)
            elif x and x.startswith('@'): stamp(x[1:])
            elif x and x.startswith('!'): A(x[1:], nochk=True)
            elif x and any(pat in x for pat in cfg.get('drop', [])): A("s_nop 0")
            elif x: A(x)
    def nops(n):
        while n > 0:
            A(f"s_nop {min(n,16)-1}"); n -= 16
    IB = MA + 24
    vMR = PZ + 1
    D1, D2 = cfg.get('depth1', 2), cfg.get('depth2', 2)
    def loads(dst, ad, b):
        A(f"global_load_dwordx4 {v(dst,4)}, {v(ad)}, {s(b,2)} sc1", nochk=True)
        A(f"global_load_dwordx4 {v(dst+4,4)}, {v(ad)}, {s(b,2)} offset:1024 sc1", nochk=True)
    zread = lambda r_: f"ds_read_b128 {v(r_,4)}, {v(vL16)} offset:{L_ZERO}"
    R2, HP = f"T_r2_{tag}", f"T_hp_{tag}"
    A.label(R2)
    A("s_mov_b64 exec, vcc")
    loads(MA, vMR, sMEMr)
    A("s_mov_b64 exec, -1")
    A(f"s_sub_u32 {s(sSpin)}, {s(sSpin)}, 1")
    A(f"s_cbranch_scc1 {ENTRY}")
    A.label(HP)
    A(f"s_waitcnt vmcnt({2*(D2-1)+1})")
    A(f"v_max3_u32 {v(tC0)}, {v(MA)}, {v(MA+1)}, {v(MA+2)}")
    A(f"v_max_u32 {v(tC0)}, {v(tC0)}, {v(MA+3)}")
    A(f"s_waitcnt vmcnt({2*(D2-1)})")
    A(f"v_max3_u32 {v(tC0)}, {v(tC0)}, {v(MA+4)}, {v(MA+5)}")
    A(f"v_max3_u32 {v(tC0)}, {v(tC0)}, {v(MA+6)}, {v(MA+7)}")
    A(f"v_cmp_eq_u32 vcc, -1, {v(tC0)}")
    A(f"s_cbranch_vccnz {R2}")
    A.label(ENTRY)
    own = [SM(acc+4*t, MA+4*j, frag(M, j, t)) for M, acc in (('Q', AQ), ('K', AK), ('V', AV)) for j in range(2) for t in range(2)]
    mr = []
    for jj in range(3):
        mr.append(f"ds_read_b128 {v(MA+8+8*jj,4)}, {v(XA[jj])}")
        mr.append(f"ds_read_b128 {v(MA+12+8*jj,4)}, {v(XA[jj])} offset:1024")
    vr = [f"ds_read_b128 {v(VX,4)}, {v(vMemL)} offset:{L_VX}", f"ds_read_b128 {v(VX+4,4)}, {v(vMemL)} offset:{L_VX+1024}"]
    seq([own[0], f"ds_write_b128 {v(vMemL)}, {v(MA,4)}", f"ds_write_b128 {v(vMemL)}, {v(MA+4,4)} offset:1024", '@0',
         own[1], own[2], f"global_store_dword {v(tMP)}, {v(tNeg)}, {s(sMEMw,2)}{sc}",
         own[3], own[4], f"global_store_dword {v(tZero)}, {v(tProg)}, {s(sPROG,2)} sc1",
         f"s_mov_b32 {s(sCnt2)}, {s(sSpin)}" if prof else None,
         own[5], '@a1', "s_waitcnt lgkmcnt(0)", "s_barrier", '@a2',
         mr[0], own[6], mr[1], own[7], mr[2], own[8], mr[3], own[9], mr[4], own[10], mr[5], own[11], vr[0]])
    KXR, QB = WIN + 16, WIN
    kxr = [f"ds_read_b128 {v(KXR+4*i,4)}, {v(vL16)} offset:{L_KX+1024*i}" for i in range(8)]
    qorder = [(j, t) for j in range(2, 6) for t in range(2)] + [(6, 0), (7, 0), (6, 1), (7, 1)]
    qs = [SM(AQ+4*t, MA+4*j, frag('Q', j, t)) for j, t in qorder]
    vd = v_dma()
    def post(acc, pk):
        return [f"v_add_f32 {v(acc)}, {v(acc)}, {v(acc+2)}", f"v_add_f32 {v(acc+1)}, {v(acc+1)}, {v(acc+3)}",
                f"v_cvt_pk_bf16_f32 {v(pk)}, {v(acc)}, {v(acc+1)}"]
    q0, q1 = post(AQ, T0), post(AQ + 4, T1)
    fl = f"!global_load_dword {v(vDum)}, {v(PZ)}, {s(sFKV,2)} sc1" if use_flags else None
    kw = [f"v_lshrrev_b32 {v(PZ+1)}, 1, {v(vMemL)}", f"v_bfe_u32 {v(PZ)}, {v(vL16)}, 9, 1", f"v_lshl_add_u32 {v(PZ+1)}, {v(PZ)}, 5, {v(PZ+1)}"]
    seq(['@b0', lg(6), qs[0], vr[1], qs[1], fl, lg(6), qs[2], kxr[0], kw[0], qs[3], kxr[1], lg(6), qs[4], kxr[2], kw[1], qs[5], kxr[3], vd[0], qs[6], kxr[4], kw[2], qs[7], lg(5),
         qs[8], kxr[5], qs[9], kxr[6], qs[10], kxr[7], qs[11], vd[2], q0[0]])
    nvm = 4 + (1 if use_flags else 0)
    ks = [SM(AK+4*t, MA+4*j, frag('K', j, t)) for t in range(2) for j in range(2, 8)]
    qr = []
    for y in range(4):
        off = L_Q + (64 * (y // 2) + 16 * (y % 2)) * 16
        qr += [f"ds_read_b64_tr_b16 {v(QB+4*y,2)}, {v(vQR)} offset:{off}", f"ds_read_b64_tr_b16 {v(QB+4*y+2,2)}, {v(vQR)} offset:{off+64}"]
    k0, k1 = post(AK, T2), post(AK + 4, T3)
    vs = [SM(AV+4*t, MA+4*j, frag('V', j, t)) for t in range(2) for j in range(2, 8)]
    kd = k_dma()
    seq(['@c0', ks[0], vd[3], q0[1], ks[1], q0[2], q1[0], ks[2], q1[1], q1[2],
         ks[3], f"ds_write2st64_b32 {v(vQW)}, {v(T0)}, {v(T1)} offset1:1", ks[4], f"s_waitcnt vmcnt({nvm})", ks[5], ks[6],
         ks[7], k0[0], ks[8], lg(0), "s_barrier", '@1', ks[9], qr[0], qr[1], ks[10], qr[2], qr[3], ks[11], qr[4], qr[5]])
    SX, KM = AQ, AK
    SMa, SMb = KXR, KXR + 4
    sx = [f"v_mfma_f32_16x16x32_bf16 {v(SX+4*kt,4)}, {v(KXR+16*kt+4*y,4)}, {v(QB+4*y,4)}, {v(SX+4*kt,4) if y else 0}" for kt in range(2) for y in range(4)]
    kr = []
    for al in range(2):
        kr += [f"ds_read_b64_tr_b16 {v(KM+4*al,2)}, {v(vKR)} offset:{L_K+2048*al}", f"ds_read_b64_tr_b16 {v(KM+4*al+2,2)}, {v(vKR)} offset:{L_K+2048*al+32}"]
    sm_ = [f"v_mfma_f32_16x16x32_bf16 {v(SMb if y%2 else SMa,4)}, {v(KM+4*(y//2),4)}, {v(QB+4*y,4)}, {v(SMb if y%2 else SMa,4) if y>=2 else 0}" for y in range(4)]
    ONES, PM = KXR + 8, KXR + 12
    ow = win_reads([('O', (1, 1)), ('O', (2, 1)), ('O', (2, 0)), ('O', (3, 0)), ('O', (3, 1))])
    ow11, ow21, ow20, ow30, ow31 = ow[0:4], ow[4:8], ow[8:12], ow[12:16], ow[16:20]
    seq(['@c1', vs[0], qr[6], qr[7], k0[1], vs[1], kd[0], k0[2], k1, lg(6),
         sx[0], f"ds_write_b64 {v(PZ+1)}, {v(T2,2)} offset:{L_K}", '@d1', lg(5), sx[1], kd[2], lg(3), sx[2],
         f"global_store_dwordx2 {v(PZ+1)}, {v(T2,2)}, {s(sKM,2)} offset:-4096 sc1", lg(1),
         sx[3], kd[3], sx[4], '@d2', lg(0), "s_barrier", '@d3',
         kr[0], kr[1], sx[5], kr[2], kr[3], sx[6], f"ds_read_b128 {v(ONES,4)}, {v(vL16)} offset:{L_ONES}", f"v_max3_f32 {v(T2)}, {v(SX)}, {v(SX+1)}, {v(SX+2)}",
         sx[7], zread(PM), vs[2], '@d4', lg(4), sm_[0], sm_[1], lg(2), f"v_max3_f32 {v(T2)}, {v(T2)}, {v(SX+3)}, {v(SX+4)}",
         sm_[2], ow11[0], f"v_max3_f32 {v(T3)}, {v(SX+5)}, {v(SX+6)}, {v(SX+7)}", sm_[3], ow11[1], f"v_max_f32 {v(T2)}, {v(T2)}, {v(T3)}", '@2'])
    v0, v1 = post(AV, AV + 2), post(AV + 4, AV + 3)
    seq([vs[3], ow11[2], vs[4], ow11[3],
         f"v_add_f32 {v(PZ)}, {v(SMa)}, {v(SMb+2)}", f"v_add_f32 {v(PZ+1)}, {v(SMa+1)}, {v(SMb+3)}",
         f"v_max3_f32 {v(T0)}, {v(T2)}, {v(PZ)}, {v(PZ+1)}", f"v_max3_f32 {v(T1)}, {v(T2)}, {v(PZ)}, {v(PZ+1)}",
         vs[5], ow21[0], ow21[1],
         f"v_permlane32_swap_b32 {v(T0)}, {v(T1)}",
         f"v_max_f32 {v(T2)}, {v(T0)}, {v(T1)}", f"v_max_f32 {v(T3)}, {v(T0)}, {v(T1)}",
         vs[6], ow21[2], ow21[3],
         f"v_permlane16_swap_b32 {v(T2)}, {v(T3)}",
         f"v_max_f32 {v(T0)}, {v(T2)}, {v(T3)}",
         f"v_mul_f32 {v(T0)}, {s(sC)}, {v(T0)}"])
    fm = lambda r_: f"v_fma_f32 {v(r_)}, {v(r_)}, {s(sC)}, -{v(T0)}"
    ex = lambda r_: f"v_exp_f32 {v(r_)}, {v(r_)}"
    seq(['@e1', vs[7], ow30[0], fm(SX), vs[8], ow30[1], fm(SX+1), vs[9], ow30[2], fm(SX+2), vs[10], ow30[3], fm(SX+3), vs[11], ow31[0], ow31[1]])
    seq([fm(SX+i) for i in range(4, 8)] + [fm(PZ), fm(PZ+1)])
    seq(['@e2', [ex(SX+i) for i in range(8)], '@e3'])
    OACC0, OACC1, LACC = AK, AK + 4, T0
    seq([ex(PZ), [f"v_cvt_pk_bf16_f32 {v(SX+i)}, {v(SX+2*i)}, {v(SX+2*i+1)}" for i in range(4)],
         ex(PZ+1), lg(14),
         f"v_mfma_f32_16x16x32_bf16 {v(LACC,4)}, {v(ONES,4)}, {v(SX,4)}, 0", f"v_cvt_pk_bf16_f32 {v(PM)}, {v(PZ)}, {v(PZ+1)}", v0[0],
         f"v_mfma_f32_16x16x32_bf16 {v(OACC0,4)}, {v(VX,4)}, {v(SX,4)}, 0", v0[1], v1[0],
         f"v_mfma_f32_16x16x16_bf16 {v(LACC,4)}, {v(ONES,2)}, {v(PM,2)}, {v(LACC,4)}", v1[1], v0[2],
         f"v_mfma_f32_16x16x32_bf16 {v(OACC1,4)}, {v(VX+4,4)}, {v(SX,4)}, 0", v1[2],
         f"v_cvt_pk_bf16_f32 {v(PM+3)}, {v(PZ)}, {v(PZ+1)}", f"s_cmp_eq_u32 {s(sStep)}, 63",
         f"v_mfma_f32_16x16x16_bf16 {v(OACC0,4)}, {v(AV+2,2)}, {v(PM,2)}, {v(OACC0,4)}", ow31[2], ow31[3], f"v_lshrrev_b32 {v(PZ)}, 1, {v(vMemL)}",
         f"v_mfma_f32_16x16x16_bf16 {v(OACC1,4)}, {v(AV+2,2)}, {v(PM+2,2)}, {v(OACC1,4)}",
         f"global_store_dwordx2 {v(PZ)}, {v(AV+2,2)}, {s(sKM,2)} sc1",
         f"s_cbranch_scc1 {endlabel}", '@e4',
         f"v_rcp_f32 {v(T0)}, {v(T0)}",
         [f"v_mov_b64 {v(AQ+q,2)}, 0" for q in range(0, 8, 2)], f"v_mov_b64 {v(AV,2)}, 0"])
    seq([f"v_cndmask_b32 {v(OACC0+i)}, {v(OACC0+i)}, {v(OACC1+i)}, {s(sHi,2)}" for i in range(4)])
    seq([f"v_pk_mul_f32 {v(OACC0+i,2)}, {v(OACC0+i,2)}, {v(T0,2)} op_sel_hi:[1,0]" for i in (0, 2)])
    seq([f"v_cvt_pk_bf16_f32 {v(T2)}, {v(OACC0)}, {v(OACC0+1)}", f"v_cvt_pk_bf16_f32 {v(T3)}, {v(OACC0+2)}, {v(OACC0+3)}",
         f"ds_write_b64 {v(vOW)}, {v(T2,2)} offset:{L_O}", '@3',
         [f"v_mov_b64 {v(AK+q,2)}, 0" for q in (0, 2, 4, 6, 10, 12, 14)], lg(0), "s_barrier"])
    OA = VX
    PA = [AQ + 4 * i for i in range(6)] + [WIN + 32, WIN + 36]
    os_ = lambda p, kb, hf: SM(PA[2*p+hf], OA+4*kb, frag('O', (p, kb), hf))
    t = [post(PA[T], T0 + T % 4) for T in range(8)]
    tg = lambda T: f"v_and_or_b32 {v(T0+T%4)}, {v(T0+T%4)}, -2, {s(sTag)}"
    st = lambda p: f"global_store_dwordx2 {v(vInbW)}, {v(T0+2*(p%2),2)}, {s(sINBw,2)} offset:{2048*p-4096}{sc}"
    pk = lambda T: [f"v_pk_add_f32 {v(PA[T],2)}, {v(PA[T],2)}, {v(PA[T]+2,2)}", t[T][2]]
    seq(['@f1', f"ds_read_b128 {v(OA,4)}, {v(vL16)} offset:{L_O}", f"ds_read_b128 {v(OA+4,4)}, {v(vL16)} offset:{L_O+1024}",
         ow20, lg(5),
         os_(0,0,0), '@f2', lg(4), os_(0,1,0), os_(0,0,1), os_(0,1,1), t[0][0],
         os_(1,0,0), t[0][1], t[0][2], os_(1,1,0), tg(0), t[1][0], os_(1,0,1), zread(PA[6]), t[1][1], t[1][2], os_(1,1,1), st(0), lg(1), t[2][0],
         os_(2,0,0), '@f3', zread(PA[7]), t[2][1], t[2][2], os_(2,1,0), tg(2), t[3][0], os_(2,0,1), t[3][1], t[3][2], os_(2,1,1), st(1), lg(0), t[4][0],
         os_(3,0,0), t[4][1], t[4][2], os_(3,1,0), tg(4), t[5][0], os_(3,0,1), t[5][1], t[5][2],
         os_(3,1,1), '@f4', st(2), t[6], tg(6), "s_nop 2", pk(7), st(3), '@4'])
    if prof and 'ack' in prof:
        A("s_waitcnt vmcnt(0)"); stamp('ack')
    SEL, RA = VX, VX + 4
    qw = win_reads([('Q', 0), ('Q', 1), ('Q', 2)])
    za = [f"v_mov_b64 {v(AQ+q,2)}, 0" for q in range(0, 24, 2)]
    seq([f"ds_read_b128 {v(SEL,4)}, {v(vL16)} offset:{L_SEL}", f"ds_read_b32 {v(PZ)}, {v(vL16)} offset:{L_MW}", za])
    A(f"s_add_u32 {s(sStep)}, {s(sStep)}, 1")
    A(f"s_add_u32 {s(sSlot)}, {s(sSlot)}, 0x2000")
    A(f"s_and_b32 {s(sSlot)}, {s(sSlot)}, 0x6000")
    if not cfg.get('samekv'):
        add64(A, sKV, sKV, 0x80000)
        add64(A, sKV2, sKV2, 0x80000)
    if not cfg.get('samekm'): add64(A, sKM, sKM, 0x40000)
    A(f"s_mov_b32 {s(sSpin)}, {SPIN_MAX}")
    A(f"s_waitcnt lgkmcnt(0)")
    A(f"v_add_u32 {v(T3)}, {s(sSlot)}, {v(PZ)}")
    A(f"v_add_u32 {v(vMR)}, {s(sSlot)}, {v(vMemL)}")
    if prof: A(f"s_mov_b32 {s(sCnt1)}, {SPIN_MAX}")
    stamp('h1a')
    nops(cfg.get('d1', 25))
    loads(IB, vMemL, sINBr)
    nq = cfg.get('nq', 6)
    seq(qw[:nq])
    for d in range(1, D1):
        nops(cfg.get('d2', 0))
        loads(IB, vMemL, sINBr)
    RP, ROK = [f"T_{x}_{tag}" for x in ('rp', 'rok')]
    stamp('h1c')
    A.label(RP)
    for u in range(cfg.get('unr', 3)):
        A(f"s_waitcnt vmcnt({2*(D1-1)+1})")
        A(f"v_bitop3_b32 {v(T0)}, {v(IB)}, {v(IB+2)}, {s(sTag)} bitop3:0x7e")
        A(f"v_mfma_f32_16x16x32_bf16 {v(RA,4)}, {v(SEL,4)}, {v(IB,4)}, 0")
        A(f"s_waitcnt vmcnt({2*(D1-1)})")
        if u == 0: stamp('h1e')
        A(f"v_bitop3_b32 {v(T1)}, {v(IB+4)}, {v(IB+6)}, {s(sTag)} bitop3:0x7e")
        A(f"v_mfma_f32_16x16x32_bf16 {v(RA,4)}, {v(SEL,4)}, {v(IB+4,4)}, {v(RA,4)}")
        A(f"v_bitop3_b32 {v(T0)}, {v(T0)}, {v(T1)}, 1 bitop3:0xa8")
        A(f"v_cmp_ne_u32 vcc, 0, {v(T0)}")
        A(f"s_cbranch_vccz {ROK}")
        A("s_mov_b64 exec, vcc")
        loads(IB, vMemL, sINBr)
        A("s_mov_b64 exec, -1")
        if prof: A(f"s_sub_u32 {s(sCnt1)}, {s(sCnt1)}, 1")
    A(f"s_sub_u32 {s(sSpin)}, {s(sSpin)}, 1")
    A(f"s_cbranch_scc0 {RP}")
    A.label(ROK)
    A(f"s_nop {cfg.get('rnop', 4)}")
    dpp = lambda r_, n: f"v_add_f32_dpp {v(r_)}, {v(r_)}, {v(r_)} row_ror:{n} row_mask:0xf bank_mask:0xf"
    seq([dpp(RA, 4), dpp(RA+1, 4), "s_nop 0", dpp(RA, 8), dpp(RA+1, 8),
         f"v_cvt_pk_bf16_f32 {v(RA+2)}, {v(RA)}, {v(RA+1)}", f"v_min_u32 {v(RA+2)}, -2, {v(RA+2)}"])
    A(f"global_store_dword {v(T3)}, {v(RA+2)}, {s(sMEMw,2)}{sc}")
    stamp(5)
    seq(qw[nq:])
    A(f"s_xor_b32 {s(sTag)}, {s(sTag)}, 1")
    if use_flags:
        A(f"v_cmp_ne_u32 {s(sRdy,2)}, 0, {v(vDum)}")
        A(f"s_nop 3")
        wait_flag(A, 1)
    A(f"s_mov_b32 {s(sSpin)}, {SPIN_MAX}")
    if prof:
        A(f"s_waitcnt lgkmcnt(0)")
        for k in range(6): A(f"v_writelane_b32 {v(T2)}, {s(sTM+2*k)}, {k}")
        A(f"v_writelane_b32 {v(T2)}, {s(sCnt1)}, 6")
        A(f"v_writelane_b32 {v(T2)}, {s(sCnt2)}, 7")
        A(f"v_lshrrev_b32 {v(T1)}, 2, {v(vL16)}")
        A(f"s_mov_b64 exec, 0xff")
        A(f"global_store_dword {v(T1)}, {v(T2)}, {s(sPROF,2)}")
        A(f"s_mov_b64 exec, -1")
        add64(A, sPROF, sPROF, 32)
    else:
        nops(15)
    nops(cfg.get('d4', 30))
    loads(MA, vMR, sMEMr)
    A(f"s_waitcnt vmcnt({4 if prof else 3}) lgkmcnt(0)")
    seq(pre_step())
    for d in range(1, D2):
        nops(cfg.get('d5', 8) + (10 if d > 1 else 0))
        loads(MA, vMR, sMEMr)
    stamp('h2b')
    A(f"s_branch {HP}")

def team(A, use_flags=False, prof=False, force_slow=False, cfg={}):
    if prof: prof = [str(x) if str(x) in ('0','1','2','3','4') else x for x in prof]
    team_prologue(A, use_flags, prof)
    end = "T_end"
    if not force_slow:
        A(f"s_cmp_lg_u64 {s(sMode,2)}, 0")
        A(f"s_cbranch_scc1 T_entry_F")
    A(f"s_branch T_entry_S")
    if not force_slow:
        team_loop(A, True, use_flags, prof, end, cfg)
    team_loop(A, False, use_flags, prof, end, cfg)
    A.label(end)
    A(f"s_waitcnt vmcnt(0)")
    A(f"v_mov_b32 {v(PZ)}, 0")
    A(f"v_mov_b32 {v(PZ+1)}, 64")
    A(f"global_store_dword {v(PZ)}, {v(PZ+1)}, {s(sPROG,2)} sc1")
    A(f"s_endpgm")
```

```python
from common import *
L_XN, L_QK, L_KMS, L_BIAS = 0, 32768, 65536, 69632
vL16, vWL, vKst, vVst, vKmR, vVmL = 0, 1, 2, 3, 4, 5
T = 8
XF, QA, KA_, VA, VPC, VPN, KF = 16, 48, 64, 80, 96, 104, 112
WQ, WK, WV = 256, 384, 128
sW, sH, sCur, sNxt, sTmp, sTmp2, sSpin, sC, sBuf = 3, 4, 5, 6, 7, 8, 9, 10, 11
sWS, sXN, sKV, sFKV, sPROG, sKM, sO, sA, sB = 12, 14, 16, 18, 20, 22, 24, 26, 28
SRD, sPTR, sLB, sOff, sCol, sStride, sWM0 = 32, 36, 44, 45, 46, 47, 48

def worker(A, NW, use_flags, sI=None):
    L, tb = 16, 17
    ln = Lane(A, L, tb)
    A(f"v_lshrrev_b32 {v(T)}, 6, v0")
    A(f"s_load_dwordx4 {s(sPTR,4)}, s[0:1], {KA['Wq']}")
    A(f"s_load_dwordx2 {s(sPTR+4,2)}, s[0:1], {KA['Wv']}")
    A(f"s_load_dwordx2 {s(sWS,2)}, s[0:1], {KA['ws']}")
    A(f"v_readfirstlane_b32 {s(sW)}, {v(T)}")
    A(f"v_and_b32 {v(L)}, 63, v0")
    A(f"v_lshlrev_b32 {v(vL16)}, 4, {v(L)}")
    A(f"s_lshl_b32 {s(sLB)}, {s(sW)}, 15")
    A(f"s_mov_b32 {s(sStride)}, 8192")
    vSrc, vTr = 18, 19
    weight_lane_consts(A, ln, vSrc, vTr, sLB, sStride, 20)
    A(f"s_lshl_b32 {s(sTmp)}, {s(sW)}, 11")
    A(f"v_add_u32 {v(vWL)}, {s(sTmp)}, {v(vL16)}")
    ln.acc(vKst, [(3, 1, 12), (4, 1, 7), (0, 3, 4), (5, 1, 8)])
    A(f"s_lshr_b32 {s(sTmp)}, {s(sW)}, 1"); A(f"s_lshl_b32 {s(sTmp)}, {s(sTmp)}, 11")
    A(f"s_and_b32 {s(sTmp2)}, {s(sW)}, 1"); A(f"s_lshl_b32 {s(sTmp2)}, {s(sTmp2)}, 9")
    A(f"s_add_u32 {s(sTmp)}, {s(sTmp)}, {s(sTmp2)}")
    A(f"v_add_u32 {v(vKst)}, {s(sTmp)}, {v(vKst)}")
    ln.acc(vVst, [(4, 1, 10), (2, 1, 7), (3, 1, 6), (0, 2, 4), (5, 1, 8)])
    A(f"s_lshl_b32 {s(sTmp)}, {s(sW)}, 11"); A(f"s_add_u32 {s(sTmp)}, {s(sTmp)}, 8192")
    A(f"v_add_u32 {v(vVst)}, {s(sTmp)}, {v(vVst)}")
    ln.acc(vKmR, [(0, 2, 7), (1, 1, 5), (5, 1, 6), (2, 2, 3)])
    ln.acc(vVmL, [(5, 1, 7), (2, 1, 6), (3, 1, 5), (0, 2, 3), (4, 1, 2)])
    A(f"s_lshl_b32 {s(sTmp)}, {s(sW)}, 10"); A(f"s_add_u32 {s(sTmp)}, {s(sTmp)}, 4096")
    A(f"v_add_u32 {v(vVmL)}, {s(sTmp)}, {v(vVmL)}")
    A(f"s_mov_b32 {s(sC)}, 0x3e0293ee")
    A(f"s_waitcnt lgkmcnt(0)")
    def base(dst, terms, imm):
        A(f"s_mov_b32 {s(sTmp2)}, {imm}")
        for r_, sh in terms:
            A(f"s_lshl_b32 {s(sTmp)}, {s(r_)}, {sh}")
            A(f"s_add_u32 {s(sTmp2)}, {s(sTmp2)}, {s(sTmp)}")
        add64(A, dst, sWS, s(sTmp2))
    base(sXN, [(sW, 13)], WS_XN)
    base(sKV, [(sH, 14)], WS_KV)
    base(sFKV, [(sH, 8)], FL_KV)
    base(sPROG, [(sH, 6)], FL_PROG)
    base(sKM, [(sH, 13)], WS_KM)
    base(sO, [(sH, 13)], WS_O)
    A(f"s_mov_b32 {s(SRD+2)}, 0x400000"); A(f"s_mov_b32 {s(SRD+3)}, 0x20000")
    A(f"s_lshl_b32 {s(sCol)}, {s(sH)}, 8"); A(f"s_lshl_b32 {s(sTmp)}, {s(sW)}, 6"); A(f"s_add_u32 {s(sCol)}, {s(sCol)}, {s(sTmp)}")
    units = []
    for mi, dst in ((1, WK), (2, WV), (0, WQ)):
        def setup(mi=mi):
            A(f"s_mov_b32 {s(SRD)}, {s(sPTR+2*mi)}"); A(f"s_and_b32 {s(SRD+1)}, {s(sPTR+2*mi+1)}, 0xffff")
        for u in range(8):
            units.append((setup if u == 0 else None, (lambda m, u=u: (sCol, (64*u + 16*m) * 8192)), dst + 16*u, 4))
    load_weight_units(A, units, vSrc, vTr, sLB, SRD, sOff, sTmp)
    A(f"s_barrier")
    A(f"v_and_b32 {v(20)}, 31, {v(L)}")
    A(f"v_lshrrev_b32 {v(21)}, 5, {v(L)}")
    A(f"v_lshlrev_b32 {v(21)}, 2, {v(21)}")
    A(f"v_sub_u32 {v(20)}, {v(20)}, {v(21)}")
    A(f"v_mov_b32 {v(21)}, 0xf149f2ca")
    for j in range(4):
        for i in range(4):
            A(f"v_cmp_gt_i32 vcc, {8*j+i}, {v(20)}")
            A(f"s_nop 1")
            A(f"v_cndmask_b32 {v(24+i)}, 0, {v(21)}, vcc")
        A(f"v_add_u32 {v(22)}, {L_BIAS + 1024*j}, {v(vL16)}")
        A(f"ds_write_b128 {v(22)}, {v(24,4)}")
    A(f"s_lshl_b32 {s(sWM0)}, {s(sW)}, 13")
    def xn_dma(sSeg):
        A(f"s_lshl_b32 {s(sTmp)}, {s(sSeg)}, 15")
        add64(A, sA, sXN, s(sTmp))
        add64(A, sB, sA, 4096)
        for hfi, b in enumerate((sA, sB)):
            A(f"s_add_u32 m0, {s(sWM0)}, {L_XN + 4096*hfi}")
            A(f"s_nop 0")
            for q in range(4):
                A(f"global_load_lds_dwordx4 {v(vL16)}, {s(b,2)} offset:{1024*q} sc1")
    xn_dma(sNxt)
    A(f"s_mov_b32 {s(sCur)}, -1")
    A(f"s_mov_b32 {s(sBuf)}, {L_QK}")
    LOOP, NOG, NOA, END = "W_loop", "W_nogemm", "W_noatt", "W_end"
    A.label(LOOP)
    A(f"s_waitcnt vmcnt(0) lgkmcnt(0)")
    A(f"s_barrier")
    A(f"s_cmp_ge_u32 {s(sNxt)}, 64")
    A(f"s_cbranch_scc1 {NOG}")
    rd = lambda k: f"ds_read_b128 {v(XF+4*(k%8),4)}, {v(vL16)} offset:{L_XN+1024*k}"
    for k in range(6): A(rd(k))
    for k in range(32):
        x = v(XF + 4 * (k % 8), 4)
        A(f"s_waitcnt lgkmcnt({min(5, 31-k)})")
        A(f"v_mfma_f32_32x32x16_bf16 {v(KA_,16)}, {R(WK+4*k,4)}, {x}, {v(KA_,16) if k else 0}")
        if k + 6 < 32: A(rd(k + 6))
        A(f"v_mfma_f32_32x32x16_bf16 {v(VA,16)}, {x}, {R(WV+4*k,4)}, {v(VA,16) if k else 0}")
        A(f"v_mfma_f32_32x32x16_bf16 {v(QA,16)}, {R(WQ+4*k,4)}, {x}, {v(QA,16) if k else 0}")
    A(f"s_lshl_b32 {s(sTmp)}, {s(sNxt)}, 19")
    add64(A, sA, sKV, s(sTmp))
    A(f"v_add_u32 {v(T)}, {s(sBuf)}, {v(vWL)}")
    for i in range(8): A(f"v_cvt_pk_bf16_f32 {v(XF+i)}, {v(KA_+2*i)}, {v(KA_+2*i+1)}")
    A(f"global_store_dwordx4 {v(vKst)}, {v(XF,4)}, {s(sA,2)} sc1")
    A(f"global_store_dwordx4 {v(vKst)}, {v(XF+4,4)}, {s(sA,2)} offset:1024 sc1")
    A(f"ds_write_b128 {v(T)}, {v(XF,4)} offset:8192")
    A(f"ds_write_b128 {v(T)}, {v(XF+4,4)} offset:9216")
    for i in range(8): A(f"v_cvt_pk_bf16_f32 {v(VPN+i)}, {v(VA+2*i)}, {v(VA+2*i+1)}")
    A(f"global_store_dwordx4 {v(vVst)}, {v(VPN,4)}, {s(sA,2)} sc1")
    A(f"global_store_dwordx4 {v(vVst)}, {v(VPN+4,4)}, {s(sA,2)} offset:512 sc1")
    for i in range(8): A(f"v_cvt_pk_bf16_f32 {v(XF+8+i)}, {v(QA+2*i)}, {v(QA+2*i+1)}")
    A(f"ds_write_b128 {v(T)}, {v(XF+8,4)}")
    A(f"ds_write_b128 {v(T)}, {v(XF+12,4)} offset:1024")
    A(f"s_waitcnt vmcnt(0) lgkmcnt(0)")
    A(f"s_barrier")
    if use_flags:
        nf = A.newlabel('W_nf')
        A(f"s_cmp_lg_u32 {s(sW)}, 0"); A(f"s_cbranch_scc1 {nf}")
        A(f"s_lshl_b32 {s(sTmp)}, {s(sNxt)}, 2")
        A(f"v_mov_b32 {v(T)}, {s(sTmp)}"); A(f"v_mov_b32 {v(T+1)}, 1")
        A(f"global_store_dword {v(T)}, {v(T+1)}, {s(sFKV,2)} sc1")
        A.label(nf)
    nx = A.newlabel('W_nx')
    A(f"s_add_u32 {s(sTmp2)}, {s(sNxt)}, {NW}")
    A(f"s_cmp_ge_u32 {s(sTmp2)}, 64"); A(f"s_cbranch_scc1 {nx}")
    xn_dma(sTmp2)
    A.label(nx)
    A.label(NOG)
    A(f"s_xor_b32 {s(sBuf)}, {s(sBuf)}, 16384")
    A(f"s_cmp_lt_i32 {s(sCur)}, 0")
    A(f"s_cbranch_scc1 {NOA}")
    SA, MA_, MB_ = QA, KA_, VA
    A(f"v_add_u32 {v(T)}, {s(sBuf)}, {v(vL16)}")
    A(f"v_add_u32 {v(T+1)}, {L_BIAS}, {v(vL16)}")
    for j in range(4): A(f"ds_read_b128 {v(SA+4*j,4)}, {v(T+1)} offset:{1024*j}")
    for k in range(8): A(f"ds_read_b128 {v(XF+4*k,4)}, {v(T)} offset:{1024*k}")
    A(f"s_waitcnt lgkmcnt(8)")
    for k in range(8): A(f"ds_read_b128 {v(MA_+4*k,4)}, {v(T)} offset:{8192+1024*k}")
    for k in range(8):
        A(f"s_waitcnt lgkmcnt({7-k})")
        A(f"v_mfma_f32_32x32x16_bf16 {v(SA,16)}, {v(MA_+4*k,4)}, {v(XF+4*k,4)}, {v(SA,16)}")
    if use_flags:
        pw, pd = A.newlabel('W_pw'), A.newlabel('W_pd')
        A(f"s_mov_b32 {s(sSpin)}, {SPIN_MAX*8}")
        A(f"v_mov_b32 {v(T)}, 0")
        A.label(pw)
        A(f"global_load_dwordx4 {v(T+4,4)}, {v(T)}, {s(sPROG,2)} sc1")
        A(f"s_waitcnt vmcnt(0)")
        A(f"v_min3_u32 {v(T+4)}, {v(T+4)}, {v(T+5)}, {v(T+6)}")
        A(f"v_min_u32 {v(T+4)}, {v(T+4)}, {v(T+7)}")
        A(f"v_cmp_lt_u32 vcc, {s(sCur)}, {v(T+4)}")
        A(f"s_cbranch_vccnz {pd}")
        A(f"s_sleep 2")
        A(f"s_sub_u32 {s(sSpin)}, {s(sSpin)}, 1")
        A(f"s_cbranch_scc0 {pw}")
        A.label(pd)
    A(f"s_lshl_b32 {s(sTmp)}, {s(sCur)}, 18")
    add64(A, sA, sKM, s(sTmp))
    add64(A, sB, sO, s(sTmp))
    A(f"s_lshr_b32 {s(sTmp)}, {s(sWM0)}, 3")
    A(f"s_add_u32 m0, {s(sTmp)}, {L_KMS}")
    A(f"v_add_u32 {v(T)}, {s(sTmp)}, {v(vL16)}")
    VM = T + 4
    A(f"global_load_lds_dwordx4 {v(T)}, {s(sA,2)} sc1")
    A(f"global_load_dword {v(VM)}, {v(vVmL)}, {s(sA,2)} sc1")
    A(f"global_load_dword {v(VM+1)}, {v(vVmL)}, {s(sA,2)} offset:256 sc1")
    A(f"v_mov_b64 {v(VM+2,2)}, 0")
    A(f"v_add_u32 {v(T+1)}, {L_KMS}, {v(vKmR)}")
    A(f"v_max3_f32 {v(T+2)}, {v(SA)}, {v(SA+1)}, {v(SA+2)}")
    for i in range(3, 15, 2): A(f"v_max3_f32 {v(T+2)}, {v(T+2)}, {v(SA+i)}, {v(SA+i+1)}")
    A(f"v_max_f32 {v(T+2)}, {v(T+2)}, {v(SA+15)}")
    A(f"s_waitcnt vmcnt(0)")
    A(f"s_barrier")
    for w_ in range(4):
        A(f"ds_read_b64_tr_b16 {v(KF+4*w_,2)}, {v(T+1)} offset:{1024*w_}")
        A(f"ds_read_b64_tr_b16 {v(KF+4*w_+2,2)}, {v(T+1)} offset:{1024*w_+32}")
    for w_ in range(4):
        A(f"s_waitcnt lgkmcnt({6-2*w_})")
        A(f"v_mfma_f32_32x32x16_bf16 {v(MA_,16)}, {v(KF+4*w_,4)}, {v(XF+8*w_,4)}, {v(MA_,16) if w_ else 0}")
        A(f"v_mfma_f32_32x32x16_bf16 {v(MB_,16)}, {v(KF+4*w_,4)}, {v(XF+8*w_+4,4)}, {v(MB_,16) if w_ else 0}")
    A(f"s_nop 11")
    SM = KF
    for q, (ra, rb) in enumerate(((0, 2), (1, 3), (4, 6), (5, 7))):
        A(f"v_add_f32 {v(SM+q)}, {v(MA_+ra)}, {v(MB_+rb)}")
    A(f"v_max3_f32 {v(T+2)}, {v(T+2)}, {v(SM)}, {v(SM+1)}")
    A(f"v_max3_f32 {v(T+2)}, {v(T+2)}, {v(SM+2)}, {v(SM+3)}")
    A(f"v_mov_b32 {v(T+3)}, {v(T+2)}")
    A(f"s_nop 1")
    A(f"v_permlane32_swap_b32 {v(T+2)}, {v(T+3)}")
    A(f"v_max_f32 {v(T+2)}, {v(T+2)}, {v(T+3)}")
    A(f"v_mul_f32 {v(T+2)}, {s(sC)}, {v(T+2)}")
    regs = [SA + i for i in range(16)] + [SM + i for i in range(4)]
    for r_ in regs: A(f"v_fma_f32 {v(r_)}, {v(r_)}, {s(sC)}, -{v(T+2)}")
    for r_ in regs: A(f"v_exp_f32 {v(r_)}, {v(r_)}")
    P, PMm, OA_ = XF, XF + 8, MA_
    for i in range(8): A(f"v_cvt_pk_bf16_f32 {v(P+i)}, {v(SA+2*i)}, {v(SA+2*i+1)}")
    A(f"v_cvt_pk_bf16_f32 {v(PMm)}, {v(SM)}, {v(SM+1)}")
    A(f"v_cvt_pk_bf16_f32 {v(PMm+1)}, {v(SM+2)}, {v(SM+3)}")
    A(f"v_mov_b64 {v(PMm+2,2)}, 0")
    A(f"v_mfma_f32_32x32x16_bf16 {v(OA_,16)}, {v(VPC,4)}, {v(P,4)}, 0")
    A(f"v_add_f32 {v(T+2)}, {v(regs[0])}, {v(regs[1])}")
    A(f"v_add_f32 {v(T+3)}, {v(regs[2])}, {v(regs[3])}")
    A(f"v_mfma_f32_32x32x16_bf16 {v(OA_,16)}, {v(VPC+4,4)}, {v(P+4,4)}, {v(OA_,16)}")
    for i in range(4, 12): A(f"v_add_f32 {v(T+2+i%2)}, {v(T+2+i%2)}, {v(regs[i])}")
    A(f"v_mfma_f32_32x32x16_bf16 {v(OA_,16)}, {v(VM,4)}, {v(PMm,4)}, {v(OA_,16)}")
    for i in range(12, 20): A(f"v_add_f32 {v(T+2+i%2)}, {v(T+2+i%2)}, {v(regs[i])}")
    A(f"v_add_f32 {v(T+2)}, {v(T+2)}, {v(T+3)}")
    A(f"v_mov_b32 {v(T+3)}, {v(T+2)}")
    A(f"s_nop 1")
    A(f"v_permlane32_swap_b32 {v(T+2)}, {v(T+3)}")
    A(f"v_add_f32 {v(T+2)}, {v(T+2)}, {v(T+3)}")
    A(f"v_rcp_f32 {v(T+2)}, {v(T+2)}")
    A(f"s_nop 0")
    for i in range(16): A(f"v_mul_f32 {v(OA_+i)}, {v(OA_+i)}, {v(T+2)}")
    for i in range(8): A(f"v_cvt_pk_bf16_f32 {v(P+i)}, {v(OA_+2*i)}, {v(OA_+2*i+1)}")
    A(f"global_store_dwordx4 {v(vWL)}, {v(P,4)}, {s(sB,2)} sc1")
    A(f"global_store_dwordx4 {v(vWL)}, {v(P+4,4)}, {s(sB,2)} offset:1024 sc1")
    A.label(NOA)
    for i in range(0, 8, 2): A(f"v_mov_b64 {v(VPC+i,2)}, {v(VPN+i,2)}")
    A(f"s_mov_b32 {s(sCur)}, {s(sNxt)}")
    A(f"s_add_u32 {s(sNxt)}, {s(sNxt)}, {NW}")
    A(f"s_cmp_lt_u32 {s(sCur)}, 64")
    A(f"s_cbranch_scc1 {LOOP}")
    A(f"s_endpgm")
```

```python
import sys
from common import *
import team, worker, ln, post

HEADER = open('cdna_kernels/' + NAME + '.s.ref').read().split('; Override launch geometry')[0]

def kernel_desc(name, vgpr, sgpr, accum):
    return f""".amdhsa_kernel {name}
  .amdhsa_next_free_vgpr {vgpr}
  .amdhsa_next_free_sgpr {sgpr}
  .amdhsa_accum_offset {accum}
  .amdhsa_group_segment_fixed_size 0
  .amdhsa_kernarg_size 120
  .amdhsa_user_sgpr_count 2
  .amdhsa_user_sgpr_kernarg_segment_ptr 1
  .amdhsa_system_sgpr_workgroup_id_x 1
  .amdhsa_float_denorm_mode_32 3
.end_amdhsa_kernel
"""

def build(kernels, launches):
    out = HEADER
    for n, g, b, l in launches:
        out += f"; @launch kernel={n} grid=({g},1,1) block=({b},1,1) lds={l}\n"
    out += '.amdgcn_target "amdgcn-amd-amdhsa--gfx950"\n.text\n'
    for n, A, *_ in kernels:
        out += f".globl {n}\n.p2align 8\n.type {n},@function\n{n}:\n" + A.text()
    out += '.section .rodata,"a"\n'
    for n, A, vg, sg, ac in kernels:
        out += ".p2align 6\n" + kernel_desc(n, vg, sg, ac)
    return out

def team_only(prof=False, force_slow=False, cfg={}):
    A = Asm()
    A("s_and_b32 s3, s2, 7")
    A("s_cmp_lg_u32 s3, 0")
    A("s_cbranch_scc1 K_exit")
    A("s_cmp_ge_u32 s2, 256")
    A("s_cbranch_scc1 K_exit")
    team.team(A, use_flags=False, prof=prof, force_slow=force_slow, cfg=cfg)
    A.label("K_exit")
    A("s_endpgm")
    errs = A.check(verbose=not prof)
    return build([("team_kernel", A, 512, 96, 256)], [("team_kernel", 256, 256, 163840)])

def ln1():
    A = Asm(); ln.ln1_kernel(A); A.check()
    return ("ln1_kernel", A, 64, 32, 64), ("ln1_kernel", 128, 256, 0)

def mega(use_team=True, use_workers=True, flags=True, NW=7, prof=False, cfg={}):
    A = Asm()
    A("s_cmp_ge_u32 s2, 256"); A("s_cbranch_scc1 K_exit")
    A("s_and_b32 s3, s2, 7")
    A("s_cmp_lg_u32 s3, 0")
    A("s_cbranch_scc1 K_work")
    if use_team: team.team(A, use_flags=flags, prof=prof, cfg=cfg)
    A.label("K_exit")
    A("s_endpgm")
    A.label("K_work")
    if use_workers:
        A("s_sub_u32 s3, s3, 1"); A("s_lshl_b32 s3, s3, 5"); A("s_lshr_b32 s5, s2, 3"); A("s_add_u32 s3, s3, s5")
        A(f"s_cmp_ge_u32 s3, {32*NW}"); A("s_cbranch_scc1 K_exit2")
        A(f"s_mul_i32 s4, s3, {(65536 + NW - 1)//NW}"); A("s_lshr_b32 s4, s4, 16")
        A(f"s_mul_i32 s5, s4, {NW}"); A("s_sub_u32 s6, s3, s5")
        worker.worker(A, NW, flags)
        A.label("K_exit2")
    A("s_endpgm")
    A.check(verbose=not prof)
    return ("mega_kernel", A, 512, 96, 256), ("mega_kernel", 256, 256, 163840)

def solo(name, fn, nrole, nrep, lds=163840, vg=512, acc=256):
    A = Asm()
    A(f"s_cmp_ge_u32 s2, {nrole*nrep}"); A(f"s_cbranch_scc1 {name}_exit")
    A(f"s_mul_i32 s5, s2, {(65536 + nrole - 1)//nrole}"); A("s_lshr_b32 s5, s5, 16")
    A(f"s_mul_i32 s4, s5, {nrole}"); A("s_sub_u32 s4, s2, s4")
    fn(A)
    A.label(f"{name}_exit"); A("s_endpgm")
    A.check()
    return (name + "_kernel", A, vg, 96, acc), (name + "_kernel", nrole * nrep, 256, lds)

def t1(cfg={}):
    return assemble([ln1(), mega(cfg=cfg),
        solo("r3", lambda A: post.r3(A, 16, False), 16, 16),
        solo("r4", lambda A: post.r4(A, 64, False), 2, 64, 0, 128, 128),
        solo("r5", lambda A: post.r5(A, 22, False), 11, 22),
        solo("r5b", lambda A: post.r5b(A, 64, False), 2, 64, 0, 128, 128),
        solo("r6", lambda A: post.r6(A, False), 32, 1),
        solo("r7", lambda A: post.r7(A, 64, False), 4, 64)])

def assemble(parts):
    return build([p[0] for p in parts], [p[1] for p in parts])

if __name__ == '__main__':
    mode = sys.argv[1]
    if mode == 'team':
        open(sys.argv[2], 'w').write(team_only(prof=("all" if "prof" in sys.argv else False), force_slow='slow' in sys.argv))
    if mode == 'mega':
        open(sys.argv[2], 'w').write(assemble([ln1(), mega()]))
    if mode == 't1':
        open(sys.argv[2], 'w').write(t1({'d1': 20, 'd4': 0}))
```

```python
from common import *
import ln
sW, sRole, sSeg, sTmp, sTmp2, sSpin = 3, 4, 5, 6, 7, 8
sWS, sA, sB, sIn, sOut, sFl, sMask, sP1, sP2, sGot = 10, 12, 14, 16, 18, 20, 22, 24, 26, 28
SRD, sLB, sOff, sCol, sStride, sBuf, sNx, sFo = 32, 36, 37, 38, 39, 40, 41, 42
vL16, vL4, T = 0, 1, 8
L, tb = 16, 17

def start(A, ptrs):
    A(f"v_lshrrev_b32 {v(T)}, 6, v0")
    A(f"s_load_dwordx2 {s(sWS,2)}, s[0:1], {KA['ws']}")
    for r_, k in ptrs: A(f"s_load_dwordx2 {s(r_,2)}, s[0:1], {KA[k]}")
    A(f"v_readfirstlane_b32 {s(sW)}, {v(T)}")
    A(f"v_and_b32 {v(L)}, 63, v0")
    A(f"v_lshlrev_b32 {v(vL16)}, 4, {v(L)}")
    A(f"v_lshlrev_b32 {v(vL4)}, 2, {v(L)}")
    A(f"s_lshl_b32 {s(sLB)}, {s(sW)}, 15")
    return Lane(A, L, tb)

def base(A, dst, terms, imm, src=sWS):
    A(f"s_mov_b32 {s(sTmp2)}, {imm}")
    for r_, mul in terms:
        A(f"s_mul_i32 {s(sTmp)}, {s(r_)}, {mul}")
        A(f"s_add_u32 {s(sTmp2)}, {s(sTmp2)}, {s(sTmp)}")
    add64(A, dst, src, s(sTmp2))

def seg_addr(A, dst, src, sS, stride):
    A(f"s_mul_i32 {s(sTmp)}, {s(sS)}, {stride}")
    add64(A, dst, src, s(sTmp))

def wait_flags(A, sS, stride=256, sleep=1):
    lw, ld = A.newlabel('P_w'), A.newlabel('P_d')
    seg_addr(A, sB, sFl, sS, stride)
    A(f"s_mov_b32 {s(sSpin)}, {SPIN_MAX*8}")
    A.label(lw)
    A(f"global_load_dword {v(T)}, {v(vL4)}, {s(sB,2)} sc1")
    A(f"s_waitcnt vmcnt(0)")
    A(f"v_cmp_ne_u32 {s(sGot,2)}, 0, {v(T)}")
    A(f"s_nop 3")
    A(f"s_andn2_b64 {s(sGot,2)}, {s(sMask,2)}, {s(sGot,2)}")
    A(f"s_cbranch_scc0 {ld}")
    if sleep: A(f"s_sleep {sleep}")
    A(f"s_sub_u32 {s(sSpin)}, {s(sSpin)}, 1")
    A(f"s_cbranch_scc0 {lw}")
    A.label(ld)

def signal(A, sS, stride=256):
    nf = A.newlabel('P_nf')
    A(f"s_cmp_lg_u32 {s(sW)}, 0"); A(f"s_cbranch_scc1 {nf}")
    A(f"s_mul_i32 {s(sTmp)}, {s(sS)}, {stride}")
    A(f"s_add_u32 {s(sTmp)}, {s(sTmp)}, {s(sFo)}")
    A(f"v_mov_b32 {v(T)}, {s(sTmp)}"); A(f"v_mov_b32 {v(T+1)}, 1")
    A(f"global_store_dword {v(T)}, {v(T+1)}, {s(sFl,2)} sc1")
    A.label(nf)

def srd(A, ptr, nbytes):
    A(f"s_mov_b32 {s(SRD)}, {s(ptr)}"); A(f"s_and_b32 {s(SRD+1)}, {s(ptr+1)}, 0xffff")
    A(f"s_mov_b32 {s(SRD+2)}, {nbytes}"); A(f"s_mov_b32 {s(SRD+3)}, 0x20000")

def ws_weights(A, lane, stride, nk, W):
    A(f"s_mov_b32 {s(sStride)}, {stride}")
    weight_lane_consts(A, lane, 18, 19, sLB, sStride, 20)
    units = []
    for u in range((nk + 3) // 4):
        units.append((None, (lambda m, u=u: (sCol, (64*u + 16*m) * stride)), W + 16*u, min(4, nk - 4*u)))
    load_weight_units(A, units, 18, 19, sLB, SRD, sOff, sTmp)
    A(f"s_barrier")

def act_dma(A, nk, sS, segstride):
    seg_addr(A, sA, sIn, sS, segstride)
    A(f"s_lshl_b32 {s(sTmp2)}, {s(sW)}, 10")
    A(f"s_add_u32 {s(sTmp2)}, {s(sTmp2)}, {s(sBuf)}")
    n = (nk + 3) // 4
    skip = None
    for q in range(n):
        if 4 * q + 3 >= nk:
            skip = A.newlabel('P_sk')
            A(f"s_cmp_ge_u32 {s(sW)}, {nk - 4*q}"); A(f"s_cbranch_scc1 {skip}")
        A(f"s_add_u32 m0, {s(sTmp2)}, {4096*q}")
        if q: add64(A, sA, sA, 4096)
        else: A("s_nop 0")
        A(f"global_load_lds_dwordx4 {v(vL16)}, {s(sA,2)} sc1")
    if skip: A.label(skip)

def gemm_loop(A, name, nk, W, ACC, segstride, step, flags, epilogue, bufbytes, pre=None, fstride=256):
    XF = 16
    LOOP = f"{name}_loop"
    A(f"s_mov_b32 {s(sBuf)}, 0")
    A.label(LOOP)
    if flags: wait_flags(A, sSeg, fstride)
    act_dma(A, nk, sSeg, segstride)
    if pre: pre()
    A(f"v_add_u32 {v(T+2)}, {s(sBuf)}, {v(vL16)}")
    A(f"s_waitcnt vmcnt(0)")
    A(f"s_barrier")
    rd = lambda k: f"ds_read_b128 {v(XF+4*(k%8),4)}, {v(T+2)} offset:{1024*k}"
    for k in range(6): A(rd(k))
    for k in range(nk):
        A(f"s_waitcnt lgkmcnt({min(5, nk-1-k)})")
        A(f"v_mfma_f32_32x32x16_bf16 {v(ACC,16)}, {R(W+4*k,4)}, {v(XF+4*(k%8),4)}, {v(ACC,16) if k else 0}")
        if k + 6 < nk: A(rd(k + 6))
    A(f"s_xor_b32 {s(sBuf)}, {s(sBuf)}, {bufbytes}")
    epilogue()
    if flags == 'sig':
        A(f"s_waitcnt vmcnt(0)")
        A(f"s_barrier")
        signal(A, sSeg)
    A(f"s_add_u32 {s(sSeg)}, {s(sSeg)}, {step}")
    A(f"s_cmp_lt_u32 {s(sSeg)}, 64")
    A(f"s_cbranch_scc1 {LOOP}")

def r3(A, step, flags):
    lane = start(A, [(sP1, 'Wo')])
    A(f"s_lshr_b32 {s(sNx)}, {s(sRole)}, 2")
    A(f"s_and_b32 {s(sBuf)}, {s(sRole)}, 3")
    A(f"s_waitcnt lgkmcnt(0)")
    srd(A, sP1, 0x400000)
    A(f"s_lshl_b32 {s(sCol)}, {s(sNx)}, 20"); A(f"s_lshl_b32 {s(sTmp)}, {s(sBuf)}, 8"); A(f"s_add_u32 {s(sCol)}, {s(sCol)}, {s(sTmp)}")
    A(f"s_lshl_b32 {s(sTmp)}, {s(sW)}, 6"); A(f"s_add_u32 {s(sCol)}, {s(sCol)}, {s(sTmp)}")
    base(A, sIn, [(sNx, 65536), (sW, 1024)], WS_O)
    base(A, sOut, [(sNx, 32768), (sBuf, 8192), (sW, 2048)], WS_PART)
    base(A, sFl, [], FL_SEG)
    A(f"s_lshl_b32 {s(sTmp)}, {s(sNx)}, 3"); A(f"s_lshl_b64 {s(sMask,2)}, 0xff, {s(sTmp)}")
    A(f"s_lshl_b32 {s(sFo)}, {s(sRole)}, 2"); A(f"s_add_u32 {s(sFo)}, {s(sFo)}, {4*FO_P}")
    ws_weights(A, lane, 1024, 64, 256)
    ACC = 48
    def epi():
        seg_addr(A, sA, sOut, sSeg, 131072)
        A("s_nop 7")
        for i in range(8): A(f"v_cvt_pk_bf16_f32 {v(64+i)}, {v(ACC+2*i)}, {v(ACC+2*i+1)}")
        A(f"global_store_dwordx4 {v(vL16)}, {v(64,4)}, {s(sA,2)} sc1")
        A(f"global_store_dwordx4 {v(vL16)}, {v(68,4)}, {s(sA,2)} offset:1024 sc1")
    gemm_loop(A, "R3", 64, 256, ACC, 262144, step, 'sig' if flags else None, epi, 65536)
    A("s_endpgm")

def r4(A, step, flags):
    lane = start(A, [(sP1, 'x')])
    vC, vX = 2, 3
    lane.acc(vC, [(2, 4, 9), (0, 2, 4)])
    lane.acc(vX, [(0, 2, 10), (2, 4, 4)])
    A(f"s_waitcnt lgkmcnt(0)")
    base(A, sIn, [(sRole, 256), (sW, 64)], WS_PART)
    base(A, sOut, [(sRole, 256), (sW, 64)], WS_H)
    base(A, sP2, [(sRole, 16384), (sW, 4096)], 0, sP1)
    base(A, sFl, [], FL_SEG)
    A(f"s_mov_b32 {s(sMask)}, 0"); A(f"s_mov_b32 {s(sMask+1)}, 0xffff")
    A(f"s_lshl_b32 {s(sFo)}, {s(sRole)}, 2"); A(f"s_add_u32 {s(sFo)}, {s(sFo)}, {4*FO_HN}")
    A.label("R4_loop")
    XR, PR, X = 16, 32, 96
    seg_addr(A, sA, sP2, sSeg, 32768)
    for j in range(4): A(f"global_load_dwordx4 {v(XR+4*j,4)}, {v(vX)}, {s(sA,2)} offset:{256*j}")
    if flags: wait_flags(A, sSeg)
    seg_addr(A, sA, sIn, sSeg, 131072)
    for p in range(4):
        for j in range(4):
            A(f"global_load_dwordx4 {v(PR+16*p+4*j,4)}, {v(vC)}, {s(sA,2)} sc1")
            add64(A, sA, sA, 8192)
    A(f"s_waitcnt vmcnt(12)")
    ln.unpack(A, X, PR, 16)
    for p in range(1, 4):
        A(f"s_waitcnt vmcnt({12-4*p})")
        for i in range(16):
            A(f"v_lshlrev_b32 {v(T)}, 16, {v(PR+16*p+i)}")
            A(f"v_and_b32 {v(T+1)}, 0xffff0000, {v(PR+16*p+i)}")
            A(f"v_add_f32 {v(X+2*i)}, {v(X+2*i)}, {v(T)}")
            A(f"v_add_f32 {v(X+2*i+1)}, {v(X+2*i+1)}, {v(T+1)}")
    for i in range(16):
        A(f"v_cvt_pk_bf16_f32 {v(T+2)}, {v(X+2*i)}, {v(X+2*i+1)}")
        A(f"v_lshlrev_b32 {v(T)}, 16, {v(XR+i)}")
        A(f"v_and_b32 {v(T+1)}, 0xffff0000, {v(XR+i)}")
        A(f"v_lshlrev_b32 {v(X+2*i)}, 16, {v(T+2)}")
        A(f"v_and_b32 {v(X+2*i+1)}, 0xffff0000, {v(T+2)}")
        A(f"v_add_f32 {v(T)}, {v(T)}, {v(X+2*i)}")
        A(f"v_add_f32 {v(T+1)}, {v(T+1)}, {v(X+2*i+1)}")
        A(f"v_cvt_pk_bf16_f32 {v(PR+i)}, {v(T)}, {v(T+1)}")
    ln.unpack(A, X, PR, 16)
    seg_addr(A, sA, sOut, sSeg, 32768)
    add64(A, sB, sA, WS_HN - WS_H)
    for j in range(4):
        A(f"global_store_dwordx4 {v(vC)}, {v(PR+4*j,4)}, {s(sA,2)} sc1")
        if j < 3: add64(A, sA, sA, 8192)
    ln.ln_core(A, X, 32, 512, 4, XR, T)
    for j in range(4):
        A(f"global_store_dwordx4 {v(vC)}, {v(XR+4*j,4)}, {s(sB,2)} sc1")
        if j < 3: add64(A, sB, sB, 8192)
    A(f"s_waitcnt vmcnt(0)")
    if flags:
        A(f"s_barrier"); signal(A, sSeg)
    A(f"s_add_u32 {s(sSeg)}, {s(sSeg)}, {step}")
    A(f"s_cmp_lt_u32 {s(sSeg)}, 64")
    A(f"s_cbranch_scc1 R4_loop")
    A("s_endpgm")

def r5(A, step, flags):
    lane = start(A, [(sP1, 'w_in')])
    A(f"s_lshl_b32 {s(sNx)}, {s(sRole)}, 2"); A(f"s_add_u32 {s(sNx)}, {s(sNx)}, {s(sW)}")
    A(f"s_lshl_b32 {s(sCol)}, {s(sNx)}, 6")
    A(f"s_cmp_ge_u32 {s(sNx)}, 22"); A(f"s_cselect_b32 {s(sTmp)}, 32, 0"); A(f"s_sub_u32 {s(sCol)}, {s(sCol)}, {s(sTmp)}")
    A(f"s_waitcnt lgkmcnt(0)")
    srd(A, sP1, 512 * 2752)
    base(A, sIn, [(sW, 1024)], WS_HN)
    base(A, sOut, [(sNx, 2048)], WS_Z)
    base(A, sFl, [], FL_SEG)
    A(f"s_mov_b32 {s(sMask)}, 0"); A(f"s_mov_b32 {s(sMask+1)}, {3 << (FO_HN-32)}")
    A(f"s_lshl_b32 {s(sFo)}, {s(sRole)}, 2"); A(f"s_add_u32 {s(sFo)}, {s(sFo)}, {4*FO_Z}")
    ws_weights(A, lane, 2752, 32, 256)
    import struct, math
    f2u = lambda x: hex(struct.unpack('<I', struct.pack('<f', x))[0])
    k0 = -2.0 * math.log2(math.e) * math.sqrt(2.0 / math.pi)
    sK0, sK1 = 44, 45
    A(f"s_mov_b32 {s(sK1)}, {f2u(k0 * 0.044715)}")
    A(f"v_mov_b32 {v(4)}, {f2u(k0)}")
    ACC, U = 48, 64
    def epi():
        seg_addr(A, sA, sOut, sSeg, SEG_Z)
        A("s_nop 7")
        for i in range(8): A(f"v_cvt_pk_bf16_f32 {v(80+i)}, {v(ACC+2*i)}, {v(ACC+2*i+1)}")
        ln.unpack(A, ACC, 80, 8)
        for i in range(16): A(f"v_mul_f32 {v(U+i)}, {v(ACC+i)}, {v(ACC+i)}")
        for i in range(16): A(f"v_fma_f32 {v(U+i)}, {v(U+i)}, {s(sK1)}, {v(4)}")
        for i in range(16): A(f"v_mul_f32 {v(U+i)}, {v(U+i)}, {v(ACC+i)}")
        for i in range(16): A(f"v_exp_f32 {v(U+i)}, {v(U+i)}")
        for i in range(16): A(f"v_add_f32 {v(U+i)}, 1.0, {v(U+i)}")
        for i in range(16): A(f"v_rcp_f32 {v(U+i)}, {v(U+i)}")
        for i in range(16): A(f"v_mul_f32 {v(U+i)}, {v(U+i)}, {v(ACC+i)}")
        for i in range(8): A(f"v_cvt_pk_bf16_f32 {v(80+i)}, {v(U+2*i)}, {v(U+2*i+1)}")
        A(f"global_store_dwordx4 {v(vL16)}, {v(80,4)}, {s(sA,2)} sc1")
        A(f"global_store_dwordx4 {v(vL16)}, {v(84,4)}, {s(sA,2)} offset:1024 sc1")
    gemm_loop(A, "R5", 32, 256, ACC, 32768, step, 'sig' if flags else None, epi, 32768)
    A("s_endpgm")

def r5b(A, step, flags):
    lane = start(A, [])
    vC = 2
    lane.acc(vC, [(2, 4, 9), (0, 2, 4)])
    sTail = 44
    A(f"v_cmp_gt_u32 {s(sTail,2)}, 24, {v(L)}")
    A(f"s_waitcnt lgkmcnt(0)")
    base(A, sIn, [(sRole, 256), (sW, 64)], WS_Z + SEG_F)
    base(A, sOut, [(sRole, 256), (sW, 64)], WS_Z2)
    base(A, sFl, [], FL_SEG)
    A(f"s_mov_b32 {s(sMask)}, 0"); A(f"s_mov_b32 {s(sMask+1)}, {0x3f << (FO_Z+5-32)}")
    A(f"s_lshl_b32 {s(sFo)}, {s(sRole)}, 2"); A(f"s_add_u32 {s(sFo)}, {s(sFo)}, {4*FO_Z2}")
    A.label("R5b_loop")
    PR, X = 16, 48
    if flags: wait_flags(A, sSeg)
    seg_addr(A, sA, sIn, sSeg, SEG_Z)
    A(f"v_mov_b64 {v(PR+20,2)}, 0"); A(f"v_mov_b64 {v(PR+22,2)}, 0")
    for j in range(6):
        if j == 5: A(f"s_mov_b64 exec, {s(sTail,2)}")
        A(f"global_load_dwordx4 {v(PR+4*j,4)}, {v(vC)}, {s(sA,2)} sc1")
        if j < 5: add64(A, sA, sA, 8192)
    A(f"s_mov_b64 exec, -1")
    seg_addr(A, sA, sOut, sSeg, SEG_F)
    A(f"s_waitcnt vmcnt(0)")
    ln.unpack(A, X, PR, 24)
    ln.ln_core(A, X, 48, 688, 4, PR, T, tailmask=sTail, ntail=8)
    for j in range(6):
        if j == 5: A(f"s_mov_b64 exec, {s(sTail,2)}")
        A(f"global_store_dwordx4 {v(vC)}, {v(PR+4*j,4)}, {s(sA,2)} sc1")
        if j < 5: add64(A, sA, sA, 8192)
    A(f"s_mov_b64 exec, -1")
    A(f"s_waitcnt vmcnt(0)")
    if flags:
        A(f"s_barrier"); signal(A, sSeg)
    A(f"s_add_u32 {s(sSeg)}, {s(sSeg)}, {step}")
    A(f"s_cmp_lt_u32 {s(sSeg)}, 64")
    A(f"s_cbranch_scc1 R5b_loop")
    A("s_endpgm")

def r6(A, flags):
    lane = start(A, [(sP1, 'w_sp'), (sP2, 'b_sp')])
    vS0, vS1, vR0, vR1, vWs = 2, 3, 4, 5, 6
    sTg, sFh, sWsp = 44, 45, 46
    A(f"s_lshr_b32 {s(sTg)}, {s(sRole)}, 1"); A(f"s_and_b32 {s(sFh)}, {s(sRole)}, 1")
    A(f"s_lshl_b32 {s(sTg)}, {s(sTg)}, 2"); A(f"s_add_u32 {s(sTg)}, {s(sTg)}, {s(sW)}")
    lane.acc(vS0, [(5, 1, 6)])
    A(f"v_xor_b32 {v(vS0)}, {v(vS0)}, {v(vL16)}")
    A(f"s_and_b32 {s(sTmp)}, {s(sW)}, 1"); A(f"s_lshl_b32 {s(sTmp)}, {s(sTmp)}, 7")
    A(f"v_xor_b32 {v(vS0)}, {s(sTmp)}, {v(vS0)}")
    lane.acc(vR0, [(5, 1, 7), (2, 2, 4)])
    lane.acc(vR1, [(0, 1, 6), (4, 1, 7)])
    A(f"v_xor_b32 {v(vR0)}, {v(vR0)}, {v(vR1)}")
    lane.acc(vR0, [(4, 1, 10), (0, 1, 9), (1, 1, 3)], add=True)
    A(f"v_xor_b32 {v(vR1)}, 64, {v(vR0)}")
    lane.acc(vWs, [(0, 5, 12), (5, 1, 4)])
    A(f"s_waitcnt lgkmcnt(0)")
    base(A, sIn, [(sFh, 22528), (sW, 1024)], WS_Z2)
    base(A, sWsp, [(sTg, 131072)], 0, sP1)
    base(A, sFl, [], FL_SEG)
    A(f"s_mov_b32 {s(sMask)}, 0"); A(f"s_mov_b32 {s(sMask+1)}, {3 << (FO_Z2-32)}")
    ACC, WB, AF = 256, 24, 48
    for i in range(176): A(f"v_accvgpr_write_b32 {a(i)}, 0")
    A(f"s_mov_b32 {s(sSeg)}, 0")
    A(f"s_mov_b32 {s(sBuf)}, 0")
    A.label("R6_loop")
    A(f"global_load_dwordx4 {v(WB,4)}, {v(vWs)}, {s(sWsp,2)}")
    A(f"global_load_dwordx4 {v(WB+4,4)}, {v(vWs)}, {s(sWsp,2)} offset:32")
    add64(A, sWsp, sWsp, 64)
    if flags: wait_flags(A, sSeg)
    seg_addr(A, sA, sIn, sSeg, SEG_F)
    A(f"s_lshl_b32 {s(sTmp2)}, {s(sW)}, 10"); A(f"s_add_u32 {s(sTmp2)}, {s(sTmp2)}, {s(sBuf)}")
    for q in range(6):
        if q == 5:
            A(f"s_cmp_ge_u32 {s(sW)}, 2"); A(f"s_cbranch_scc1 R6_sk")
        A(f"s_add_u32 m0, {s(sTmp2)}, {4096*q}")
        if q: add64(A, sA, sA, 4096)
        else: A("s_nop 0")
        A(f"global_load_lds_dwordx4 {v(vS0)}, {s(sA,2)} sc1")
    A.label("R6_sk")
    A(f"v_add_u32 {v(T+2)}, {s(sBuf)}, {v(vR0)}")
    A(f"v_add_u32 {v(T+3)}, {s(sBuf)}, {v(vR1)}")
    A(f"s_waitcnt vmcnt(0)")
    A(f"s_barrier")
    def rd(i):
        f, k = i // 2, i % 2
        d = AF + 4 * (i % 8)
        A(f"ds_read_b64_tr_b16 {v(d,2)}, {v(T+2)} offset:{2048*f+256*k}")
        A(f"ds_read_b64_tr_b16 {v(d+2,2)}, {v(T+3)} offset:{2048*f+256*k}")
    for i in range(5): rd(i)
    for i in range(22):
        A(f"s_waitcnt lgkmcnt({2*min(4, 21-i)})")
        A(f"v_mfma_f32_32x32x16_bf16 {R(ACC+16*(i//2),16)}, {v(AF+4*(i%8),4)}, {v(WB+4*(i%2),4)}, {R(ACC+16*(i//2),16)}")
        if i + 5 < 22: rd(i + 5)
    A(f"s_xor_b32 {s(sBuf)}, {s(sBuf)}, 32768")
    A(f"s_add_u32 {s(sSeg)}, {s(sSeg)}, 1")
    A(f"s_cmp_lt_u32 {s(sSeg)}, 64")
    A(f"s_cbranch_scc1 R6_loop")
    Z1 = 24
    base(A, sA, [(sTg, SEG_Z), (sFh, 22528)], WS_Z)
    if flags:
        A(f"s_mov_b32 {s(sMask+1)}, {0x3f << (FO_Z-32)}")
        wait_flags(A, sTg)
    for i in range(22):
        A(f"global_load_dwordx4 {v(Z1+4*i,4)}, {v(vL16)}, {s(sA,2)} offset:{1024*(i%4)} sc1")
        if i % 4 == 3: add64(A, sA, sA, 4096)
    A(f"v_and_b32 {v(T)}, 31, {v(L)}"); A(f"v_lshlrev_b32 {v(T)}, 1, {v(T)}")
    base(A, sB, [(sTg, 64)], 0, sP2)
    A(f"global_load_ushort {v(T+1)}, {v(T)}, {s(sB,2)}")
    base(A, sA, [(sTg, SEG_F), (sFh, 22528)], WS_Y)
    A(f"s_waitcnt vmcnt(0)")
    A(f"v_lshlrev_b32 {v(T+1)}, 16, {v(T+1)}")
    G = 112
    for i in range(22):
        for q in range(8): A(f"v_accvgpr_read_b32 {v(G+q)}, {a(8*i+q)}")
        for q in range(4): A(f"v_cvt_pk_bf16_f32 {v(G+8+q)}, {v(G+2*q)}, {v(G+2*q+1)}")
        ln.unpack(A, G, G + 8, 4)
        for q in range(8): A(f"v_add_f32 {v(G+q)}, {v(G+q)}, {v(T+1)}")
        for q in range(4): A(f"v_cvt_pk_bf16_f32 {v(G+8+q)}, {v(G+2*q)}, {v(G+2*q+1)}")
        ln.unpack(A, G, G + 8, 4)
        ln.unpack(A, G + 8, Z1 + 4 * i, 4)
        for q in range(8): A(f"v_mul_f32 {v(G+q)}, {v(G+q)}, {v(G+8+q)}")
        for q in range(4): A(f"v_cvt_pk_bf16_f32 {v(Z1+4*i+q)}, {v(G+2*q)}, {v(G+2*q+1)}")
        A(f"global_store_dwordx4 {v(vL16)}, {v(Z1+4*i,4)}, {s(sA,2)} offset:{1024*(i%4)} sc1")
        if i % 4 == 3: add64(A, sA, sA, 4096)
    if flags:
        base(A, sA, [(sTg, 8), (sFh, 4)], FL_Y)
        A(f"v_mov_b32 {v(T)}, 0"); A(f"v_mov_b32 {v(T+1)}, 1")
        A(f"s_waitcnt vmcnt(0)")
        A(f"global_store_dword {v(T)}, {v(T+1)}, {s(sA,2)} sc1")
    A("s_endpgm")

def r7(A, step, flags):
    lane = start(A, [(sP1, 'w_out'), (sP2, 'out')])
    vO = 2
    sHh = 44
    lane.acc(vO, [(0, 5, 10), (5, 1, 4)])
    A(f"s_lshl_b32 {s(sCol)}, {s(sRole)}, 8"); A(f"s_lshl_b32 {s(sTmp)}, {s(sW)}, 6"); A(f"s_add_u32 {s(sCol)}, {s(sCol)}, {s(sTmp)}")
    A(f"s_waitcnt lgkmcnt(0)")
    srd(A, sP1, 688 * 1024)
    base(A, sIn, [(sW, 1024)], WS_Y)
    base(A, sOut, [(sCol, 1)], 0, sP2)
    base(A, sHh, [(sRole, 8192), (sW, 2048)], WS_H)
    base(A, sFl, [], FL_Y)
    A(f"s_mov_b64 {s(sMask,2)}, 3")
    ws_weights(A, lane, 1024, 43, 256)
    ACC, H = 48, 64
    def pre():
        seg_addr(A, sB, sHh, sSeg, 32768)
        A(f"global_load_dwordx4 {v(H,4)}, {v(vL16)}, {s(sB,2)} sc1")
        A(f"global_load_dwordx4 {v(H+4,4)}, {v(vL16)}, {s(sB,2)} offset:1024 sc1")
    def epi():
        seg_addr(A, sA, sOut, sSeg, 32768)
        ln.unpack(A, 80, H, 8)
        for i in range(8): A(f"v_cvt_pk_bf16_f32 {v(H+i)}, {v(ACC+2*i)}, {v(ACC+2*i+1)}")
        ln.unpack(A, ACC, H, 8)
        for i in range(16): A(f"v_add_f32 {v(ACC+i)}, {v(ACC+i)}, {v(80+i)}")
        for i in range(8): A(f"v_cvt_pk_bf16_f32 {v(96+i)}, {v(ACC+2*i)}, {v(ACC+2*i+1)}")
        A(f"global_store_dwordx4 {v(vO)}, {v(96,4)}, {s(sA,2)}")
        A(f"global_store_dwordx4 {v(vO)}, {v(100,4)}, {s(sA,2)} offset:32")
    gemm_loop(A, "R7", 43, 256, ACC, SEG_F, step, 'wait' if flags else None, epi, 65536, pre, 8)
    A("s_endpgm")
```

```python
from common import *
L_XN, L_QK, L_KMS, L_BIAS = 0, 32768, 65536, 69632
vL16, vWL, vKst, vVst, vKmR, vVmL = 0, 1, 2, 3, 4, 5
T = 8
XF, QA, KA_, VA, VPC, VPN, KF = 16, 48, 64, 80, 96, 104, 112
WQ, WK, WV = 256, 384, 128
sW, sH, sCur, sNxt, sTmp, sTmp2, sSpin, sC, sBuf = 3, 4, 5, 6, 7, 8, 9, 10, 11
sWS, sXN, sKV, sFKV, sPROG, sKM, sO, sA, sB = 12, 14, 16, 18, 20, 22, 24, 26, 28
SRD, sPTR, sLB, sOff, sCol, sStride, sWM0 = 32, 36, 44, 45, 46, 47, 48

def worker(A, NW, use_flags, osig=False, chain=False):
    L, tb = 16, 17
    ln = Lane(A, L, tb)
    A(f"v_lshrrev_b32 {v(T)}, 6, v0")
    A(f"s_load_dwordx4 {s(sPTR,4)}, s[0:1], {KA['Wq']}")
    A(f"s_load_dwordx2 {s(sPTR+4,2)}, s[0:1], {KA['Wv']}")
    A(f"s_load_dwordx2 {s(sWS,2)}, s[0:1], {KA['ws']}")
    A(f"v_readfirstlane_b32 {s(sW)}, {v(T)}")
    A(f"v_and_b32 {v(L)}, 63, v0")
    A(f"v_lshlrev_b32 {v(vL16)}, 4, {v(L)}")
    A(f"s_lshl_b32 {s(sLB)}, {s(sW)}, 15")
    A(f"s_mov_b32 {s(sStride)}, 8192")
    vSrc, vTr = 18, 19
    weight_lane_consts(A, ln, vSrc, vTr, sLB, sStride, 20)
    A(f"s_lshl_b32 {s(sTmp)}, {s(sW)}, 11")
    A(f"v_add_u32 {v(vWL)}, {s(sTmp)}, {v(vL16)}")
    ln.acc(vKst, [(3, 1, 12), (4, 1, 7), (0, 3, 4), (5, 1, 8)])
    A(f"s_lshr_b32 {s(sTmp)}, {s(sW)}, 1"); A(f"s_lshl_b32 {s(sTmp)}, {s(sTmp)}, 11")
    A(f"s_and_b32 {s(sTmp2)}, {s(sW)}, 1"); A(f"s_lshl_b32 {s(sTmp2)}, {s(sTmp2)}, 9")
    A(f"s_add_u32 {s(sTmp)}, {s(sTmp)}, {s(sTmp2)}")
    A(f"v_add_u32 {v(vKst)}, {s(sTmp)}, {v(vKst)}")
    ln.acc(vVst, [(4, 1, 10), (2, 1, 7), (3, 1, 6), (0, 2, 4), (5, 1, 8)])
    A(f"s_lshl_b32 {s(sTmp)}, {s(sW)}, 11"); A(f"s_add_u32 {s(sTmp)}, {s(sTmp)}, 8192")
    A(f"v_add_u32 {v(vVst)}, {s(sTmp)}, {v(vVst)}")
    ln.acc(vKmR, [(0, 2, 7), (1, 1, 5), (5, 1, 6), (2, 2, 3)])
    ln.acc(vVmL, [(5, 1, 7), (2, 1, 6), (3, 1, 5), (0, 2, 3), (4, 1, 2)])
    A(f"s_lshl_b32 {s(sTmp)}, {s(sW)}, 10"); A(f"s_add_u32 {s(sTmp)}, {s(sTmp)}, 4096")
    A(f"v_add_u32 {v(vVmL)}, {s(sTmp)}, {v(vVmL)}")
    A(f"s_mov_b32 {s(sC)}, 0x3e0293ee")
    A(f"s_waitcnt lgkmcnt(0)")
    def base(dst, terms, imm):
        A(f"s_mov_b32 {s(sTmp2)}, {imm}")
        for r_, sh in terms:
            A(f"s_lshl_b32 {s(sTmp)}, {s(r_)}, {sh}")
            A(f"s_add_u32 {s(sTmp2)}, {s(sTmp2)}, {s(sTmp)}")
        add64(A, dst, sWS, s(sTmp2))
    base(sXN, [(sW, 13)], WS_XN)
    base(sKV, [(sH, 14)], WS_KV)
    base(sFKV, [(sH, 8)], FL_KV)
    base(sPROG, [(sH, 6)], FL_PROG)
    base(sKM, [(sH, 13)], WS_KM)
    base(sO, [(sH, 13)], WS_O)
    A(f"s_mov_b32 {s(SRD+2)}, 0x400000"); A(f"s_mov_b32 {s(SRD+3)}, 0x20000")
    A(f"s_lshl_b32 {s(sCol)}, {s(sH)}, 8"); A(f"s_lshl_b32 {s(sTmp)}, {s(sW)}, 6"); A(f"s_add_u32 {s(sCol)}, {s(sCol)}, {s(sTmp)}")
    units = []
    for mi, dst in ((1, WK), (2, WV), (0, WQ)):
        def setup(mi=mi):
            A(f"s_mov_b32 {s(SRD)}, {s(sPTR+2*mi)}"); A(f"s_and_b32 {s(SRD+1)}, {s(sPTR+2*mi+1)}, 0xffff")
        for u in range(8):
            units.append((setup if u == 0 else None, (lambda m, u=u: (sCol, (64*u + 16*m) * 8192)), dst + 16*u, 4))
    load_weight_units(A, units, vSrc, vTr, sLB, SRD, sOff, sTmp)
    A(f"s_barrier")
    A(f"v_and_b32 {v(20)}, 31, {v(L)}")
    A(f"v_lshrrev_b32 {v(21)}, 5, {v(L)}")
    A(f"v_lshlrev_b32 {v(21)}, 2, {v(21)}")
    A(f"v_sub_u32 {v(20)}, {v(20)}, {v(21)}")
    A(f"v_mov_b32 {v(21)}, 0xf149f2ca")
    for j in range(4):
        for i in range(4):
            A(f"v_cmp_gt_i32 vcc, {8*j+i}, {v(20)}")
            A(f"s_nop 1")
            A(f"v_cndmask_b32 {v(24+i)}, 0, {v(21)}, vcc")
        A(f"v_add_u32 {v(22)}, {L_BIAS + 1024*j}, {v(vL16)}")
        A(f"ds_write_b128 {v(22)}, {v(24,4)}")
    A(f"s_lshl_b32 {s(sWM0)}, {s(sW)}, 13")
    def xn_dma(sSeg):
        A(f"s_lshl_b32 {s(sTmp)}, {s(sSeg)}, 15")
        add64(A, sA, sXN, s(sTmp))
        add64(A, sB, sA, 4096)
        for hfi, b in enumerate((sA, sB)):
            A(f"s_add_u32 m0, {s(sWM0)}, {L_XN + 4096*hfi}")
            A(f"s_nop 0")
            for q in range(4):
                A(f"global_load_lds_dwordx4 {v(vL16)}, {s(b,2)} offset:{1024*q} sc1")
    xn_dma(sNxt)
    A(f"s_mov_b32 {s(sCur)}, -1")
    A(f"s_mov_b32 {s(sBuf)}, {L_QK}")
    LOOP, NOG, NOA, END = "W_loop", "W_nogemm", "W_noatt", "W_end"
    A.label(LOOP)
    A(f"s_waitcnt vmcnt(0) lgkmcnt(0)")
    A(f"s_barrier")
    A(f"s_cmp_ge_u32 {s(sNxt)}, 64")
    A(f"s_cbranch_scc1 {NOG}")
    rd = lambda k: f"ds_read_b128 {v(XF+4*(k%8),4)}, {v(vL16)} offset:{L_XN+1024*k}"
    for k in range(6): A(rd(k))
    for k in range(32):
        x = v(XF + 4 * (k % 8), 4)
        A(f"s_waitcnt lgkmcnt({min(5, 31-k)})")
        A(f"v_mfma_f32_32x32x16_bf16 {v(KA_,16)}, {R(WK+4*k,4)}, {x}, {v(KA_,16) if k else 0}")
        if k + 6 < 32: A(rd(k + 6))
        A(f"v_mfma_f32_32x32x16_bf16 {v(VA,16)}, {x}, {R(WV+4*k,4)}, {v(VA,16) if k else 0}")
        A(f"v_mfma_f32_32x32x16_bf16 {v(QA,16)}, {R(WQ+4*k,4)}, {x}, {v(QA,16) if k else 0}")
    A(f"s_lshl_b32 {s(sTmp)}, {s(sNxt)}, 19")
    add64(A, sA, sKV, s(sTmp))
    A(f"v_add_u32 {v(T)}, {s(sBuf)}, {v(vWL)}")
    for i in range(8): A(f"v_cvt_pk_bf16_f32 {v(XF+i)}, {v(KA_+2*i)}, {v(KA_+2*i+1)}")
    A(f"global_store_dwordx4 {v(vKst)}, {v(XF,4)}, {s(sA,2)} sc1")
    A(f"global_store_dwordx4 {v(vKst)}, {v(XF+4,4)}, {s(sA,2)} offset:1024 sc1")
    A(f"ds_write_b128 {v(T)}, {v(XF,4)} offset:8192")
    A(f"ds_write_b128 {v(T)}, {v(XF+4,4)} offset:9216")
    for i in range(8): A(f"v_cvt_pk_bf16_f32 {v(VPN+i)}, {v(VA+2*i)}, {v(VA+2*i+1)}")
    A(f"global_store_dwordx4 {v(vVst)}, {v(VPN,4)}, {s(sA,2)} sc1")
    A(f"global_store_dwordx4 {v(vVst)}, {v(VPN+4,4)}, {s(sA,2)} offset:512 sc1")
    for i in range(8): A(f"v_cvt_pk_bf16_f32 {v(XF+8+i)}, {v(QA+2*i)}, {v(QA+2*i+1)}")
    A(f"ds_write_b128 {v(T)}, {v(XF+8,4)}")
    A(f"ds_write_b128 {v(T)}, {v(XF+12,4)} offset:1024")
    A(f"s_waitcnt vmcnt(0) lgkmcnt(0)")
    A(f"s_barrier")
    if use_flags:
        nf = A.newlabel('W_nf')
        A(f"s_cmp_lg_u32 {s(sW)}, 0"); A(f"s_cbranch_scc1 {nf}")
        A(f"s_lshl_b32 {s(sTmp)}, {s(sNxt)}, 2")
        A(f"v_mov_b32 {v(T)}, {s(sTmp)}"); A(f"v_mov_b32 {v(T+1)}, 1")
        A(f"global_store_dword {v(T)}, {v(T+1)}, {s(sFKV,2)} sc1")
        A.label(nf)
    nx = A.newlabel('W_nx')
    A(f"s_add_u32 {s(sTmp2)}, {s(sNxt)}, {NW}")
    A(f"s_cmp_ge_u32 {s(sTmp2)}, 64"); A(f"s_cbranch_scc1 {nx}")
    xn_dma(sTmp2)
    A.label(nx)
    A.label(NOG)
    A(f"s_xor_b32 {s(sBuf)}, {s(sBuf)}, 16384")
    A(f"s_cmp_lt_i32 {s(sCur)}, 0")
    A(f"s_cbranch_scc1 {NOA}")
    SA, MA_, MB_ = QA, KA_, VA
    A(f"v_add_u32 {v(T)}, {s(sBuf)}, {v(vL16)}")
    A(f"v_add_u32 {v(T+1)}, {L_BIAS}, {v(vL16)}")
    for j in range(4): A(f"ds_read_b128 {v(SA+4*j,4)}, {v(T+1)} offset:{1024*j}")
    for k in range(8): A(f"ds_read_b128 {v(XF+4*k,4)}, {v(T)} offset:{1024*k}")
    A(f"s_waitcnt lgkmcnt(8)")
    for k in range(8): A(f"ds_read_b128 {v(MA_+4*k,4)}, {v(T)} offset:{8192+1024*k}")
    for k in range(8):
        A(f"s_waitcnt lgkmcnt({7-k})")
        A(f"v_mfma_f32_32x32x16_bf16 {v(SA,16)}, {v(MA_+4*k,4)}, {v(XF+4*k,4)}, {v(SA,16)}")
    if use_flags:
        pw, pd = A.newlabel('W_pw'), A.newlabel('W_pd')
        A(f"s_mov_b32 {s(sSpin)}, {SPIN_MAX*8}")
        A(f"v_mov_b32 {v(T)}, 0")
        A.label(pw)
        A(f"global_load_dwordx4 {v(T+4,4)}, {v(T)}, {s(sPROG,2)} sc1")
        A(f"s_waitcnt vmcnt(0)")
        A(f"v_min3_u32 {v(T+4)}, {v(T+4)}, {v(T+5)}, {v(T+6)}")
        A(f"v_min_u32 {v(T+4)}, {v(T+4)}, {v(T+7)}")
        A(f"v_cmp_lt_u32 vcc, {s(sCur)}, {v(T+4)}")
        A(f"s_cbranch_vccnz {pd}")
        A(f"s_sleep 2")
        A(f"s_sub_u32 {s(sSpin)}, {s(sSpin)}, 1")
        A(f"s_cbranch_scc0 {pw}")
        A.label(pd)
    A(f"s_lshl_b32 {s(sTmp)}, {s(sCur)}, 18")
    add64(A, sA, sKM, s(sTmp))
    add64(A, sB, sO, s(sTmp))
    A(f"s_lshr_b32 {s(sTmp)}, {s(sWM0)}, 3")
    A(f"s_add_u32 m0, {s(sTmp)}, {L_KMS}")
    A(f"v_add_u32 {v(T)}, {s(sTmp)}, {v(vL16)}")
    VM = T + 4
    A(f"global_load_lds_dwordx4 {v(T)}, {s(sA,2)} sc1")
    A(f"global_load_dword {v(VM)}, {v(vVmL)}, {s(sA,2)} sc1")
    A(f"global_load_dword {v(VM+1)}, {v(vVmL)}, {s(sA,2)} offset:256 sc1")
    A(f"v_mov_b64 {v(VM+2,2)}, 0")
    A(f"v_add_u32 {v(T+1)}, {L_KMS}, {v(vKmR)}")
    A(f"v_max3_f32 {v(T+2)}, {v(SA)}, {v(SA+1)}, {v(SA+2)}")
    for i in range(3, 15, 2): A(f"v_max3_f32 {v(T+2)}, {v(T+2)}, {v(SA+i)}, {v(SA+i+1)}")
    A(f"v_max_f32 {v(T+2)}, {v(T+2)}, {v(SA+15)}")
    A(f"s_waitcnt vmcnt(0)")
    A(f"s_barrier")
    for w_ in range(4):
        A(f"ds_read_b64_tr_b16 {v(KF+4*w_,2)}, {v(T+1)} offset:{1024*w_}")
        A(f"ds_read_b64_tr_b16 {v(KF+4*w_+2,2)}, {v(T+1)} offset:{1024*w_+32}")
    for w_ in range(4):
        A(f"s_waitcnt lgkmcnt({6-2*w_})")
        A(f"v_mfma_f32_32x32x16_bf16 {v(MA_,16)}, {v(KF+4*w_,4)}, {v(XF+8*w_,4)}, {v(MA_,16) if w_ else 0}")
        A(f"v_mfma_f32_32x32x16_bf16 {v(MB_,16)}, {v(KF+4*w_,4)}, {v(XF+8*w_+4,4)}, {v(MB_,16) if w_ else 0}")
    A(f"s_nop 11")
    SM = KF
    for q, (ra, rb) in enumerate(((0, 2), (1, 3), (4, 6), (5, 7))):
        A(f"v_add_f32 {v(SM+q)}, {v(MA_+ra)}, {v(MB_+rb)}")
    A(f"v_max3_f32 {v(T+2)}, {v(T+2)}, {v(SM)}, {v(SM+1)}")
    A(f"v_max3_f32 {v(T+2)}, {v(T+2)}, {v(SM+2)}, {v(SM+3)}")
    A(f"v_mov_b32 {v(T+3)}, {v(T+2)}")
    A(f"s_nop 1")
    A(f"v_permlane32_swap_b32 {v(T+2)}, {v(T+3)}")
    A(f"v_max_f32 {v(T+2)}, {v(T+2)}, {v(T+3)}")
    A(f"v_mul_f32 {v(T+2)}, {s(sC)}, {v(T+2)}")
    regs = [SA + i for i in range(16)] + [SM + i for i in range(4)]
    for r_ in regs: A(f"v_fma_f32 {v(r_)}, {v(r_)}, {s(sC)}, -{v(T+2)}")
    for r_ in regs: A(f"v_exp_f32 {v(r_)}, {v(r_)}")
    P, PMm, OA_ = XF, XF + 8, MA_
    for i in range(8): A(f"v_cvt_pk_bf16_f32 {v(P+i)}, {v(SA+2*i)}, {v(SA+2*i+1)}")
    A(f"v_cvt_pk_bf16_f32 {v(PMm)}, {v(SM)}, {v(SM+1)}")
    A(f"v_cvt_pk_bf16_f32 {v(PMm+1)}, {v(SM+2)}, {v(SM+3)}")
    A(f"v_mov_b64 {v(PMm+2,2)}, 0")
    A(f"v_mfma_f32_32x32x16_bf16 {v(OA_,16)}, {v(VPC,4)}, {v(P,4)}, 0")
    A(f"v_add_f32 {v(T+2)}, {v(regs[0])}, {v(regs[1])}")
    A(f"v_add_f32 {v(T+3)}, {v(regs[2])}, {v(regs[3])}")
    A(f"v_mfma_f32_32x32x16_bf16 {v(OA_,16)}, {v(VPC+4,4)}, {v(P+4,4)}, {v(OA_,16)}")
    for i in range(4, 12): A(f"v_add_f32 {v(T+2+i%2)}, {v(T+2+i%2)}, {v(regs[i])}")
    A(f"v_mfma_f32_32x32x16_bf16 {v(OA_,16)}, {v(VM,4)}, {v(PMm,4)}, {v(OA_,16)}")
    for i in range(12, 20): A(f"v_add_f32 {v(T+2+i%2)}, {v(T+2+i%2)}, {v(regs[i])}")
    A(f"v_add_f32 {v(T+2)}, {v(T+2)}, {v(T+3)}")
    A(f"v_mov_b32 {v(T+3)}, {v(T+2)}")
    A(f"s_nop 1")
    A(f"v_permlane32_swap_b32 {v(T+2)}, {v(T+3)}")
    A(f"v_add_f32 {v(T+2)}, {v(T+2)}, {v(T+3)}")
    A(f"v_rcp_f32 {v(T+2)}, {v(T+2)}")
    A(f"s_nop 0")
    for i in range(16): A(f"v_mul_f32 {v(OA_+i)}, {v(OA_+i)}, {v(T+2)}")
    for i in range(8): A(f"v_cvt_pk_bf16_f32 {v(P+i)}, {v(OA_+2*i)}, {v(OA_+2*i+1)}")
    A(f"global_store_dwordx4 {v(vWL)}, {v(P,4)}, {s(sB,2)} sc1")
    A(f"global_store_dwordx4 {v(vWL)}, {v(P+4,4)}, {s(sB,2)} offset:1024 sc1")
    if osig:
        ns = A.newlabel('W_ns')
        A(f"s_waitcnt vmcnt(0)")
        A(f"s_barrier")
        A(f"s_cmp_lg_u32 {s(sW)}, 0"); A(f"s_cbranch_scc1 {ns}")
        A(f"s_lshl_b32 {s(sTmp)}, {s(sCur)}, 8"); A(f"s_lshl_b32 {s(sTmp2)}, {s(sH)}, 2")
        A(f"s_add_u32 {s(sTmp)}, {s(sTmp)}, {s(sTmp2)}"); A(f"s_add_u32 {s(sTmp)}, {s(sTmp)}, {FL_SEG + 4*FO_O}")
        A(f"v_mov_b32 {v(T)}, {s(sTmp)}"); A(f"v_mov_b32 {v(T+1)}, 1")
        A(f"global_store_dword {v(T)}, {v(T+1)}, {s(sWS,2)} sc1")
        A.label(ns)
    A.label(NOA)
    for i in range(0, 8, 2): A(f"v_mov_b64 {v(VPC+i,2)}, {v(VPN+i,2)}")
    A(f"s_mov_b32 {s(sCur)}, {s(sNxt)}")
    A(f"s_add_u32 {s(sNxt)}, {s(sNxt)}, {NW}")
    A(f"s_cmp_lt_u32 {s(sCur)}, 64")
    A(f"s_cbranch_scc1 {LOOP}")
    if chain:
        A(f"s_lshl_b32 {s(sTmp)}, {s(sW)}, 6")
        A(f"v_lshrrev_b32 v0, 4, {v(vL16)}")
        A(f"v_add_u32 v0, {s(sTmp)}, v0")
        A(f"s_waitcnt vmcnt(0) lgkmcnt(0)")
        A(f"s_barrier")
    else:
        A(f"s_endpgm")
```

```python
import sys
from common import *
import team, worker, ln, post

HEADER = open('cdna_kernels/' + NAME + '.s.ref').read().split('; Override launch geometry')[0]

def kernel_desc(name, vgpr, sgpr, accum):
    return f""".amdhsa_kernel {name}
  .amdhsa_next_free_vgpr {vgpr}
  .amdhsa_next_free_sgpr {sgpr}
  .amdhsa_accum_offset {accum}
  .amdhsa_group_segment_fixed_size 0
  .amdhsa_kernarg_size 120
  .amdhsa_user_sgpr_count 2
  .amdhsa_user_sgpr_kernarg_segment_ptr 1
  .amdhsa_system_sgpr_workgroup_id_x 1
  .amdhsa_float_denorm_mode_32 3
.end_amdhsa_kernel
"""

def build(kernels, launches):
    out = HEADER
    for n, g, b, l in launches:
        out += f"; @launch kernel={n} grid=({g},1,1) block=({b},1,1) lds={l}\n"
    out += '.amdgcn_target "amdgcn-amd-amdhsa--gfx950"\n.text\n'
    for n, A, *_ in kernels:
        out += f".globl {n}\n.p2align 8\n.type {n},@function\n{n}:\n" + A.text()
    out += '.section .rodata,"a"\n'
    for n, A, vg, sg, ac in kernels:
        out += ".p2align 6\n" + kernel_desc(n, vg, sg, ac)
    return out

def team_only(prof=False, force_slow=False, cfg={}):
    A = Asm()
    A("s_and_b32 s3, s2, 7")
    A("s_cmp_lg_u32 s3, 0")
    A("s_cbranch_scc1 K_exit")
    A("s_cmp_ge_u32 s2, 256")
    A("s_cbranch_scc1 K_exit")
    team.team(A, use_flags=False, prof=prof, force_slow=force_slow, cfg=cfg)
    A.label("K_exit")
    A("s_endpgm")
    errs = A.check(verbose=not prof)
    return build([("team_kernel", A, 512, 96, 256)], [("team_kernel", 256, 256, 163840)])

def ln1():
    A = Asm(); ln.ln1_kernel(A); A.check()
    return ("ln1_kernel", A, 64, 32, 64), ("ln1_kernel", 128, 256, 0)

def mega(use_team=True, use_workers=True, flags=True, NW=7, prof=False, cfg={}):
    A = Asm()
    A("s_cmp_ge_u32 s2, 256"); A("s_cbranch_scc1 K_exit")
    A("s_and_b32 s3, s2, 7")
    A("s_cmp_lg_u32 s3, 0")
    A("s_cbranch_scc1 K_work")
    if use_team: team.team(A, use_flags=flags, prof=prof, cfg=cfg)
    A.label("K_exit")
    A("s_endpgm")
    A.label("K_work")
    if use_workers:
        A("s_sub_u32 s3, s3, 1"); A("s_lshl_b32 s3, s3, 5"); A("s_lshr_b32 s5, s2, 3"); A("s_add_u32 s3, s3, s5")
        A(f"s_cmp_ge_u32 s3, {32*NW}"); A("s_cbranch_scc1 K_exit2")
        A(f"s_mul_i32 s4, s3, {(65536 + NW - 1)//NW}"); A("s_lshr_b32 s4, s4, 16")
        A(f"s_mul_i32 s5, s4, {NW}"); A("s_sub_u32 s6, s3, s5")
        worker.worker(A, NW, flags)
        A.label("K_exit2")
    A("s_endpgm")
    A.check(verbose=not prof)
    return ("mega_kernel", A, 512, 96, 256), ("mega_kernel", 256, 256, 163840)

def solo(name, fn, nrole, nrep, lds=163840, vg=512, acc=256):
    A = Asm()
    A(f"s_cmp_ge_u32 s2, {nrole*nrep}"); A(f"s_cbranch_scc1 {name}_exit")
    A(f"s_mul_i32 s5, s2, {(65536 + nrole - 1)//nrole}"); A("s_lshr_b32 s5, s5, 16")
    A(f"s_mul_i32 s4, s5, {nrole}"); A("s_sub_u32 s4, s2, s4")
    fn(A)
    A.label(f"{name}_exit"); A("s_endpgm")
    A.check()
    return (name + "_kernel", A, vg, 96, acc), (name + "_kernel", nrole * nrep, 256, lds)

def t1(cfg={}):
    return assemble([ln1(), mega(cfg=cfg),
        solo("r3", lambda A: post.r3(A, 16, False), 16, 16),
        solo("r4", lambda A: post.r4(A, 64, False), 2, 64, 0, 128, 128),
        solo("r5", lambda A: post.r5(A, 22, False), 11, 22),
        solo("r5b", lambda A: post.r5b(A, 64, False), 2, 64, 0, 128, 128),
        solo("r6", lambda A: post.r6(A, False), 32, 1),
        solo("r7", lambda A: post.r7(A, 64, False), 4, 64)])

def mega3(prof=False, cfg={}):
    NW = 4
    A = Asm()
    A("s_cmp_ge_u32 s2, 256"); A("s_cbranch_scc1 K_exit")
    A("s_and_b32 s3, s2, 7")
    A("s_cmp_lg_u32 s3, 0")
    A("s_cbranch_scc1 K_work")
    team.team(A, use_flags=True, prof=prof, cfg=cfg)
    A.label("K_exit")
    A("s_endpgm")
    A.label("K_work")
    A("s_sub_u32 s3, s3, 1"); A("s_lshl_b32 s3, s3, 5"); A("s_lshr_b32 s5, s2, 3"); A("s_add_u32 s2, s3, s5")
    roles = [("r3", 16, 2, lambda: post.r3(A, 2, True)), ("r6", 32, 1, lambda: post.r6(A, True)),
             ("r5", 11, 2, lambda: post.r5(A, 2, True)), ("r4", 2, 3, lambda: post.r4(A, 3, True)), ("r5b", 2, 2, lambda: post.r5b(A, 2, True))]
    A(f"s_cmp_ge_u32 s2, {32*NW}"); A("s_cbranch_scc1 K_r3")
    A("s_lshr_b32 s4, s2, 2"); A("s_and_b32 s6, s2, 3")
    worker.worker(A, NW, True, osig=True, chain=True)
    A("s_and_b32 s4, s2, 3"); A("s_lshr_b32 s5, s2, 2")
    post.r7(A, 32, True)
    lo = 32 * NW
    for k, (nm, nrole, nrep, fn) in enumerate(roles):
        A.label(f"K_{nm}")
        hi = lo + nrole * nrep
        if k + 1 < len(roles):
            A(f"s_cmp_ge_u32 s2, {hi}"); A(f"s_cbranch_scc1 K_{roles[k+1][0]}")
        A(f"s_sub_u32 s3, s2, {lo}")
        A(f"s_mul_i32 s5, s3, {(65536 + nrole - 1)//nrole}"); A("s_lshr_b32 s5, s5, 16")
        A(f"s_mul_i32 s4, s5, {nrole}"); A("s_sub_u32 s4, s3, s4")
        fn()
        lo = hi
    assert lo == 224
    A.check(verbose=not prof)
    return ("mega_kernel", A, 512, 96, 256), ("mega_kernel", 256, 256, 163840)

def t3(cfg={}):
    return assemble([ln1(), mega3(cfg=cfg, prof=cfg.get('prof', False))])

def assemble(parts):
    return build([p[0] for p in parts], [p[1] for p in parts])

if __name__ == '__main__':
    mode = sys.argv[1]
    if mode == 'team':
        open(sys.argv[2], 'w').write(team_only(prof=("all" if "prof" in sys.argv else False), force_slow='slow' in sys.argv))
    if mode == 'mega':
        open(sys.argv[2], 'w').write(assemble([ln1(), mega()]))
    if mode == 't1':
        open(sys.argv[2], 'w').write(t1({'d1': 20, 'd4': 0}))
    if mode == 't3':
        open(sys.argv[2], 'w').write(t3({'d1': 20, 'd4': 0}))
```

```python
from asmlib import *
NAME = "sequential_preLN__memory_aug_recurrent_mem_tr__mixer_gmlp__prompt"
KA = dict(x=0, mem0=8, Wq=16, Wk=24, Wv=32, Wo=40, seg=48, Bx=56, w_in=64, w_sp=72, b_sp=80, w_out=88, out=96, dbg=104, ws=112)
WS_XN   = 0x0000000
WS_KV   = 0x0200000
WS_KM   = 0x2200000
WS_O    = 0x3200000
WS_INB  = 0x4200000
WS_MEM  = 0x4280000
WS_FLAG = 0x4380000
WS_PROF = 0x4400000
WS_PART = 0x4800000
WS_H    = 0x5800000
WS_HN   = 0x5A00000
WS_Z    = 0x5C00000
SEG_Z   = 176 * 512
WS_WSP  = 0x6800000
SEG_F   = 88 * 512
WS_Y    = 0x6500000
FL_KV   = WS_FLAG
FL_PROG = WS_FLAG + 0x2000
FL_SEG  = WS_FLAG + 0x4000
FL_SEG2 = WS_FLAG + 0x8000
FO_O, FO_P, FO_HN, FO_Z, FO_Y = 0, 32, 0, 8, 19
WS_STAT = WS_FLAG + 0xA000
FL_BYTES = 0xE000
DBG_INIT = 32
N_INIT = 128
DBG_WSP = 36
SPIN_MAX = 40000

def add64(A, d, src, imm):
    A(f"s_add_u32 {s(d)}, {s(src)}, {imm}")
    A(f"s_addc_u32 {s(d+1)}, {s(src+1)}, 0")

class Lane:
    def __init__(self, A, lane, tmp):
        self.A, self.L, self.t = A, lane, tmp
    def acc(self, dst, fields, add=False):
        for k, (lo, n, sh) in enumerate(fields):
            self.A(f"v_bfe_u32 {v(self.t)}, {v(self.L)}, {lo}, {n}")
            if k == 0 and not add: self.A(f"v_lshlrev_b32 {v(dst)}, {sh}, {v(self.t)}")
            else: self.A(f"v_lshl_add_u32 {v(dst)}, {v(self.t)}, {sh}, {v(dst)}")

def seq(A, items):
    for x in items:
        if isinstance(x, (list, tuple)): seq(A, x)
        elif x and x.startswith('!'): A(x[1:], nochk=True)
        elif x: A(x)

def load_weight_units(A, units, vSrc, vTr, sLB, SRD, sOff, sTmp):
    pend = []
    def issue(i):
        setup, off, dst, n = units[i]
        if setup: setup()
        for m in range(n):
            r_, imm = off(m)
            A(f"s_add_u32 m0, {s(sLB)}, {(i % 8) * 4096 + m * 1024}")
            A(f"s_add_u32 {s(sOff)}, {s(r_)}, {imm}")
            A(f"buffer_load_dwordx4 {v(vSrc)}, {s(SRD,4)}, {s(sOff)} offen lds")
    N = len(units)
    for i in range(min(8, N)): issue(i)
    for i in range(N):
        younger = sum(units[k][3] for k in range(i + 1, min(i + 8, N)))
        A(f"s_waitcnt vmcnt({younger})")
        _, _, dst, n = units[i]
        for m in range(n):
            for q in range(2):
                A(f"ds_read_b64_tr_b16 {R(dst+4*m+2*q,2)}, {v(vTr)} offset:{(i%8)*4096+m*1024+q*256}")
        A(f"s_waitcnt lgkmcnt(0)")
        if i + 8 < N: issue(i + 8)

def weight_lane_consts(A, ln, vSrc, vTr, sLB, sStride, tmp2):
    A(f"v_lshrrev_b32 {v(tmp2)}, 2, {v(ln.L)}")
    A(f"v_mul_lo_u32 {v(vSrc)}, {v(tmp2)}, {s(sStride)}")
    ln.acc(vSrc, [(0, 2, 4)], add=True)
    ln.acc(vTr, [(5, 1, 9), (2, 2, 6), (4, 1, 5), (0, 1, 4), (1, 1, 3)])
    A(f"v_add_u32 {v(vTr)}, {s(sLB)}, {v(vTr)}")

TRACE = {'on': False}
sTR = 90
def trace_init(A):
    if not TRACE['on']: return
    A(f"s_load_dwordx2 s[90:91], s[0:1], {KA['ws']}")
    A(f"s_memrealtime s[88:89]")
    A(f"s_lshl_b32 s94, s2, 10")
    A(f"s_add_u32 s94, s94, {WS_PROF + 0x100000}")
    A(f"s_waitcnt lgkmcnt(0)")
    A(f"s_add_u32 s90, s90, s94"); A(f"s_addc_u32 s91, s91, 0")
def trace(A, slot, t, sreg=None, first=False):
    if not TRACE['on']: return
    if not first:
        A(f"s_memrealtime s[92:93]")
    if sreg is None: A(f"s_mov_b32 s94, {4*slot}")
    else:
        A(f"s_lshl_b32 s94, {s(sreg)}, 2"); A(f"s_add_u32 s94, s94, {4*slot}")
    A(f"s_waitcnt lgkmcnt(0)")
    A(f"v_mov_b32 {v(t)}, s94"); A(f"v_mov_b32 {v(t+1)}, {'s88' if first else 's92'}")
    A(f"global_store_dword {v(t)}, {v(t+1)}, s[90:91]")

def wait_init(A, t, sP, sSpin, off=DBG_INIT, n=N_INIT):
    lw, ld = A.newlabel('I_w'), A.newlabel('I_d')
    A(f"s_load_dwordx2 {s(sP,2)}, s[0:1], {KA['dbg']}")
    A(f"v_mov_b32 {v(t)}, {off}")
    A(f"s_mov_b32 {s(sSpin)}, {SPIN_MAX*8}")
    A(f"s_waitcnt lgkmcnt(0)")
    A.label(lw)
    A(f"global_load_dword {v(t+1)}, {v(t)}, {s(sP,2)} sc1")
    A(f"s_waitcnt vmcnt(0)")
    A(f"v_cmp_le_u32 vcc, {n}, {v(t+1)}")
    A(f"s_cbranch_vccnz {ld}")
    A(f"s_sleep 4")
    A(f"s_sub_u32 {s(sSpin)}, {s(sSpin)}, 1")
    A(f"s_cbranch_scc0 {lw}")
    A.label(ld)

def tp(A, k):
    if TRACE['on']: A(f"s_memrealtime s[{64+2*k}:{65+2*k}]")
def tdump(A, n, t, slot=160):
    if not TRACE['on']: return
    A("s_waitcnt lgkmcnt(0)")
    for k in range(n):
        A(f"v_mov_b32 {v(t)}, {4*(slot+k)}"); A(f"v_mov_b32 {v(t+1)}, s{64+2*k}")
        A(f"global_store_dword {v(t)}, {v(t+1)}, s[90:91]")

DBGT = {'on': False}
def dbgt(A, idx, t, neg=False):
    if not DBGT['on']: return
    A(f"s_load_dwordx2 s[84:85], s[0:1], {KA['dbg']}")
    A(f"s_memrealtime s[86:87]")
    A(f"s_waitcnt lgkmcnt(0)")
    A(f"s_and_b32 s86, s86, 0xffffff")
    if neg: A(f"s_sub_u32 s86, 0x1000000, s86")
    A(f"v_mov_b32 {v(t)}, {4*idx}"); A(f"v_mov_b32 {v(t+1)}, s86")
    A(f"s_mov_b64 exec, 1")
    A(f"global_atomic_umax {v(t)}, {v(t+1)}, s[84:85] sc1")
    A(f"s_mov_b64 exec, -1")
```

```python
from common import *
dppadd = lambda r_, n: f"v_add_f32_dpp {v(r_)}, {v(r_)}, {v(r_)} row_ror:{n} row_mask:0xf bank_mask:0xf"

def allreduce(A, r_, t, TPW):
    n = TPW
    while n < 16:
        A("s_nop 1"); A(dppadd(r_, n)); n *= 2
    for op in ('v_permlane16_swap_b32', 'v_permlane32_swap_b32'):
        A(f"v_mov_b32 {v(t)}, {v(r_)}")
        A("s_nop 1")
        A(f"{op} {v(r_)}, {v(t)}")
        A(f"v_add_f32 {v(r_)}, {v(r_)}, {v(t)}")

def unpack(A, dst, src, n):
    for i in range(n):
        A(f"v_lshlrev_b32 {v(dst+2*i)}, 16, {v(src+i)}")
        A(f"v_and_b32 {v(dst+2*i+1)}, 0xffff0000, {v(src+i)}")

def rnd1(A, r_):
    A(f"v_cvt_pk_bf16_f32 {v(r_)}, {v(r_)}, {v(r_)}")
    A(f"v_and_b32 {v(r_)}, 0xffff0000, {v(r_)}")

def ln_core(A, X, n, D, TPW, out, t, tailmask=None, ntail=0):
    s0, s1, m, mb = t, t + 1, t + 2, t + 3
    A(f"v_add_f32 {v(s0)}, {v(X)}, {v(X+1)}")
    A(f"v_add_f32 {v(s1)}, {v(X+2)}, {v(X+3)}")
    for i in range(4, n): A(f"v_add_f32 {v(s0+i%2)}, {v(s0+i%2)}, {v(X+i)}")
    A(f"v_add_f32 {v(s0)}, {v(s0)}, {v(s1)}")
    allreduce(A, s0, s1, TPW)
    import struct
    inv = struct.unpack('<I', struct.pack('<f', 1.0 / D))[0]
    A(f"v_mul_f32 {v(m)}, {hex(inv)}, {v(s0)}")
    A(f"v_mov_b32 {v(mb)}, {v(m)}")
    rnd1(A, mb)
    A(f"v_mov_b32 {v(s0)}, 0"); A(f"v_mov_b32 {v(s1)}, 0")
    d = t + 4
    for i in range(n):
        if tailmask is not None and i == n - ntail: A(f"s_mov_b64 exec, {s(tailmask,2)}")
        A(f"v_sub_f32 {v(d+i%2)}, {v(X+i)}, {v(m)}")
        A(f"v_fmac_f32 {v(s0+i%2)}, {v(d+i%2)}, {v(d+i%2)}")
    if tailmask is not None: A(f"s_mov_b64 exec, -1")
    A(f"v_add_f32 {v(s0)}, {v(s0)}, {v(s1)}")
    allreduce(A, s0, s1, TPW)
    A(f"v_mul_f32 {v(s0)}, {hex(inv)}, {v(s0)}")
    rnd1(A, s0)
    A(f"v_add_f32 {v(s0)}, 0x3727c5ac, {v(s0)}")
    rnd1(A, s0)
    A(f"v_sqrt_f32 {v(s0)}, {v(s0)}")
    A(f"s_nop 0")
    rnd1(A, s0)
    A(f"v_rcp_f32 {v(s0)}, {v(s0)}")
    for i in range(0, n, 2):
        A(f"v_sub_f32 {v(X+i)}, {v(X+i)}, {v(mb)}")
        A(f"v_sub_f32 {v(X+i+1)}, {v(X+i+1)}, {v(mb)}")
        A(f"v_cvt_pk_bf16_f32 {v(d)}, {v(X+i)}, {v(X+i+1)}")
        A(f"v_lshlrev_b32 {v(X+i)}, 16, {v(d)}")
        A(f"v_and_b32 {v(X+i+1)}, 0xffff0000, {v(d)}")
        A(f"v_mul_f32 {v(X+i)}, {v(X+i)}, {v(s0)}")
        A(f"v_mul_f32 {v(X+i+1)}, {v(X+i+1)}, {v(s0)}")
        A(f"v_cvt_pk_bf16_f32 {v(out+i//2)}, {v(X+i)}, {v(X+i+1)}")

def ln1_body(A, sD):
    TPW = 4
    A(f"s_load_dwordx2 s[10:11], s[0:1], {KA['x']}")
    A(f"s_load_dwordx2 s[12:13], s[0:1], {KA['ws']}")
    A(f"s_load_dwordx2 s[14:15], s[0:1], {KA['dbg']}")
    ln = Lane(A, 0, 2)
    ln.acc(3, [(6, 2, 12), (0, 2, 10), (2, 4, 4)])
    ln.acc(4, [(2, 4, 9), (6, 2, 6), (0, 2, 4)])
    A(f"s_lshl_b32 s8, {s(sD)}, 14")
    A(f"s_lshr_b32 s9, {s(sD)}, 1"); A("s_lshl_b32 s9, s9, 15"); A(f"s_and_b32 s7, {s(sD)}, 1"); A("s_lshl_b32 s7, s7, 8"); A("s_add_u32 s9, s9, s7")
    A("s_waitcnt lgkmcnt(0)")
    add64(A, 10, 10, "s8")
    for j in range(4): A(f"global_load_dwordx4 {v(16+4*j,4)}, v3, s[10:11] offset:{256*j}")
    A(f"s_cmp_lg_u32 {s(sD)}, 0"); A("s_cbranch_scc1 LN1_nf")
    A("v_lshlrev_b32 v5, 4, v0")
    A("v_mov_b64 v[8:9], 0"); A("v_mov_b64 v[10:11], 0")
    for q in range(FL_BYTES // 4096):
        add64(A, 16, 12, WS_FLAG + 4096 * q)
        A(f"global_store_dwordx4 v5, v[8:11], s[16:17] sc1")
    A.label("LN1_nf")
    add64(A, 12, 12, "s9")
    if WS_XN: add64(A, 12, 12, WS_XN)
    A("s_waitcnt vmcnt(0)")
    unpack(A, 32, 16, 16)
    ln_core(A, 32, 32, 512, TPW, 16, 8)
    for j in range(4):
        A(f"global_store_dwordx4 v4, {v(16+4*j,4)}, s[12:13] sc1")
        if j < 3: add64(A, 12, 12, 8192)
    A("s_waitcnt vmcnt(0)")
    A("s_barrier")
    A("v_cmp_eq_u32 vcc, 0, v0")
    A(f"v_mov_b32 v8, {DBG_INIT}"); A("v_mov_b32 v9, 1")
    A("s_and_saveexec_b64 s[16:17], vcc")
    A("s_cbranch_execz LN1_ns")
    A("global_atomic_add v8, v9, s[14:15] sc1")
    A.label("LN1_ns")
    A("s_mov_b64 exec, -1")
```

```python
from common import *
import ln, struct, math
f2u = lambda x: hex(struct.unpack('<I', struct.pack('<f', x))[0])
sW, sRole, sSeg, sTmp, sTmp2, sSpin = 3, 4, 5, 6, 7, 8
sWS, sA, sB, sIn, sOut, sFl, sMask, sP1, sP2, sGot, sFs = 10, 12, 14, 16, 18, 20, 22, 24, 26, 28, 30
SRD, sLB, sOff, sCol, sStride, sBuf, sNx, sFo = 32, 36, 37, 38, 39, 40, 41, 42
vL16, vL4, vPoll, T = 0, 1, 7, 8
L, tb = 16, 17
WOUT = 256

def start(A, ptrs):
    A(f"v_lshrrev_b32 {v(T)}, 6, v0")
    A(f"s_load_dwordx2 {s(sWS,2)}, s[0:1], {KA['ws']}")
    for r_, k in ptrs: A(f"s_load_dwordx2 {s(r_,2)}, s[0:1], {KA[k]}")
    A(f"v_readfirstlane_b32 {s(sW)}, {v(T)}")
    A(f"v_and_b32 {v(L)}, 63, v0")
    A(f"v_lshlrev_b32 {v(vL16)}, 4, {v(L)}")
    A(f"v_lshlrev_b32 {v(vL4)}, 2, {v(L)}")
    A(f"s_lshl_b32 {s(sLB)}, {s(sW)}, 15")
    return Lane(A, L, tb)

def relane(A):
    A(f"v_lshrrev_b32 {v(L)}, 4, {v(vL16)}")
    return Lane(A, L, tb)

def base(A, dst, terms, imm, src=sWS):
    A(f"s_mov_b32 {s(sTmp2)}, {imm}")
    for r_, mul in terms:
        A(f"s_mul_i32 {s(sTmp)}, {s(r_)}, {mul}")
        A(f"s_add_u32 {s(sTmp2)}, {s(sTmp2)}, {s(sTmp)}")
    add64(A, dst, src, s(sTmp2))

def seg_addr(A, dst, src, sS, stride):
    A(f"s_mul_i32 {s(sTmp)}, {s(sS)}, {stride}")
    add64(A, dst, src, s(sTmp))

def poll_issue(A, sS, stride):
    seg_addr(A, sB, sFl, sS, stride)
    A(f"global_load_dword {v(vPoll)}, {v(vL4)}, {s(sB,2)} sc1")

def poll_finish(A, sleep=1, landed=False):
    lw, ld = A.newlabel('P_w'), A.newlabel('P_d')
    A(f"s_mov_b32 {s(sSpin)}, {SPIN_MAX*8}")
    if not landed: A(f"s_waitcnt vmcnt(0)")
    A.label(lw)
    A(f"v_cmp_ne_u32 {s(sGot,2)}, 0, {v(vPoll)}")
    A(f"s_nop 3")
    A(f"s_andn2_b64 {s(sGot,2)}, {s(sMask,2)}, {s(sGot,2)}")
    A(f"s_cbranch_scc0 {ld}")
    if sleep: A(f"s_sleep {sleep}")
    A(f"global_load_dword {v(vPoll)}, {v(vL4)}, {s(sB,2)} sc1")
    A(f"s_sub_u32 {s(sSpin)}, {s(sSpin)}, 1")
    A(f"s_waitcnt vmcnt(0)")
    A(f"s_cbranch_scc0 {lw}")
    A.label(ld)
    tp(A, 0)

def finish_seg(A, name, step, stride_in, stride_out):
    tp(A, 3)
    A(f"s_add_u32 {s(sNx)}, {s(sSeg)}, {step}")
    poll_issue(A, sNx, stride_in)
    A(f"s_mul_i32 {s(sTmp)}, {s(sSeg)}, {stride_out}")
    A(f"v_mov_b32 {v(T)}, {s(sTmp)}"); A(f"v_mov_b32 {v(T+1)}, 1")
    A(f"s_waitcnt vmcnt(1)")
    A(f"s_barrier")
    nf = A.newlabel('P_nf')
    A(f"s_cmp_lg_u32 {s(sW)}, 3"); A(f"s_cbranch_scc1 {nf}")
    A(f"global_store_dword {v(T)}, {v(T+1)}, {s(sFs,2)} sc1")
    A(f"s_waitcnt vmcnt(1)")
    A(f"s_branch {nf}j")
    A.label(nf)
    A(f"s_waitcnt vmcnt(0)")
    A.label(nf + "j")
    tp(A, 4)
    trace(A, 8, T, sSeg)
    if TRACE['on']:
        sk = A.newlabel('P_tk')
        A(f"s_cmp_gt_u32 {s(sSeg)}, 9"); A(f"s_cbranch_scc1 {sk}")
        tdump(A, 5, T)
        A.label(sk)
    A(f"s_mov_b32 {s(sSeg)}, {s(sNx)}")
    A(f"s_cmp_lt_u32 {s(sSeg)}, 64")
    A(f"s_cbranch_scc1 {name}_loop")
    A(f"s_branch R7_run")

def srd(A, ptr, nbytes):
    A(f"s_mov_b32 {s(SRD)}, {s(ptr)}"); A(f"s_and_b32 {s(SRD+1)}, {s(ptr+1)}, 0xffff")
    A(f"s_mov_b32 {s(SRD+2)}, {nbytes}"); A(f"s_mov_b32 {s(SRD+3)}, 0x20000")

def ws_weights(A, lane, stride, nk, W):
    A(f"s_mov_b32 {s(sStride)}, {stride}")
    weight_lane_consts(A, lane, 18, 19, sLB, sStride, 20)
    units = []
    for u in range((nk + 3) // 4):
        units.append((None, (lambda m, u=u: (sCol, (64*u + 16*m) * stride)), W + 16*u, min(4, nk - 4*u)))
    load_weight_units(A, units, 18, 19, sLB, SRD, sOff, sTmp)
    A(f"s_barrier")

def act_dma(A, nk, sS, segstride):
    seg_addr(A, sA, sIn, sS, segstride)
    A(f"s_lshl_b32 {s(sTmp2)}, {s(sW)}, 10")
    n = (nk + 3) // 4
    skip = None
    for q in range(n):
        if 4 * q + 3 >= nk:
            skip = A.newlabel('P_sk')
            A(f"s_cmp_ge_u32 {s(sW)}, {nk - 4*q}"); A(f"s_cbranch_scc1 {skip}")
        A(f"s_add_u32 m0, {s(sTmp2)}, {4096*q}")
        if q: add64(A, sA, sA, 4096)
        else: A("s_nop 0")
        A(f"global_load_lds_dwordx4 {v(vL16)}, {s(sA,2)} sc1")
    if skip: A.label(skip)

def gemm_core(A, nk, W, ACC, cuts):
    XF = 16
    n = (nk + 3) // 4
    slack = 0 if nk % 4 == 0 else 1
    gate = {0: cuts[0]}
    for a_, b_ in zip(cuts, cuts[1:] + [n]): gate[4 * a_] = b_
    def rd(k):
        if k in gate:
            A(f"s_waitcnt vmcnt({max(0, n - gate[k] - slack)})")
            A(f"s_barrier")
            if k == 0: tp(A, 1)
        A(f"ds_read_b128 {v(XF+4*(k%8),4)}, {v(vL16)} offset:{1024*k}")
    for k in range(6): rd(k)
    for k in range(nk):
        A(f"s_waitcnt lgkmcnt({min(5, nk-1-k)})")
        A(f"v_mfma_f32_32x32x16_bf16 {v(ACC,16)}, {R(W+4*k,4)}, {v(XF+4*(k%8),4)}, {v(ACC,16) if k else 0}")
        if k + 6 < nk: rd(k + 6)
    tp(A, 2)

def first_poll(A, stride):
    wait_init(A, T, sA, sSpin)
    trace(A, 0, T, first=True); trace(A, 1, T)
    poll_issue(A, sSeg, stride)
    A(f"s_waitcnt vmcnt(0)")

def r3(A, step):
    A(f"s_load_dwordx2 {s(sP1,2)}, s[0:1], {KA['Wo']}")
    lane = relane(A)
    A(f"s_lshr_b32 {s(sNx)}, {s(sRole)}, 2")
    A(f"s_and_b32 {s(sBuf)}, {s(sRole)}, 3")
    A(f"s_waitcnt lgkmcnt(0)")
    srd(A, sP1, 0x400000)
    A(f"s_lshl_b32 {s(sCol)}, {s(sNx)}, 19"); A(f"s_lshl_b32 {s(sTmp)}, {s(sBuf)}, 8"); A(f"s_add_u32 {s(sCol)}, {s(sCol)}, {s(sTmp)}")
    A(f"s_lshl_b32 {s(sTmp)}, {s(sW)}, 6"); A(f"s_add_u32 {s(sCol)}, {s(sCol)}, {s(sTmp)}")
    base(A, sIn, [(sNx, 32768), (sW, 1024)], WS_O)
    base(A, sOut, [(sRole, 8192), (sW, 2048)], WS_PART)
    base(A, sFl, [], FL_SEG)
    base(A, sFs, [(sRole, 4)], FL_SEG + 4 * FO_P)
    A(f"s_lshl_b32 {s(sTmp)}, {s(sNx)}, 2"); A(f"s_lshl_b64 {s(sMask,2)}, 0xf, {s(sTmp)}")
    ws_weights(A, lane, 1024, 32, 128)
    first_poll(A, 256)
    ACC = 48
    A.label("R3_loop")
    poll_finish(A, landed=True)
    act_dma(A, 32, sSeg, 262144)
    gemm_core(A, 32, 128, ACC, [3, 5])
    seg_addr(A, sA, sOut, sSeg, 262144)
    A("s_nop 8")
    for i in range(8): A(f"v_cvt_pk_bf16_f32 {v(64+i)}, {v(ACC+2*i)}, {v(ACC+2*i+1)}")
    A(f"global_store_dwordx4 {v(vL16)}, {v(64,4)}, {s(sA,2)} sc1")
    A(f"global_store_dwordx4 {v(vL16)}, {v(68,4)}, {s(sA,2)} offset:1024 sc1")
    finish_seg(A, "R3", step, 256, 256)

def stats_finish(A, S, D, mb, rs):
    A(f"v_mul_f32 {v(mb)}, {f2u(1.0/D)}, {v(S)}")
    A(f"v_mul_f32 {v(rs)}, {f2u(1.0/D)}, {v(S+1)}")
    A(f"v_fma_f32 {v(rs)}, -{v(mb)}, {v(mb)}, {v(rs)}")
    A(f"v_max_f32 {v(rs)}, 0, {v(rs)}")
    A(f"v_cvt_pk_bf16_f32 {v(S)}, {v(mb)}, {v(rs)}")
    A(f"v_lshlrev_b32 {v(mb)}, 16, {v(S)}")
    A(f"v_and_b32 {v(rs)}, 0xffff0000, {v(S)}")
    A(f"v_add_f32 {v(rs)}, 0x3727c5ac, {v(rs)}")
    ln.rnd1(A, rs)
    A(f"v_sqrt_f32 {v(rs)}, {v(rs)}")
    A(f"s_nop 0")
    ln.rnd1(A, rs)
    A(f"v_rcp_f32 {v(rs)}, {v(rs)}")

def normalize8(A, X, out, mb, rs):
    for i in range(4): A(f"v_pk_add_f32 {v(X+2*i,2)}, {v(X+2*i,2)}, {v(mb,2)} op_sel_hi:[1,0] neg_lo:[0,1] neg_hi:[0,1]")
    for i in range(4): A(f"v_cvt_pk_bf16_f32 {v(out+i)}, {v(X+2*i)}, {v(X+2*i+1)}")
    ln.unpack(A, X, out, 4)
    for i in range(4): A(f"v_pk_mul_f32 {v(X+2*i,2)}, {v(X+2*i,2)}, {v(rs,2)} op_sel_hi:[1,0]")
    for i in range(4): A(f"v_cvt_pk_bf16_f32 {v(out+i)}, {v(X+2*i)}, {v(X+2*i+1)}")

def r4(A, step):
    A(f"s_load_dwordx2 {s(sP1,2)}, s[0:1], {KA['x']}")
    lane = relane(A)
    vC, vX, vSW, vSR = 2, 3, 4, 5
    lane.acc(vC, [(2, 4, 9), (0, 2, 4)])
    lane.acc(vX, [(0, 2, 10), (2, 4, 4)])
    lane.acc(vSR, [(0, 2, 5)])
    A(f"s_lshl_b32 {s(sTmp)}, {s(sW)}, 3"); A(f"v_add_u32 {v(vSW)}, {s(sTmp)}, {v(vSR)}")
    A(f"s_waitcnt lgkmcnt(0)")
    base(A, sIn, [(sRole, 64), (sW, 8192)], WS_PART)
    base(A, sOut, [(sRole, 64), (sW, 8192)], WS_H)
    base(A, sP2, [(sRole, 4096), (sW, 256)], 0, sP1)
    base(A, sFl, [], FL_SEG)
    base(A, sFs, [(sRole, 4)], FL_SEG2 + 4 * FO_HN)
    A(f"s_mov_b32 {s(sMask)}, 0"); A(f"s_mov_b32 {s(sMask+1)}, -1")
    first_poll(A, 256)
    XR, PR, X, U, S, MB, RS = 16, 20, 52, 60, 68, 78, 80
    A.label("R4_loop")
    seg_addr(A, sA, sP2, sSeg, 32768)
    A(f"global_load_dwordx4 {v(XR,4)}, {v(vX)}, {s(sA,2)}")
    poll_finish(A, landed=True)
    seg_addr(A, sA, sIn, sSeg, 262144)
    for p in range(8):
        A(f"global_load_dwordx4 {v(PR+4*p,4)}, {v(vC)}, {s(sA,2)} sc1")
        if p < 7: add64(A, sA, sA, 32768)
    seg_addr(A, sA, sOut, sSeg, 32768)
    A(f"s_waitcnt vmcnt(7)")
    ln.unpack(A, X, PR, 4)
    for p in range(1, 8):
        A(f"s_waitcnt vmcnt({7-p})")
        ln.unpack(A, U, PR + 4 * p, 4)
        for i in range(4): A(f"v_pk_add_f32 {v(X+2*i,2)}, {v(X+2*i,2)}, {v(U+2*i,2)}")
    tp(A, 1)
    for i in range(4): A(f"v_cvt_pk_bf16_f32 {v(PR+i)}, {v(X+2*i)}, {v(X+2*i+1)}")
    ln.unpack(A, X, PR, 4)
    ln.unpack(A, U, XR, 4)
    for i in range(4): A(f"v_pk_add_f32 {v(X+2*i,2)}, {v(X+2*i,2)}, {v(U+2*i,2)}")
    for i in range(4): A(f"v_cvt_pk_bf16_f32 {v(PR+4+i)}, {v(X+2*i)}, {v(X+2*i+1)}")
    A(f"global_store_dwordx4 {v(vC)}, {v(PR+4,4)}, {s(sA,2)} sc1")
    ln.unpack(A, X, PR + 4, 4)
    A(f"v_pk_add_f32 {v(U,2)}, {v(X,2)}, {v(X+2,2)}")
    A(f"v_pk_mul_f32 {v(U+2,2)}, {v(X,2)}, {v(X,2)}")
    for i in range(1, 4): A(f"v_pk_fma_f32 {v(U+2,2)}, {v(X+2*i,2)}, {v(X+2*i,2)}, {v(U+2,2)}")
    for i in range(2, 4): A(f"v_pk_add_f32 {v(U,2)}, {v(U,2)}, {v(X+2*i,2)}")
    A(f"v_add_f32 {v(S+1)}, {v(U+2)}, {v(U+3)}")
    A(f"v_add_f32 {v(S)}, {v(U)}, {v(U+1)}")
    for n in (4, 8):
        A("s_nop 0"); A(ln.dppadd(S + 1, n)); A(ln.dppadd(S, n))
    for op in ('v_permlane16_swap_b32', 'v_permlane32_swap_b32'):
        A(f"v_mov_b64 {v(U,2)}, {v(S,2)}")
        A("s_nop 1")
        A(f"{op} {v(S)}, {v(U)}"); A(f"{op} {v(S+1)}, {v(U+1)}")
        A(f"v_pk_add_f32 {v(S,2)}, {v(S,2)}, {v(U,2)}")
    A(f"ds_write_b64 {v(vSW)}, {v(S,2)}")
    add64(A, sA, sA, WS_HN - WS_H)
    A(f"s_waitcnt lgkmcnt(0)")
    A(f"s_barrier")
    tp(A, 2)
    A(f"ds_read_b128 {v(U,4)}, {v(vSR)}")
    A(f"ds_read_b128 {v(U+4,4)}, {v(vSR)} offset:16")
    A(f"s_waitcnt lgkmcnt(0)")
    A(f"v_pk_add_f32 {v(U,2)}, {v(U,2)}, {v(U+2,2)}")
    A(f"v_pk_add_f32 {v(U+4,2)}, {v(U+4,2)}, {v(U+6,2)}")
    A(f"v_pk_add_f32 {v(S,2)}, {v(U,2)}, {v(U+4,2)}")
    stats_finish(A, S, 512, MB, RS)
    normalize8(A, X, PR + 8, MB, RS)
    A(f"global_store_dwordx4 {v(vC)}, {v(PR+8,4)}, {s(sA,2)} sc1")
    finish_seg(A, "R4", step, 256, 128)

def r5(A, step):
    A(f"s_load_dwordx2 {s(sP1,2)}, s[0:1], {KA['w_in']}")
    lane = relane(A)
    sQ, sK1, sHalf, sSt = 44, 45, 46, 48
    vSt = 2
    lane.acc(vSt, [(0, 5, 3), (5, 1, 2)])
    A(f"s_lshl_b32 {s(sQ)}, {s(sRole)}, 2"); A(f"s_add_u32 {s(sQ)}, {s(sQ)}, {s(sW)}")
    A(f"s_lshl_b32 {s(sCol)}, {s(sQ)}, 6")
    A(f"s_cmp_ge_u32 {s(sQ)}, 22"); A(f"s_cselect_b32 {s(sTmp)}, 32, 0"); A(f"s_sub_u32 {s(sCol)}, {s(sCol)}, {s(sTmp)}")
    A(f"s_cmp_eq_u32 {s(sQ)}, 43"); A(f"s_cselect_b32 {s(sHalf)}, 0, -1")
    A(f"s_waitcnt lgkmcnt(0)")
    srd(A, sP1, 512 * 2752)
    base(A, sIn, [(sW, 1024)], WS_HN)
    base(A, sOut, [(sQ, 2048)], WS_Z)
    base(A, sFl, [], FL_SEG2)
    base(A, sFs, [(sRole, 4)], FL_SEG2 + 4 * FO_Z)
    base(A, sSt, [], WS_STAT)
    A(f"s_mov_b64 {s(sMask,2)}, 0xff")
    ws_weights(A, lane, 2752, 32, 128)
    k0 = -2.0 * math.log2(math.e) * math.sqrt(2.0 / math.pi)
    A(f"v_mov_b32 {v(4)}, {f2u(k0)}")
    A(f"v_mov_b32 {v(5)}, {f2u(k0 * 0.044715)}")
    first_poll(A, 128)
    ACC, U, PK = 48, 64, 80
    A.label("R5_loop")
    poll_finish(A, landed=True)
    act_dma(A, 32, sSeg, 32768)
    gemm_core(A, 32, 128, ACC, [3, 5])
    seg_addr(A, sA, sOut, sSeg, SEG_Z)
    A("s_nop 8")
    for i in range(8): A(f"v_cvt_pk_bf16_f32 {v(PK+i)}, {v(ACC+2*i)}, {v(ACC+2*i+1)}")
    ln.unpack(A, ACC, PK, 8)
    P2 = lambda r_, i: v(r_ + 2 * i, 2)
    for i in range(8): A(f"v_pk_mul_f32 {P2(U,i)}, {P2(ACC,i)}, {P2(ACC,i)}")
    for i in range(8): A(f"v_pk_fma_f32 {P2(U,i)}, {P2(U,i)}, {v(4,2)}, {v(4,2)} op_sel:[0,1,0] op_sel_hi:[1,1,0]")
    for i in range(8): A(f"v_pk_mul_f32 {P2(U,i)}, {P2(U,i)}, {P2(ACC,i)}")
    for i in range(16): A(f"v_exp_f32 {v(U+i)}, {v(U+i)}")
    for i in range(8): A(f"v_pk_add_f32 {P2(U,i)}, {P2(U,i)}, 1.0 op_sel_hi:[1,0]")
    for i in range(16): A(f"v_rcp_f32 {v(U+i)}, {v(U+i)}")
    for i in range(8): A(f"v_pk_mul_f32 {P2(U,i)}, {P2(U,i)}, {P2(ACC,i)}")
    for i in range(8): A(f"v_cvt_pk_bf16_f32 {v(PK+i)}, {v(U+2*i)}, {v(U+2*i+1)}")
    A(f"global_store_dwordx4 {v(vL16)}, {v(PK,4)}, {s(sA,2)} sc1")
    A(f"global_store_dwordx4 {v(vL16)}, {v(PK+4,4)}, {s(sA,2)} offset:1024 sc1")
    A(f"s_cmp_lt_u32 {s(sQ)}, 22"); A(f"s_cbranch_scc1 R5_nost")
    for i in range(4): A(f"v_and_b32 {v(ACC+i)}, {s(sHalf)}, {v(PK+4+i)}")
    ln.unpack(A, U, PK, 4)
    ln.unpack(A, U + 8, ACC, 4)
    S1, S2 = ACC + 4, ACC + 6
    A(f"v_pk_add_f32 {v(S1,2)}, {P2(U,0)}, {P2(U,1)}")
    A(f"v_pk_mul_f32 {v(S2,2)}, {P2(U,0)}, {P2(U,0)}")
    for i in range(1, 8):
        A(f"v_pk_fma_f32 {v(S2,2)}, {P2(U,i)}, {P2(U,i)}, {v(S2,2)}")
        if i > 1: A(f"v_pk_add_f32 {v(S1,2)}, {v(S1,2)}, {P2(U,i)}")
    A(f"v_add_f32 {v(S1)}, {v(S1)}, {v(S1+1)}")
    A(f"v_add_f32 {v(S2)}, {v(S2)}, {v(S2+1)}")
    seg_addr(A, sA, sSt, sSeg, 256)
    A(f"v_permlane32_swap_b32 {v(S1)}, {v(S2)}")
    A(f"v_add_f32 {v(S1)}, {v(S1)}, {v(S2)}")
    A(f"global_atomic_add_f32 {v(vSt)}, {v(S1)}, {s(sA,2)} sc1")
    A.label("R5_nost")
    finish_seg(A, "R5", step, 128, 128)

def r6(A):
    A(f"s_load_dwordx2 {s(sP1,2)}, s[0:1], {KA['w_sp']}")
    A(f"s_load_dwordx2 {s(sP2,2)}, s[0:1], {KA['b_sp']}")
    lane = relane(A)
    vSW, vSt, vR0, vR1, vWs = 2, 3, 4, 5, 6
    sT0, sFg, sWsp, sSt, sZ1 = 44, 45, 46, 54, 56
    A(f"s_mul_i32 {s(sT0)}, {s(sRole)}, 5958"); A(f"s_lshr_b32 {s(sT0)}, {s(sT0)}, 16")
    A(f"s_mul_i32 {s(sFg)}, {s(sT0)}, 11"); A(f"s_sub_u32 {s(sFg)}, {s(sRole)}, {s(sFg)}")
    A(f"s_lshl_b32 {s(sT0)}, {s(sT0)}, 2"); A(f"s_add_u32 {s(sT0)}, {s(sT0)}, {s(sW)}"); A(f"s_lshl_b32 {s(sT0)}, {s(sT0)}, 2")
    lane.acc(vSW, [(5, 1, 6)])
    A(f"v_xor_b32 {v(vSW)}, {v(vSW)}, {v(vL16)}")
    A(f"s_and_b32 {s(sTmp)}, {s(sW)}, 1"); A(f"s_lshl_b32 {s(sTmp)}, {s(sTmp)}, 7")
    A(f"v_xor_b32 {v(vSW)}, {s(sTmp)}, {v(vSW)}")
    A(f"s_lshl_b32 {s(sTmp)}, {s(sW)}, 10"); A(f"v_add_u32 {v(vSW)}, {s(sTmp)}, {v(vSW)}")
    lane.acc(vSt, [(0, 5, 3)])
    lane.acc(vR0, [(5, 1, 7), (2, 2, 4)])
    lane.acc(vR1, [(0, 1, 6), (4, 1, 7)])
    A(f"v_xor_b32 {v(vR0)}, {v(vR0)}, {v(vR1)}")
    lane.acc(vR0, [(4, 1, 10), (0, 1, 9), (1, 1, 3)], add=True)
    A(f"v_xor_b32 {v(vR1)}, 64, {v(vR0)}")
    lane.acc(vWs, [(0, 5, 12), (5, 1, 4)])
    lane.acc(T, [(0, 5, 1)])
    A(f"s_waitcnt lgkmcnt(0)")
    base(A, sIn, [(sFg, 4096), (sW, 1024)], WS_Z + SEG_F)
    base(A, sZ1, [(sFg, 4096)], WS_Z)
    for j in range(4): base(A, sWsp + 2 * j, [(sT0, 131072)], 131072 * j, sP1)
    base(A, sFl, [], FL_SEG2)
    base(A, sSt, [], WS_STAT)
    base(A, sA, [(sT0, 64)], 0, sP2)
    A(f"s_mov_b64 {s(sMask,2)}, {0x7ff << FO_Z}")
    ACC, WB, Z1, AF, ZR, X, S, MB, RS = 128, 256 + 176, 64, 16, 32, 40, 36, 48, 50
    for j in range(4): A(f"global_load_ushort {v(20+j)}, {v(T)}, {s(sA,2)} offset:{64*j}")
    A(f"s_load_dwordx2 {s(sP2,2)}, s[0:1], {KA['dbg']}")
    base(A, sOut, [(sT0, 131072)], WS_WSP)
    A(f"s_mov_b32 {s(sNx)}, {s(sFg)}")
    A.label("R6_fmt")
    A(f"s_lshl_b32 {s(sTmp)}, {s(sNx)}, 6"); A(f"v_add_u32 {v(T+2)}, {s(sTmp)}, {v(vWs)}")
    A(f"s_lshl_b32 {s(sTmp)}, {s(sNx)}, 11"); A(f"v_add_u32 {v(T+3)}, {s(sTmp)}, {v(vL16)}")
    for j in range(4):
        for k in range(2):
            A(f"global_load_dwordx4 {v(Z1+8*j+4*k,4)}, {v(T+2)}, {s(sWsp+2*j,2)} offset:{32*k}")
    for j in range(4):
        A(f"s_waitcnt vmcnt({6})")
        for k in range(2):
            A(f"global_store_dwordx4 {v(T+3)}, {v(Z1+8*j+4*k,4)}, {s(sOut,2)} offset:{1024*k} sc1")
        A(f"v_add_u32 {v(T+3)}, 131072, {v(T+3)}")
    A(f"s_add_u32 {s(sNx)}, {s(sNx)}, 11")
    A(f"s_cmp_lt_u32 {s(sNx)}, 64"); A(f"s_cbranch_scc1 R6_fmt")
    A(f"v_mov_b32 {v(T+2)}, {DBG_WSP}"); A(f"v_mov_b32 {v(T+3)}, 1")
    A(f"s_waitcnt vmcnt(0) lgkmcnt(0)")
    A(f"s_mov_b64 exec, 1")
    A(f"global_atomic_add {v(T+2)}, {v(T+3)}, {s(sP2,2)} sc1")
    A(f"s_mov_b64 exec, -1")
    wait_init(A, T, sA, sSpin, DBG_WSP, 176)
    for j in range(4): add64(A, sWsp + 2 * j, sOut, 131072 * j)
    A(f"v_mov_b32 {v(vWs)}, {v(vL16)}")
    def wsp(setn):
        for j in range(4):
            for k in range(2):
                A(f"global_load_dwordx4 {R(WB+32*setn+8*j+4*k,4)}, {v(vWs)}, {s(sWsp+2*j,2)} offset:{1024*k} sc1")
        A(f"v_add_u32 {v(vWs)}, 2048, {v(vWs)}")
    wsp(0)
    for j in range(4):
        A(f"v_lshlrev_b32 {v(20+j)}, 16, {v(20+j)}")
        for i in range(32): A(f"v_mov_b32 {v(ACC+32*j+i)}, {v(20+j)}")
    A(f"s_mov_b32 {s(sSeg)}, 0")
    first_poll(A, 128)
    A.label("R6_loop")
    for par in range(2):
        poll_finish(A)
        seg_addr(A, sA, sIn, sSeg, SEG_Z)
        A(f"global_load_dwordx4 {v(ZR,4)}, {v(vL16)}, {s(sA,2)} sc1")
        seg_addr(A, sA, sSt, sSeg, 256)
        A(f"global_load_dwordx2 {v(S,2)}, {v(vSt)}, {s(sA,2)} sc1")
        A(f"s_waitcnt vmcnt(0)")
        tp(A, 1)
        A(f"s_sub_u32 {s(sTmp2)}, {s(sSeg)}, {s(sT0)}")
        nz = A.newlabel('R6_nz')
        A(f"s_cmp_ge_u32 {s(sTmp2)}, 4"); A(f"s_cbranch_scc1 {nz}")
        seg_addr(A, sA, sZ1, sSeg, SEG_Z)
        for j in range(4):
            nj = A.newlabel('R6_nj')
            A(f"s_cmp_lg_u32 {s(sTmp2)}, {j}"); A(f"s_cbranch_scc1 {nj}")
            for q in range(4): A(f"global_load_dwordx4 {v(Z1+16*j+4*q,4)}, {v(vL16)}, {s(sA,2)} offset:{1024*q} sc1")
            A.label(nj)
        A.label(nz)
        stats_finish(A, S, 688, MB, RS)
        ln.unpack(A, X, ZR, 4)
        normalize8(A, X, ZR, MB, RS)
        A(f"ds_write_b128 {v(vSW)}, {v(ZR,4)} offset:{4096*par}")
        nw = A.newlabel('R6_nw')
        if par:
            A(f"s_cmp_eq_u32 {s(sSeg)}, 63"); A(f"s_cbranch_scc1 {nw}")
        wsp(1 - par)
        A(f"s_add_u32 {s(sNx)}, {s(sSeg)}, 1")
        poll_issue(A, sNx, 128)
        A.label(nw)
        A(f"s_waitcnt lgkmcnt(0)")
        A(f"s_barrier")
        tp(A, 2)
        for i in range(4):
            f, k = i // 2, i % 2
            A(f"ds_read_b64_tr_b16 {v(AF+4*i,2)}, {v(vR0)} offset:{4096*par+2048*f+256*k}")
            A(f"ds_read_b64_tr_b16 {v(AF+4*i+2,2)}, {v(vR1)} offset:{4096*par+2048*f+256*k}")
        for i in range(4):
            f, k = i // 2, i % 2
            A(f"s_waitcnt lgkmcnt({6-2*i})")
            for j in range(4):
                d = v(ACC + 32 * j + 16 * f, 16)
                A(f"v_mfma_f32_32x32x16_bf16 {d}, {v(AF+4*i,4)}, {R(WB+32*par+8*j+4*k,4)}, {d}", nochk=True)
        trace(A, 8, T, sSeg)
        A(f"s_add_u32 {s(sSeg)}, {s(sSeg)}, 1")
    A(f"s_cmp_lt_u32 {s(sSeg)}, 64")
    A(f"s_cbranch_scc1 R6_loop")
    base(A, sA, [(sT0, SEG_F), (sFg, 4096)], WS_Y)
    base(A, sFs, [(sT0, 128), (sFg, 4)], FL_SEG2 + 4 * FO_Y)
    A(f"s_waitcnt vmcnt(0)")
    order = [(j, q) for q2 in range(2) for j in range(4) for q in (2*q2, 2*q2+1)]
    for j in range(4):
        if j: add64(A, sWsp + 2*j, sA, SEG_F * j)
    for n, (j, q) in enumerate(order):
        G = 16 + 8 * (n % 2)
        ln.unpack(A, G, Z1 + 16*j + 4*q, 4)
        for i in range(4): A(f"v_pk_mul_f32 {v(G+2*i,2)}, {v(G+2*i,2)}, {v(ACC+32*j+8*q+2*i,2)}")
        for i in range(4): A(f"v_cvt_pk_bf16_f32 {v(Z1+16*j+4*q+i)}, {v(G+2*i)}, {v(G+2*i+1)}")
        A(f"global_store_dwordx4 {v(vL16)}, {v(Z1+16*j+4*q,4)}, {s(sA if j == 0 else sWsp+2*j,2)} offset:{1024*q} sc1")
    tp(A, 3)
    A(f"v_lshlrev_b32 {v(T)}, 3, {v(vL16)}"); A(f"v_mov_b32 {v(T+1)}, 1")
    A(f"s_waitcnt vmcnt(0)")
    A(f"s_mov_b64 exec, 15")
    A(f"global_store_dword {v(T)}, {v(T+1)}, {s(sFs,2)} sc1")
    A(f"s_mov_b64 exec, -1")
    tp(A, 4)
    tdump(A, 5, T)
    trace(A, 5, T)
    A(f"s_branch R7_run")

def r7_preload(A):
    lane = start(A, [(sP1, 'w_out')])
    A(f"s_bfe_u32 {s(sCol)}, s2, 0x20003")
    A(f"s_lshl_b32 {s(sCol)}, {s(sCol)}, 8"); A(f"s_lshl_b32 {s(sTmp)}, {s(sW)}, 6"); A(f"s_add_u32 {s(sCol)}, {s(sCol)}, {s(sTmp)}")
    A(f"s_waitcnt lgkmcnt(0)")
    srd(A, sP1, 688 * 1024)
    ws_weights(A, lane, 1024, 43, WOUT)

def r7_run(A):
    A.label("R7_run")
    trace(A, 4, T)
    A(f"s_load_dwordx2 {s(sP2,2)}, s[0:1], {KA['out']}")
    lane = relane(A)
    vO = 2
    lane.acc(vO, [(0, 5, 10), (5, 1, 4)])
    A(f"s_bfe_u32 {s(sRole)}, s2, 0x20003"); A(f"s_and_b32 {s(sSeg)}, s2, 7"); A(f"s_lshl_b32 {s(sSeg)}, {s(sSeg)}, 3")
    A(f"s_lshr_b32 {s(sTmp)}, s2, 5"); A(f"s_add_u32 {s(sSeg)}, {s(sSeg)}, {s(sTmp)}")
    base(A, sIn, [(sW, 1024)], WS_Y)
    base(A, sFl, [], FL_SEG2)
    A(f"s_mov_b64 {s(sMask,2)}, {0x7ff << FO_Y}")
    A(f"s_waitcnt vmcnt(0) lgkmcnt(0)")
    base(A, sOut, [(sSeg, 32768), (sRole, 256), (sW, 64)], 0, sP2)
    base(A, sP1, [(sSeg, 32768), (sRole, 8192), (sW, 2048)], WS_H)
    A(f"s_barrier")
    poll_issue(A, sSeg, 128)
    poll_finish(A, 2)
    ACC, H = 48, 64
    A(f"global_load_dwordx4 {v(H,4)}, {v(vL16)}, {s(sP1,2)} sc1")
    A(f"global_load_dwordx4 {v(H+4,4)}, {v(vL16)}, {s(sP1,2)} offset:1024 sc1")
    act_dma(A, 43, sSeg, SEG_F)
    gemm_core(A, 43, WOUT, ACC, [3, 5, 8])
    ln.unpack(A, 80, H, 8)
    for i in range(8): A(f"v_cvt_pk_bf16_f32 {v(H+i)}, {v(ACC+2*i)}, {v(ACC+2*i+1)}")
    ln.unpack(A, ACC, H, 8)
    for i in range(8): A(f"v_pk_add_f32 {v(ACC+2*i,2)}, {v(ACC+2*i,2)}, {v(80+2*i,2)}")
    for i in range(8): A(f"v_cvt_pk_bf16_f32 {v(96+i)}, {v(ACC+2*i)}, {v(ACC+2*i+1)}")
    A(f"global_store_dwordx4 {v(vO)}, {v(96,4)}, {s(sOut,2)}")
    A(f"global_store_dwordx4 {v(vO)}, {v(100,4)}, {s(sOut,2)} offset:32")
    tp(A, 3)
    if TRACE['on']: A("s_waitcnt vmcnt(0)")
    tp(A, 4)
    tdump(A, 5, T, 170)
    trace(A, 3, T)
    if DBGT['on']: A("s_waitcnt vmcnt(0)")
    dbgt(A, 15, T)
    A("s_endpgm")
```

```python
from common import *

L_MEM, L_KX, L_VX, L_Q, L_O = 0, 8192, 16384, 24576, 26624
L_K = L_MEM
L_SEL, L_ONES, L_MW, L_ZERO = 28672, 29696, 30720, 31744
L_W = 32768
vL16, vIdx, vInbW, vLdsW, vMemL, vQW, vQR, vKR, vOW, vDum = range(10)
PZ = 10
T0, T1, T2, T3 = 12, 13, 14, 15
MA, WIN, AQ, AK, AV, VX = 16, 48, 96, 104, 112, 120
sW, sH, sStep, sSpin, sTmp, sTmp2 = 3, 4, 5, 6, 7, 8
sC = 9
sHi = 10
sKV, sKM, sINBw, sINBp, sINBr, sMEMr, sMEMw, sFKV, sPROG = 12, 14, 16, 18, 20, 22, 24, 26, 28
sWS, sDBG = 30, 32
sTag = 34
SRD = 36
sPTR = 40
sM0P = 48
sPROF = 50
sRdy = 52
sMode = 54
sKXM0 = 56
sLB = 57
sCnt1, sCnt2 = 58, 59
sKV2 = 40
sSlot = 49
sMA, sMB, sMC = 60, 62, 36
sTM = 64
NST = 12

perm_units = [('K', j) for j in range(8)] + [('V', j) for j in range(8)] + [('Q', j) for j in range(3, 8)] + [('O', (0, 0)), ('O', (0, 1)), ('O', (1, 0))]
lds_units = [('Q', 0), ('Q', 1), ('Q', 2), ('O', (1, 1)), ('O', (2, 0)), ('O', (2, 1)), ('O', (3, 0)), ('O', (3, 1))]
units = perm_units + lds_units
PERM = {u: 128 + 16 * i for i, u in enumerate(perm_units)}
LDSU = {u: i for i, u in enumerate(lds_units)}
QWIN = {0: WIN + 16, 1: WIN + 32, 2: WIN}
OWIN = {(1, 1): WIN + 32, (2, 0): WIN + 16, (2, 1): WIN, (3, 0): MA, (3, 1): MA + 16}

def frag(M, j, t):
    u = (M, j)
    if u in PERM: return R(PERM[u] + 8 * t, 8)
    if M == 'Q': return R(QWIN[j] + 8 * t, 8)
    return R(OWIN[j] + 8 * t, 8)

def SM(acc, areg, b):
    return f"v_smfmac_f32_16x16x64_bf16 {v(acc,4)}, {v(areg,4)}, {b}, {v(vIdx)}"

def win_reads(ulist):
    out = []
    for u in ulist:
        base = QWIN[u[1]] if u[0] == 'Q' else OWIN[u[1]]
        for q in range(4):
            out.append(f"ds_read_b128 {v(base+4*q,4)}, {v(vLdsW)} offset:{LDSU[u]*4096+q*1024}")
    return out

def team_prologue(A, use_flags, prof):
    A(f"s_lshr_b32 {s(sH)}, s2, 3")
    A(f"v_lshrrev_b32 {v(T0)}, 6, v0")
    A(f"s_load_dwordx8 {s(sPTR,8)}, s[0:1], {KA['Wq']}")
    A(f"s_load_dwordx2 {s(sM0P,2)}, s[0:1], {KA['mem0']}")
    A(f"s_load_dwordx2 {s(sDBG,2)}, s[0:1], {KA['dbg']}")
    A(f"s_load_dwordx2 {s(sWS,2)}, s[0:1], {KA['ws']}")
    A(f"v_readfirstlane_b32 {s(sW)}, {v(T0)}")
    A(f"v_and_b32 v16, 63, v0")
    L = 16
    n16, g4, ta, tb, tc = 17, 18, 19, 20, 21
    vSrcP, vSrcO, vTr0, vTr1, vCol, vMemW = 22, 23, 24, 25, 26, 27
    def bits(dst, lo, n): A(f"v_bfe_u32 {v(dst)}, {v(L)}, {lo}, {n}")
    def acc(dst, lo, n, sh, first=False, tmp=tb):
        bits(tmp, lo, n)
        if first: A(f"v_lshlrev_b32 {v(dst)}, {sh}, {v(tmp)}")
        else: A(f"v_lshl_add_u32 {v(dst)}, {v(tmp)}, {sh}, {v(dst)}")
    def addw(dst, sh, imm=0):
        A(f"s_lshl_b32 {s(sTmp)}, {s(sW)}, {sh}")
        if imm: A(f"s_add_u32 {s(sTmp)}, {s(sTmp)}, {imm}")
        A(f"v_add_u32 {v(dst)}, {s(sTmp)}, {v(dst)}")
    A(f"v_lshlrev_b32 {v(vL16)}, 4, {v(L)}")
    A(f"v_and_b32 {v(n16)}, 15, {v(L)}")
    A(f"v_cmp_lt_u32 {s(sHi,2)}, 7, {v(n16)}")
    bits(ta, 1, 1)
    A(f"v_cmp_eq_u32 vcc, 1, {v(ta)}")
    A(f"v_mov_b32 {v(ta)}, 0x44444444")
    A(f"v_mov_b32 {v(tb)}, 0xeeeeeeee")
    A(f"v_cndmask_b32 {v(vIdx)}, {v(ta)}, {v(tb)}, vcc")
    acc(vInbW, 3, 3, 13, True); acc(vInbW, 0, 3, 3); addw(vInbW, 16)
    acc(vMemW, 4, 2, 4, True); acc(vMemW, 0, 2, 2)
    A(f"s_lshl_b32 {s(sLB)}, {s(sW)}, 15")
    A(f"s_add_u32 {s(sLB)}, {s(sLB)}, {L_W}")
    A(f"v_add_u32 {v(vLdsW)}, {s(sLB)}, {v(vL16)}")
    A(f"v_mov_b32 {v(vMemL)}, {v(vL16)}"); addw(vMemL, 11)
    A(f"s_add_u32 {s(sKXM0)}, {s(sTmp)}, {L_KX}")
    acc(vQW, 0, 4, 4, True); acc(vQW, 4, 2, 2); addw(vQW, 9, L_Q)
    acc(vQR, 5, 1, 9, True); acc(vQR, 4, 1, 7); acc(vQR, 2, 2, 4); acc(vQR, 0, 1, 3)
    acc(vKR, 5, 1, 10, True); acc(vKR, 0, 2, 7); acc(vKR, 1, 1, 5); acc(vKR, 4, 1, 6); acc(vKR, 2, 2, 3)
    acc(vOW, 5, 1, 8, True); acc(vOW, 1, 2, 6); acc(vOW, 4, 1, 5); acc(vOW, 0, 1, 4); acc(vOW, 3, 1, 3); addw(vOW, 9)
    acc(ta, 2, 1, 4, True)
    A(f"v_mov_b32 {v(tc)}, 0x3f80")
    A(f"v_lshlrev_b32 {v(tc)}, {v(ta)}, {v(tc)}")
    acc(ta, 0, 2, 1, True); acc(ta, 3, 1, 0)
    for q in range(4):
        A(f"v_cmp_eq_u32 vcc, {q}, {v(ta)}")
        A(f"s_nop 1")
        A(f"v_cndmask_b32 {v(28+q)}, 0, {v(tc)}, vcc")
    A(f"ds_write_b128 {v(vL16)}, {v(28,4)} offset:{L_SEL}")
    for q in range(4): A(f"v_mov_b32 {v(40+q)}, 0x3f803f80")
    A(f"ds_write_b128 {v(vL16)}, {v(40,4)} offset:{L_ONES}")
    A(f"ds_write_b32 {v(vL16)}, {v(vMemW)} offset:{L_MW}")
    for q in range(4): A(f"v_mov_b32 {v(44+q)}, 0")
    A(f"ds_write_b128 {v(vL16)}, {v(44,4)} offset:{L_ZERO}")
    bits(ta, 1, 1); bits(tc, 4, 1)
    A(f"v_xor_b32 {v(ta)}, {v(ta)}, {v(tc)}")
    A(f"v_lshlrev_b32 {v(vCol)}, 5, {v(ta)}")
    acc(vCol, 0, 1, 4)
    acc(ta, 4, 2, 2, True); acc(ta, 2, 1, 0); acc(ta, 3, 1, 4)
    A(f"v_lshl_add_u32 {v(vSrcP)}, {v(ta)}, 13, {v(vCol)}")
    acc(ta, 4, 1, 4, True); acc(ta, 5, 1, 3); acc(ta, 3, 1, 2); acc(ta, 2, 1, 0)
    A(f"v_lshl_add_u32 {v(vSrcO)}, {v(ta)}, 10, {v(vCol)}")
    acc(vTr0, 2, 4, 6, True); acc(vTr0, 4, 1, 5); acc(vTr0, 0, 2, 3)
    A(f"v_add_u32 {v(vTr0)}, {s(sLB)}, {v(vTr0)}")
    A(f"v_xor_b32 {v(vTr1)}, 32, {v(vTr0)}")
    A(f"s_waitcnt lgkmcnt(0)")
    def base(dst, terms, imm):
        A(f"s_mov_b32 {s(sTmp2)}, {imm}")
        for r_, sh in terms:
            A(f"s_lshl_b32 {s(sTmp)}, {s(r_)}, {sh}")
            A(f"s_add_u32 {s(sTmp2)}, {s(sTmp2)}, {s(sTmp)}")
        add64(A, dst, sWS, s(sTmp2))
    base(sKV, [(sH, 14)], WS_KV)
    base(sKM, [(sH, 13)], WS_KM + 4096)
    base(sINBr, [(sH, 13)], WS_INB)
    base(sINBw, [(sH, 6)], WS_INB + 4096)
    A(f"s_lshr_b32 {s(sCnt1)}, {s(sH)}, 3")
    A(f"s_and_b32 {s(sCnt2)}, {s(sH)}, 1")
    A(f"s_bfe_u32 {s(sSpin)}, {s(sH)}, 0x20001")
    base(sMEMw, [(sW, 11), (sCnt1, 9), (sCnt2, 8), (sSpin, 6)], WS_MEM)
    base(sMEMr, [], WS_MEM)
    base(sFKV, [(sH, 8)], FL_KV)
    base(sPROG, [(sH, 6), (sW, 2)], FL_PROG)
    if prof: base(sPROF, [(sH, 15), (sW, 13)], WS_PROF)
    A(f"s_mov_b32 {s(sC)}, 0x3e0293ee")
    for q in range(4): A(f"v_mov_b32 {v(28+q)}, -1")
    for off in (0, 1024):
        A(f"global_store_dwordx4 {v(vMemL)}, {v(28,4)}, {s(sINBr,2)} offset:{off} sc1")
    for q in range(4):
        A(f"v_add_u32 {v(ta)}, {8192*q}, {v(vMemW)}")
        A(f"global_store_dword {v(ta)}, {v(28)}, {s(sMEMw,2)} sc1")
    acc(ta, 2, 2, 11, True); acc(ta, 0, 1, 10); acc(ta, 5, 1, 8); acc(ta, 4, 1, 4); acc(ta, 1, 1, 5); addw(ta, 6)
    TMPA = 32
    for b in range(2):
        A(f"global_load_dwordx4 {v(TMPA+4*b,4)}, {v(ta)}, {s(sM0P,2)} offset:{512*b}")
    A(f"s_mov_b32 {s(SRD+2)}, 0x400000")
    A(f"s_mov_b32 {s(SRD+3)}, 0x20000")
    sCol, sColO, sOff = 60, 61, 62
    A(f"s_lshl_b32 {s(sCol)}, {s(sH)}, 8")
    A(f"s_lshl_b32 {s(sTmp)}, {s(sW)}, 6")
    A(f"s_add_u32 {s(sCol)}, {s(sCol)}, {s(sTmp)}")
    A(f"s_lshl_b32 {s(sColO)}, {s(sH)}, 17")
    A(f"s_lshl_b32 {s(sTmp)}, {s(sW)}, 8")
    A(f"s_add_u32 {s(sColO)}, {s(sColO)}, {s(sTmp)}")
    A(f"s_lshl_b32 {s(sTmp2)}, {s(sW)}, 1")
    cur = [None]
    def issue(i):
        M, j = units[i]
        slot = i % 8
        if cur[0] != M:
            p = sPTR + 2 * 'QKVO'.index(M)
            A(f"s_mov_b32 {s(SRD)}, {s(p)}")
            A(f"s_and_b32 {s(SRD+1)}, {s(p+1)}, 0xffff")
            cur[0] = M
        if M == 'O':
            p_, kb2 = j
            b0 = 64 * kb2 * 1024 + p_ * 64
            for m in range(4):
                A(f"s_add_u32 m0, {s(sLB)}, {slot*4096 + m*1024}")
                A(f"s_add_u32 {s(sOff)}, {s(sColO)}, {b0 + (32*(m//2) + 2*(m%2)) * 1024}")
                A(f"buffer_load_dwordx4 {v(vSrcO)}, {s(SRD,4)}, {s(sOff)} offen lds")
        else:
            A(f"s_xor_b32 {s(sTmp)}, {s(sTmp2)}, {j}")
            A(f"s_lshr_b32 {s(sTmp)}, {s(sTmp)}, 1")
            A(f"s_lshl_b32 {s(sTmp)}, {s(sTmp)}, 18")
            A(f"s_add_u32 {s(sTmp)}, {s(sTmp)}, {s(sCol)}")
            for m in range(4):
                A(f"s_add_u32 m0, {s(sLB)}, {slot*4096 + m*1024}")
                A(f"s_add_u32 {s(sOff)}, {s(sTmp)}, {(256*(j%2) + 128*(m//2) + 2*(m%2)) * 8192}")
                A(f"buffer_load_dwordx4 {v(vSrcP)}, {s(SRD,4)}, {s(sOff)} offen lds")
    for i in range(8): issue(i)
    A(f"s_waitcnt vmcnt(32)")
    A(f"s_barrier")
    lab = A.newlabel('T_noarr')
    A(f"s_cmp_lg_u32 {s(sW)}, 0")
    A(f"s_cbranch_scc1 {lab}")
    A(f"s_getreg_b32 {s(sTmp)}, hwreg(HW_REG_XCC_ID)")
    A(f"s_and_b32 {s(sTmp)}, {s(sTmp)}, 7")
    A(f"s_lshl_b32 {s(sTmp)}, {s(sTmp)}, 2")
    A(f"v_mov_b32 {v(ta)}, {s(sTmp)}")
    A(f"v_mov_b32 {v(tb)}, 1")
    A(f"s_mov_b64 exec, 1")
    A(f"global_atomic_add {v(ta)}, {v(tb)}, {s(sDBG,2)} sc1")
    A(f"s_mov_b64 exec, -1")
    A(f"s_waitcnt vmcnt(0)")
    A.label(lab)
    TW = 48
    for i in range(32):
        slot = i % 8
        A(f"s_waitcnt vmcnt({min(31 - i, 7) * 4})")
        dst = PERM[units[i]] if units[i] in PERM else TW
        for t in range(2):
            for m in range(4):
                A(f"ds_read_b64_tr_b16 {R(dst+8*t+2*m,2)}, {v(vTr1 if t else vTr0)} offset:{slot*4096+m*1024}")
        A(f"s_waitcnt lgkmcnt(0)")
        if i + 8 < 32: issue(i + 8)
        if units[i] not in PERM:
            for q in range(4):
                A(f"ds_write_b128 {v(vLdsW)}, {v(TW+4*q,4)} offset:{slot*4096+q*1024}")
            A(f"s_waitcnt lgkmcnt(0)")
    for q in range(8): A(f"v_mov_b32 {v(MA+q)}, {v(TMPA+q)}")
    trace(A, 0, T0, first=True); trace(A, 1, T0); dbgt(A, 12, T0)
    A(f"s_mov_b32 {s(sSpin)}, {SPIN_MAX}")
    A(f"v_lshrrev_b32 {v(T0)}, 2, {v(vL16)}")
    A(f"v_and_b32 {v(T0)}, 28, {v(T0)}")
    lw, ld = A.newlabel('T_bar'), A.newlabel('T_bard')
    A.label(lw)
    A(f"global_load_dword {v(T1)}, {v(T0)}, {s(sDBG,2)} sc1")
    A(f"s_waitcnt vmcnt(0)")
    A(f"v_cmp_eq_u32 {s(sMode,2)}, 32, {v(T1)}")
    A(f"s_mov_b32 {s(sTmp)}, 0")
    for q in range(8):
        A(f"v_readlane_b32 {s(sTmp2)}, {v(T1)}, {q}")
        A(f"s_add_u32 {s(sTmp)}, {s(sTmp)}, {s(sTmp2)}")
    A(f"s_cmp_ge_u32 {s(sTmp)}, 32")
    A(f"s_cbranch_scc1 {ld}")
    A(f"s_sub_u32 {s(sSpin)}, {s(sSpin)}, 1")
    A(f"s_cmp_lg_u32 {s(sSpin)}, 0")
    A(f"s_cbranch_scc1 {lw}")
    A.label(ld)
    A(f"s_mov_b32 {s(sStep)}, 0")
    A(f"s_mov_b64 {s(sRdy,2)}, 0")
    if use_flags:
        wait_init(A, T0, sM0P, sSpin)
        wait_flag(A, 0)
        wait_flag(A, 1)
    trace(A, 2, T0); dbgt(A, 13, T0)
    add64(A, sKV2, sKV, 8192)
    for x in k_dma() + v_dma(): A(x)
    add64(A, sKV, sKV, 0x80000)
    add64(A, sKV2, sKV2, 0x80000)
    A(f"s_mov_b32 {s(sTag)}, 0")
    A(f"s_mov_b32 {s(sSlot)}, 0")
    A(f"s_cmp_ge_u32 {s(sW)}, 2"); A(f"s_cselect_b64 {s(sMB,2)}, -1, 1")
    A(f"s_cmp_eq_u32 {s(sW)}, 3"); A(f"s_cselect_b64 {s(sMC,2)}, -1, 1")
    for x in win_reads([('Q', 0), ('Q', 1), ('Q', 2)]): A(x)
    zero_acc(A)
    A(f"ds_read_b32 {v(PZ)}, {v(vL16)} offset:{L_MW}")
    A(f"s_waitcnt lgkmcnt(0)")
    for x in pre_step(): A(x)
    A(f"s_waitcnt vmcnt(0) lgkmcnt(0)")

def wait_flag(A, ahead):
    lw, ld = A.newlabel('T_fw'), A.newlabel('T_fd')
    A(f"s_add_u32 {s(sTmp)}, {s(sStep)}, {ahead}")
    A(f"s_min_u32 {s(sTmp)}, {s(sTmp)}, 63")
    A(f"s_bitcmp1_b64 {s(sRdy,2)}, {s(sTmp)}")
    A(f"s_cbranch_scc1 {ld}")
    A(f"s_mov_b32 {s(sSpin)}, {SPIN_MAX*4}")
    A(f"v_lshrrev_b32 {v(T0)}, 2, {v(vL16)}")
    A.label(lw)
    A(f"global_load_dword {v(T1)}, {v(T0)}, {s(sFKV,2)} sc1")
    A(f"s_waitcnt vmcnt(0)")
    A(f"v_cmp_ne_u32 {s(sRdy,2)}, 0, {v(T1)}")
    A(f"s_nop 3")
    A(f"s_bitcmp1_b64 {s(sRdy,2)}, {s(sTmp)}")
    A(f"s_cbranch_scc1 {ld}")
    A(f"s_sub_u32 {s(sSpin)}, {s(sSpin)}, 1")
    A(f"s_cmp_lg_u32 {s(sSpin)}, 0")
    A(f"s_cbranch_scc1 {lw}")
    A.label(ld)

def k_dma():
    return [f"s_mov_b32 m0, {s(sKXM0)}", "s_nop 0",
            f"global_load_lds_dwordx4 {v(vMemL)}, {s(sKV,2)} sc1",
            f"global_load_lds_dwordx4 {v(vMemL)}, {s(sKV,2)} offset:1024 sc1"]
def v_dma():
    return [f"s_add_u32 m0, {s(sKXM0)}, {L_VX-L_KX}", "s_nop 0",
            f"global_load_lds_dwordx4 {v(vMemL)}, {s(sKV2,2)} sc1",
            f"global_load_lds_dwordx4 {v(vMemL)}, {s(sKV2,2)} offset:1024 sc1"]

def zero_acc(A):
    for q in range(0, 24, 2): A(f"v_mov_b64 {v(AQ+q,2)}, 0")

XA = [MA + 12, MA + 20, MA + 28]
tZero, tProg, tMP, tC0, tC1 = MA + 8, MA + 9, MA + 10, MA + 16, MA + 17
tNeg = MA + 11
def pre_step():
    o = [f"v_xor_b32 {v(XA[jj])}, {2048*(jj+1)}, {v(vMemL)}" for jj in range(3)]
    o += [f"v_mov_b32 {v(tZero)}, 0", f"v_mov_b32 {v(tProg)}, {s(sStep)}",
          f"s_xor_b32 {s(sTmp)}, {s(sSlot)}, 0x4000",
          f"v_add_u32 {v(tMP)}, {s(sTmp)}, {v(PZ)}",
          f"v_lshrrev_b32 {v(PZ)}, 2, {v(vL16)}",
          f"v_mov_b32 {v(tNeg)}, -1"]
    return o

def team_loop(A, fast, use_flags, prof, endlabel, cfg):
    sc = "" if fast else " sc1"
    tag = 'F' if fast else 'S'
    ENTRY = f"T_entry_{tag}"
    def stamp(k):
        if prof and k in prof: A(f"s_memtime {s(sTM+2*prof.index(k),2)}")
        if prof and k == 'h1a' and 'rt' in prof: A(f"s_memrealtime {s(sTM+2*prof.index('rt'),2)}")
    lg = lambda n: f"s_waitcnt lgkmcnt({n})"
    def seq(items):
        for x in items:
            if isinstance(x, (list, tuple)): seq(x)
            elif x and x.startswith('@'): stamp(x[1:])
            elif x and x.startswith('!'): A(x[1:], nochk=True)
            elif x and any(pat in x for pat in cfg.get('drop', [])): A("s_nop 0")
            elif x: A(x)
    def nops(n):
        while n > 0:
            A(f"s_nop {min(n,16)-1}"); n -= 16
    IB = MA + 24
    vMR = PZ + 1
    D1, D2 = cfg.get('depth1', 2), cfg.get('depth2', 2)
    def loads(dst, ad, b):
        A(f"global_load_dwordx4 {v(dst,4)}, {v(ad)}, {s(b,2)} sc1", nochk=True)
        A(f"global_load_dwordx4 {v(dst+4,4)}, {v(ad)}, {s(b,2)} offset:1024 sc1", nochk=True)
    zread = lambda r_: f"ds_read_b128 {v(r_,4)}, {v(vL16)} offset:{L_ZERO}"
    R2, HP = f"T_r2_{tag}", f"T_hp_{tag}"
    A.label(R2)
    A("s_mov_b64 exec, vcc")
    loads(MA, vMR, sMEMr)
    A("s_mov_b64 exec, -1")
    A(f"s_sub_u32 {s(sSpin)}, {s(sSpin)}, 1")
    A(f"s_cbranch_scc1 {ENTRY}")
    A.label(HP)
    A(f"s_waitcnt vmcnt({2*(D2-1)+1})")
    A(f"v_max3_u32 {v(tC0)}, {v(MA)}, {v(MA+1)}, {v(MA+2)}")
    A(f"v_max_u32 {v(tC0)}, {v(tC0)}, {v(MA+3)}")
    A(f"s_waitcnt vmcnt({2*(D2-1)})")
    A(f"v_max3_u32 {v(tC0)}, {v(tC0)}, {v(MA+4)}, {v(MA+5)}")
    A(f"v_max3_u32 {v(tC0)}, {v(tC0)}, {v(MA+6)}, {v(MA+7)}")
    A(f"v_cmp_eq_u32 vcc, -1, {v(tC0)}")
    A(f"s_cbranch_vccnz {R2}")
    A.label(ENTRY)
    own = [SM(acc+4*t, MA+4*j, frag(M, j, t)) for M, acc in (('Q', AQ), ('K', AK), ('V', AV)) for j in range(2) for t in range(2)]
    mr = []
    for jj in range(3):
        mr.append(f"ds_read_b128 {v(MA+8+8*jj,4)}, {v(XA[jj])}")
        mr.append(f"ds_read_b128 {v(MA+12+8*jj,4)}, {v(XA[jj])} offset:1024")
    vr = [f"ds_read_b128 {v(VX,4)}, {v(vMemL)} offset:{L_VX}", f"ds_read_b128 {v(VX+4,4)}, {v(vMemL)} offset:{L_VX+1024}"]
    seq([own[0], f"ds_write_b128 {v(vMemL)}, {v(MA,4)}", f"ds_write_b128 {v(vMemL)}, {v(MA+4,4)} offset:1024", '@0',
         own[1], own[2], f"global_store_dword {v(tMP)}, {v(tNeg)}, {s(sMEMw,2)}{sc}",
         own[3], own[4], f"global_store_dword {v(tZero)}, {v(tProg)}, {s(sPROG,2)} sc1",
         f"s_mov_b32 {s(sCnt2)}, {s(sSpin)}" if prof else None,
         own[5], '@a1', "s_waitcnt lgkmcnt(0)", "s_barrier", '@a2',
         mr[0], own[6], mr[1], own[7], mr[2], own[8], mr[3], own[9], mr[4], own[10], mr[5], own[11], vr[0]])
    KXR, QB = WIN + 16, WIN
    kxr = [f"ds_read_b128 {v(KXR+4*i,4)}, {v(vL16)} offset:{L_KX+1024*i}" for i in range(8)]
    qorder = [(j, t) for j in range(2, 6) for t in range(2)] + [(6, 0), (7, 0), (6, 1), (7, 1)]
    qs = [SM(AQ+4*t, MA+4*j, frag('Q', j, t)) for j, t in qorder]
    vd = v_dma()
    def post(acc, pk):
        return [f"v_add_f32 {v(acc)}, {v(acc)}, {v(acc+2)}", f"v_add_f32 {v(acc+1)}, {v(acc+1)}, {v(acc+3)}",
                f"v_cvt_pk_bf16_f32 {v(pk)}, {v(acc)}, {v(acc+1)}"]
    q0, q1 = post(AQ, T0), post(AQ + 4, T1)
    fl = f"!global_load_dword {v(vDum)}, {v(PZ)}, {s(sFKV,2)} sc1" if use_flags else None
    kw = [f"v_lshrrev_b32 {v(PZ+1)}, 1, {v(vMemL)}", f"v_bfe_u32 {v(PZ)}, {v(vL16)}, 9, 1", f"v_lshl_add_u32 {v(PZ+1)}, {v(PZ)}, 5, {v(PZ+1)}"]
    seq(['@b0', lg(6), qs[0], vr[1], qs[1], fl, lg(6), qs[2], kxr[0], kw[0], qs[3], kxr[1], lg(6), qs[4], kxr[2], kw[1], qs[5], kxr[3], vd[0], qs[6], kxr[4], kw[2], qs[7], lg(5),
         qs[8], kxr[5], qs[9], kxr[6], qs[10], kxr[7], qs[11], vd[2], q0[0]])
    nvm = 4 + (1 if use_flags else 0)
    ks = [SM(AK+4*t, MA+4*j, frag('K', j, t)) for t in range(2) for j in range(2, 8)]
    qr = []
    for y in range(4):
        off = L_Q + (64 * (y // 2) + 16 * (y % 2)) * 16
        qr += [f"ds_read_b64_tr_b16 {v(QB+4*y,2)}, {v(vQR)} offset:{off}", f"ds_read_b64_tr_b16 {v(QB+4*y+2,2)}, {v(vQR)} offset:{off+64}"]
    k0, k1 = post(AK, T2), post(AK + 4, T3)
    vs = [SM(AV+4*t, MA+4*j, frag('V', j, t)) for t in range(2) for j in range(2, 8)]
    kd = k_dma()
    seq(['@c0', ks[0], vd[3], q0[1], ks[1], q0[2], q1[0], ks[2], q1[1], q1[2],
         ks[3], f"ds_write2st64_b32 {v(vQW)}, {v(T0)}, {v(T1)} offset1:1", ks[4], f"s_waitcnt vmcnt({nvm})", ks[5], ks[6],
         ks[7], k0[0], ks[8], lg(0), "s_barrier", '@1', ks[9], qr[0], qr[1], ks[10], qr[2], qr[3], ks[11], qr[4], qr[5]])
    SX, KM = AQ, AK
    SMa, SMb = KXR, KXR + 4
    sx = [f"v_mfma_f32_16x16x32_bf16 {v(SX+4*kt,4)}, {v(KXR+16*kt+4*y,4)}, {v(QB+4*y,4)}, {v(SX+4*kt,4) if y else 0}" for kt in range(2) for y in range(4)]
    kr = []
    for al in range(2):
        kr += [f"ds_read_b64_tr_b16 {v(KM+4*al,2)}, {v(vKR)} offset:{L_K+2048*al}", f"ds_read_b64_tr_b16 {v(KM+4*al+2,2)}, {v(vKR)} offset:{L_K+2048*al+32}"]
    sm_ = [f"v_mfma_f32_16x16x32_bf16 {v(SMb if y%2 else SMa,4)}, {v(KM+4*(y//2),4)}, {v(QB+4*y,4)}, {v(SMb if y%2 else SMa,4) if y>=2 else 0}" for y in range(4)]
    ONES, PM = KXR + 8, KXR + 12
    ow = win_reads([('O', (1, 1)), ('O', (2, 1)), ('O', (2, 0)), ('O', (3, 0)), ('O', (3, 1))])
    ow11, ow21, ow20, ow30, ow31 = ow[0:4], ow[4:8], ow[8:12], ow[12:16], ow[16:20]
    seq(['@c1', vs[0], qr[6], qr[7], k0[1], vs[1], kd[0], k0[2], k1, lg(6),
         sx[0], f"ds_write_b64 {v(PZ+1)}, {v(T2,2)} offset:{L_K}", '@d1', lg(5), sx[1], kd[2], lg(3), sx[2],
         f"global_store_dwordx2 {v(PZ+1)}, {v(T2,2)}, {s(sKM,2)} offset:-4096 sc1", lg(1),
         sx[3], kd[3], sx[4], '@d2', lg(0), "s_barrier", '@d3',
         kr[0], kr[1], sx[5], kr[2], kr[3], sx[6], f"ds_read_b128 {v(ONES,4)}, {v(vL16)} offset:{L_ONES}", f"v_max3_f32 {v(T2)}, {v(SX)}, {v(SX+1)}, {v(SX+2)}",
         sx[7], zread(PM), vs[2], '@d4', lg(4), sm_[0], sm_[1], lg(2), f"v_max3_f32 {v(T2)}, {v(T2)}, {v(SX+3)}, {v(SX+4)}",
         sm_[2], ow11[0], f"v_max3_f32 {v(T3)}, {v(SX+5)}, {v(SX+6)}, {v(SX+7)}", sm_[3], ow11[1], f"v_max_f32 {v(T2)}, {v(T2)}, {v(T3)}", '@2'])
    v0, v1 = post(AV, AV + 2), post(AV + 4, AV + 3)
    seq([vs[3], ow11[2], vs[4], ow11[3],
         f"v_add_f32 {v(PZ)}, {v(SMa)}, {v(SMb+2)}", f"v_add_f32 {v(PZ+1)}, {v(SMa+1)}, {v(SMb+3)}",
         f"v_max3_f32 {v(T0)}, {v(T2)}, {v(PZ)}, {v(PZ+1)}", f"v_max3_f32 {v(T1)}, {v(T2)}, {v(PZ)}, {v(PZ+1)}",
         vs[5], ow21[0], ow21[1],
         f"v_permlane32_swap_b32 {v(T0)}, {v(T1)}",
         f"v_max_f32 {v(T2)}, {v(T0)}, {v(T1)}", f"v_max_f32 {v(T3)}, {v(T0)}, {v(T1)}",
         vs[6], ow21[2], ow21[3],
         f"v_permlane16_swap_b32 {v(T2)}, {v(T3)}",
         f"v_max_f32 {v(T0)}, {v(T2)}, {v(T3)}",
         f"v_mul_f32 {v(T0)}, {s(sC)}, {v(T0)}"])
    fm = lambda r_: f"v_fma_f32 {v(r_)}, {v(r_)}, {s(sC)}, -{v(T0)}"
    ex = lambda r_: f"v_exp_f32 {v(r_)}, {v(r_)}"
    seq(['@e1', vs[7], ow30[0], fm(SX), vs[8], ow30[1], fm(SX+1), vs[9], ow30[2], fm(SX+2), vs[10], ow30[3], fm(SX+3), vs[11], ow31[0], ow31[1]])
    seq([fm(SX+i) for i in range(4, 8)] + [fm(PZ), fm(PZ+1)])
    seq(['@e2', [ex(SX+i) for i in range(8)], '@e3'])
    OACC0, OACC1, LACC = AK, AK + 4, T0
    seq([ex(PZ), [f"v_cvt_pk_bf16_f32 {v(SX+i)}, {v(SX+2*i)}, {v(SX+2*i+1)}" for i in range(4)],
         ex(PZ+1), lg(14),
         f"v_mfma_f32_16x16x32_bf16 {v(LACC,4)}, {v(ONES,4)}, {v(SX,4)}, 0", f"v_cvt_pk_bf16_f32 {v(PM)}, {v(PZ)}, {v(PZ+1)}", v0[0],
         f"v_mfma_f32_16x16x32_bf16 {v(OACC0,4)}, {v(VX,4)}, {v(SX,4)}, 0", v0[1], v1[0],
         f"v_mfma_f32_16x16x16_bf16 {v(LACC,4)}, {v(ONES,2)}, {v(PM,2)}, {v(LACC,4)}", v1[1], v0[2],
         f"v_mfma_f32_16x16x32_bf16 {v(OACC1,4)}, {v(VX+4,4)}, {v(SX,4)}, 0", v1[2],
         f"v_cvt_pk_bf16_f32 {v(PM+3)}, {v(PZ)}, {v(PZ+1)}", f"s_cmp_eq_u32 {s(sStep)}, 63",
         f"v_mfma_f32_16x16x16_bf16 {v(OACC0,4)}, {v(AV+2,2)}, {v(PM,2)}, {v(OACC0,4)}", ow31[2], ow31[3], f"v_lshrrev_b32 {v(PZ)}, 1, {v(vMemL)}",
         f"v_mfma_f32_16x16x16_bf16 {v(OACC1,4)}, {v(AV+2,2)}, {v(PM+2,2)}, {v(OACC1,4)}",
         f"global_store_dwordx2 {v(PZ)}, {v(AV+2,2)}, {s(sKM,2)} sc1",
         f"s_cbranch_scc1 {endlabel}", '@e4',
         f"v_rcp_f32 {v(T0)}, {v(T0)}",
         [f"v_mov_b64 {v(AQ+q,2)}, 0" for q in range(0, 8, 2)], f"v_mov_b64 {v(AV,2)}, 0"])
    seq([f"v_cndmask_b32 {v(OACC0+i)}, {v(OACC0+i)}, {v(OACC1+i)}, {s(sHi,2)}" for i in range(4)])
    seq([f"v_pk_mul_f32 {v(OACC0+i,2)}, {v(OACC0+i,2)}, {v(T0,2)} op_sel_hi:[1,0]" for i in (0, 2)])
    seq([f"v_cvt_pk_bf16_f32 {v(T2)}, {v(OACC0)}, {v(OACC0+1)}", f"v_cvt_pk_bf16_f32 {v(T3)}, {v(OACC0+2)}, {v(OACC0+3)}",
         f"ds_write_b64 {v(vOW)}, {v(T2,2)} offset:{L_O}", '@3',
         [f"v_mov_b64 {v(AK+q,2)}, 0" for q in (0, 2, 4, 6, 10, 12, 14)], lg(0), "s_barrier"])
    OA = VX
    PA = [AQ + 4 * i for i in range(6)] + [WIN + 32, WIN + 36]
    os_ = lambda p, kb, hf: SM(PA[2*p+hf], OA+4*kb, frag('O', (p, kb), hf))
    t = [post(PA[T], T0 + T % 4) for T in range(8)]
    tg = lambda T: f"v_and_or_b32 {v(T0+T%4)}, {v(T0+T%4)}, -2, {s(sTag)}"
    st = lambda p: f"global_store_dwordx2 {v(vInbW)}, {v(T0+2*(p%2),2)}, {s(sINBw,2)} offset:{2048*p-4096}{sc}"
    pk = lambda T: [f"v_pk_add_f32 {v(PA[T],2)}, {v(PA[T],2)}, {v(PA[T]+2,2)}", t[T][2]]
    seq(['@f1', f"ds_read_b128 {v(OA,4)}, {v(vL16)} offset:{L_O}", f"ds_read_b128 {v(OA+4,4)}, {v(vL16)} offset:{L_O+1024}",
         ow20, lg(5),
         os_(0,0,0), '@f2', lg(4), os_(0,1,0), os_(0,0,1), os_(0,1,1), t[0][0],
         os_(1,0,0), t[0][1], t[0][2], os_(1,1,0), tg(0), t[1][0], os_(1,0,1), zread(PA[6]), t[1][1], t[1][2], os_(1,1,1), st(0), lg(1), t[2][0],
         os_(2,0,0), '@f3', zread(PA[7]), t[2][1], t[2][2], os_(2,1,0), tg(2), t[3][0], os_(2,0,1), t[3][1], t[3][2], os_(2,1,1), st(1), lg(0), t[4][0],
         os_(3,0,0), t[4][1], t[4][2], os_(3,1,0), tg(4), t[5][0], os_(3,0,1), t[5][1], t[5][2],
         os_(3,1,1), '@f4', st(2), t[6], tg(6), "s_nop 2", pk(7), st(3), '@4'])
    if prof and 'ack' in prof:
        A("s_waitcnt vmcnt(0)"); stamp('ack')
    SEL, RA = VX, VX + 4
    qw = win_reads([('Q', 0), ('Q', 1), ('Q', 2)])
    za = [f"v_mov_b64 {v(AQ+q,2)}, 0" for q in range(0, 24, 2)]
    seq([f"ds_read_b128 {v(SEL,4)}, {v(vL16)} offset:{L_SEL}", f"ds_read_b32 {v(PZ)}, {v(vL16)} offset:{L_MW}", za])
    A(f"s_add_u32 {s(sStep)}, {s(sStep)}, 1")
    A(f"s_add_u32 {s(sSlot)}, {s(sSlot)}, 0x2000")
    A(f"s_and_b32 {s(sSlot)}, {s(sSlot)}, 0x6000")
    if not cfg.get('samekv'):
        add64(A, sKV, sKV, 0x80000)
        add64(A, sKV2, sKV2, 0x80000)
    if not cfg.get('samekm'): add64(A, sKM, sKM, 0x40000)
    A(f"s_mov_b32 {s(sSpin)}, {SPIN_MAX}")
    A(f"s_waitcnt lgkmcnt(0)")
    A(f"v_add_u32 {v(T3)}, {s(sSlot)}, {v(PZ)}")
    A(f"v_add_u32 {v(vMR)}, {s(sSlot)}, {v(vMemL)}")
    if prof: A(f"s_mov_b32 {s(sCnt1)}, {SPIN_MAX}")
    stamp('h1a')
    nops(cfg.get('d1', 25))
    loads(IB, vMemL, sINBr)
    nq = cfg.get('nq', 6)
    seq(qw[:nq])
    for d in range(1, D1):
        nops(cfg.get('d2', 0))
        loads(IB, vMemL, sINBr)
    RP, ROK = [f"T_{x}_{tag}" for x in ('rp', 'rok')]
    stamp('h1c')
    A.label(RP)
    for u in range(cfg.get('unr', 3)):
        A(f"s_waitcnt vmcnt({2*(D1-1)+1})")
        A(f"v_bitop3_b32 {v(T0)}, {v(IB)}, {v(IB+2)}, {s(sTag)} bitop3:0x7e")
        A(f"v_mfma_f32_16x16x32_bf16 {v(RA,4)}, {v(SEL,4)}, {v(IB,4)}, 0")
        A(f"s_waitcnt vmcnt({2*(D1-1)})")
        if u == 0: stamp('h1e')
        A(f"v_bitop3_b32 {v(T1)}, {v(IB+4)}, {v(IB+6)}, {s(sTag)} bitop3:0x7e")
        A(f"v_mfma_f32_16x16x32_bf16 {v(RA,4)}, {v(SEL,4)}, {v(IB+4,4)}, {v(RA,4)}")
        A(f"v_bitop3_b32 {v(T0)}, {v(T0)}, {v(T1)}, 1 bitop3:0xa8")
        A(f"v_cmp_ne_u32 vcc, 0, {v(T0)}")
        A(f"s_cbranch_vccz {ROK}")
        A("s_mov_b64 exec, vcc")
        loads(IB, vMemL, sINBr)
        A("s_mov_b64 exec, -1")
        if prof: A(f"s_sub_u32 {s(sCnt1)}, {s(sCnt1)}, 1")
    A(f"s_sub_u32 {s(sSpin)}, {s(sSpin)}, 1")
    A(f"s_cbranch_scc0 {RP}")
    A.label(ROK)
    A(f"s_nop {cfg.get('rnop', 4)}")
    dpp = lambda r_, n: f"v_add_f32_dpp {v(r_)}, {v(r_)}, {v(r_)} row_ror:{n} row_mask:0xf bank_mask:0xf"
    seq([dpp(RA, 4), dpp(RA+1, 4), "s_nop 0", dpp(RA, 8), dpp(RA+1, 8),
         f"v_cvt_pk_bf16_f32 {v(RA+2)}, {v(RA)}, {v(RA+1)}", f"v_min_u32 {v(RA+2)}, -2, {v(RA+2)}"])
    A(f"global_store_dword {v(T3)}, {v(RA+2)}, {s(sMEMw,2)}{sc}")
    stamp(5)
    seq(qw[nq:])
    A(f"s_xor_b32 {s(sTag)}, {s(sTag)}, 1")
    if use_flags:
        A(f"v_cmp_ne_u32 {s(sRdy,2)}, 0, {v(vDum)}")
        A(f"s_nop 3")
        wait_flag(A, 1)
    A(f"s_mov_b32 {s(sSpin)}, {SPIN_MAX}")
    if prof:
        A(f"s_waitcnt lgkmcnt(0)")
        for k in range(6): A(f"v_writelane_b32 {v(T2)}, {s(sTM+2*k)}, {k}")
        A(f"v_writelane_b32 {v(T2)}, {s(sCnt1)}, 6")
        A(f"v_writelane_b32 {v(T2)}, {s(sCnt2)}, 7")
        A(f"v_lshrrev_b32 {v(T1)}, 2, {v(vL16)}")
        A(f"s_mov_b64 exec, 0xff")
        A(f"global_store_dword {v(T1)}, {v(T2)}, {s(sPROF,2)}")
        A(f"s_mov_b64 exec, -1")
        add64(A, sPROF, sPROF, 32)
    elif TRACE['on']:
        trace(A, 8, T0, sStep)
    else:
        nops(15)
    nops(cfg.get('d4', 30))
    loads(MA, vMR, sMEMr)
    A(f"s_waitcnt vmcnt({4 if prof or TRACE['on'] else 3}) lgkmcnt(0)")
    seq(pre_step())
    for d in range(1, D2):
        nops(cfg.get('d5', 8) + (10 if d > 1 else 0))
        loads(MA, vMR, sMEMr)
    stamp('h2b')
    A(f"s_branch {HP}")

def team(A, use_flags=False, prof=False, force_slow=False, cfg={}, chain=None):
    if prof: prof = [str(x) if str(x) in ('0','1','2','3','4') else x for x in prof]
    team_prologue(A, use_flags, prof)
    end = "T_end"
    if not force_slow:
        A(f"s_cmp_lg_u64 {s(sMode,2)}, 0")
        A(f"s_cbranch_scc1 T_entry_F")
    A(f"s_branch T_entry_S")
    if not force_slow:
        team_loop(A, True, use_flags, prof, end, cfg)
    team_loop(A, False, use_flags, prof, end, cfg)
    A.label(end)
    A(f"s_waitcnt vmcnt(0)")
    A(f"v_mov_b32 {v(PZ)}, 0")
    A(f"v_mov_b32 {v(PZ+1)}, 64")
    A(f"global_store_dword {v(PZ)}, {v(PZ+1)}, {s(sPROG,2)} sc1")
    trace(A, 5, PZ); dbgt(A, 14, PZ)
    if chain:
        A(f"s_lshl_b32 {s(sTmp)}, {s(sW)}, 6")
        A(f"v_lshrrev_b32 v0, 4, {v(vL16)}")
        A(f"v_add_u32 v0, {s(sTmp)}, v0")
        A(f"s_waitcnt vmcnt(0) lgkmcnt(0)")
        A(f"s_barrier")
        A(f"s_branch {chain}")
    else:
        A(f"s_endpgm")
```

```python
from common import *
L_XN, L_QK, L_KMS, L_BIAS = 0, 32768, 65536, 69632
vL16, vWL, vKst, vVst, vKmR, vVmL = 0, 1, 2, 3, 4, 5
T = 8
XF, QA, KA_, VA, VPC, VPN, KF = 16, 48, 64, 80, 96, 104, 112
WQ, WK, WV = 256, 384, 128
sW, sH, sCur, sNxt, sTmp, sTmp2, sSpin, sC, sBuf = 3, 4, 5, 6, 7, 8, 9, 10, 11
sWS, sXN, sKV, sFKV, sPROG, sKM, sO, sA, sB = 12, 14, 16, 18, 20, 22, 24, 26, 28
SRD, sPTR, sLB, sOff, sCol, sStride, sWM0 = 32, 36, 44, 45, 46, 47, 48

def worker(A, NW, use_flags, osig=False, chain=False):
    L, tb = 16, 17
    ln = Lane(A, L, tb)
    A(f"v_lshrrev_b32 {v(T)}, 6, v0")
    A(f"s_load_dwordx4 {s(sPTR,4)}, s[0:1], {KA['Wq']}")
    A(f"s_load_dwordx2 {s(sPTR+4,2)}, s[0:1], {KA['Wv']}")
    A(f"s_load_dwordx2 {s(sWS,2)}, s[0:1], {KA['ws']}")
    A(f"v_readfirstlane_b32 {s(sW)}, {v(T)}")
    A(f"v_and_b32 {v(L)}, 63, v0")
    A(f"v_lshlrev_b32 {v(vL16)}, 4, {v(L)}")
    A(f"s_lshl_b32 {s(sLB)}, {s(sW)}, 15")
    A(f"s_mov_b32 {s(sStride)}, 8192")
    vSrc, vTr = 18, 19
    weight_lane_consts(A, ln, vSrc, vTr, sLB, sStride, 20)
    A(f"s_lshl_b32 {s(sTmp)}, {s(sW)}, 11")
    A(f"v_add_u32 {v(vWL)}, {s(sTmp)}, {v(vL16)}")
    ln.acc(vKst, [(3, 1, 12), (4, 1, 7), (0, 3, 4), (5, 1, 8)])
    A(f"s_lshr_b32 {s(sTmp)}, {s(sW)}, 1"); A(f"s_lshl_b32 {s(sTmp)}, {s(sTmp)}, 11")
    A(f"s_and_b32 {s(sTmp2)}, {s(sW)}, 1"); A(f"s_lshl_b32 {s(sTmp2)}, {s(sTmp2)}, 9")
    A(f"s_add_u32 {s(sTmp)}, {s(sTmp)}, {s(sTmp2)}")
    A(f"v_add_u32 {v(vKst)}, {s(sTmp)}, {v(vKst)}")
    ln.acc(vVst, [(4, 1, 10), (2, 1, 7), (3, 1, 6), (0, 2, 4), (5, 1, 8)])
    A(f"s_lshl_b32 {s(sTmp)}, {s(sW)}, 11"); A(f"s_add_u32 {s(sTmp)}, {s(sTmp)}, 8192")
    A(f"v_add_u32 {v(vVst)}, {s(sTmp)}, {v(vVst)}")
    ln.acc(vKmR, [(0, 2, 7), (1, 1, 5), (5, 1, 6), (2, 2, 3)])
    ln.acc(vVmL, [(5, 1, 7), (2, 1, 6), (3, 1, 5), (0, 2, 3), (4, 1, 2)])
    A(f"s_lshl_b32 {s(sTmp)}, {s(sW)}, 10"); A(f"s_add_u32 {s(sTmp)}, {s(sTmp)}, 4096")
    A(f"v_add_u32 {v(vVmL)}, {s(sTmp)}, {v(vVmL)}")
    A(f"s_mov_b32 {s(sC)}, 0x3e0293ee")
    A(f"s_waitcnt lgkmcnt(0)")
    def base(dst, terms, imm):
        A(f"s_mov_b32 {s(sTmp2)}, {imm}")
        for r_, sh in terms:
            A(f"s_lshl_b32 {s(sTmp)}, {s(r_)}, {sh}")
            A(f"s_add_u32 {s(sTmp2)}, {s(sTmp2)}, {s(sTmp)}")
        add64(A, dst, sWS, s(sTmp2))
    base(sXN, [(sW, 13)], WS_XN)
    base(sKV, [(sH, 14)], WS_KV)
    base(sFKV, [(sH, 8)], FL_KV)
    base(sPROG, [(sH, 6)], FL_PROG)
    base(sKM, [(sH, 13)], WS_KM)
    base(sO, [(sH, 13)], WS_O)
    A(f"s_mov_b32 {s(SRD+2)}, 0x400000"); A(f"s_mov_b32 {s(SRD+3)}, 0x20000")
    A(f"s_lshl_b32 {s(sCol)}, {s(sH)}, 8"); A(f"s_lshl_b32 {s(sTmp)}, {s(sW)}, 6"); A(f"s_add_u32 {s(sCol)}, {s(sCol)}, {s(sTmp)}")
    units = []
    for mi, dst in ((1, WK), (2, WV), (0, WQ)):
        def setup(mi=mi):
            A(f"s_mov_b32 {s(SRD)}, {s(sPTR+2*mi)}"); A(f"s_and_b32 {s(SRD+1)}, {s(sPTR+2*mi+1)}, 0xffff")
        for u in range(8):
            units.append((setup if u == 0 else None, (lambda m, u=u: (sCol, (64*u + 16*m) * 8192)), dst + 16*u, 4))
    load_weight_units(A, units, vSrc, vTr, sLB, SRD, sOff, sTmp)
    A(f"s_barrier")
    trace(A, 0, T, first=True); trace(A, 1, T)
    A(f"v_and_b32 {v(20)}, 31, {v(L)}")
    A(f"v_lshrrev_b32 {v(21)}, 5, {v(L)}")
    A(f"v_lshlrev_b32 {v(21)}, 2, {v(21)}")
    A(f"v_sub_u32 {v(20)}, {v(20)}, {v(21)}")
    A(f"v_mov_b32 {v(21)}, 0xf149f2ca")
    for j in range(4):
        for i in range(4):
            A(f"v_cmp_gt_i32 vcc, {8*j+i}, {v(20)}")
            A(f"s_nop 1")
            A(f"v_cndmask_b32 {v(24+i)}, 0, {v(21)}, vcc")
        A(f"v_add_u32 {v(22)}, {L_BIAS + 1024*j}, {v(vL16)}")
        A(f"ds_write_b128 {v(22)}, {v(24,4)}")
    A(f"s_lshl_b32 {s(sWM0)}, {s(sW)}, 13")
    def xn_dma(sSeg):
        A(f"s_lshl_b32 {s(sTmp)}, {s(sSeg)}, 15")
        add64(A, sA, sXN, s(sTmp))
        add64(A, sB, sA, 4096)
        for hfi, b in enumerate((sA, sB)):
            A(f"s_add_u32 m0, {s(sWM0)}, {L_XN + 4096*hfi}")
            A(f"s_nop 0")
            for q in range(4):
                A(f"global_load_lds_dwordx4 {v(vL16)}, {s(b,2)} offset:{1024*q} sc1")
    if use_flags: wait_init(A, T, sA, sSpin)
    xn_dma(sNxt)
    A(f"s_mov_b32 {s(sCur)}, -1")
    A(f"s_mov_b32 {s(sBuf)}, {L_QK}")
    LOOP, NOG, NOA, END = "W_loop", "W_nogemm", "W_noatt", "W_end"
    A.label(LOOP)
    A(f"s_waitcnt vmcnt(0) lgkmcnt(0)")
    A(f"s_barrier")
    A(f"s_cmp_ge_u32 {s(sNxt)}, 64")
    A(f"s_cbranch_scc1 {NOG}")
    rd = lambda k: f"ds_read_b128 {v(XF+4*(k%8),4)}, {v(vL16)} offset:{L_XN+1024*k}"
    for k in range(6): A(rd(k))
    for k in range(32):
        x = v(XF + 4 * (k % 8), 4)
        A(f"s_waitcnt lgkmcnt({min(5, 31-k)})")
        A(f"v_mfma_f32_32x32x16_bf16 {v(KA_,16)}, {R(WK+4*k,4)}, {x}, {v(KA_,16) if k else 0}")
        if k + 6 < 32: A(rd(k + 6))
        A(f"v_mfma_f32_32x32x16_bf16 {v(VA,16)}, {x}, {R(WV+4*k,4)}, {v(VA,16) if k else 0}")
        A(f"v_mfma_f32_32x32x16_bf16 {v(QA,16)}, {R(WQ+4*k,4)}, {x}, {v(QA,16) if k else 0}")
    A(f"s_lshl_b32 {s(sTmp)}, {s(sNxt)}, 19")
    add64(A, sA, sKV, s(sTmp))
    A(f"v_add_u32 {v(T)}, {s(sBuf)}, {v(vWL)}")
    for i in range(8): A(f"v_cvt_pk_bf16_f32 {v(XF+i)}, {v(KA_+2*i)}, {v(KA_+2*i+1)}")
    A(f"global_store_dwordx4 {v(vKst)}, {v(XF,4)}, {s(sA,2)} sc1")
    A(f"global_store_dwordx4 {v(vKst)}, {v(XF+4,4)}, {s(sA,2)} offset:1024 sc1")
    A(f"ds_write_b128 {v(T)}, {v(XF,4)} offset:8192")
    A(f"ds_write_b128 {v(T)}, {v(XF+4,4)} offset:9216")
    for i in range(8): A(f"v_cvt_pk_bf16_f32 {v(VPN+i)}, {v(VA+2*i)}, {v(VA+2*i+1)}")
    A(f"global_store_dwordx4 {v(vVst)}, {v(VPN,4)}, {s(sA,2)} sc1")
    A(f"global_store_dwordx4 {v(vVst)}, {v(VPN+4,4)}, {s(sA,2)} offset:512 sc1")
    for i in range(8): A(f"v_cvt_pk_bf16_f32 {v(XF+8+i)}, {v(QA+2*i)}, {v(QA+2*i+1)}")
    A(f"ds_write_b128 {v(T)}, {v(XF+8,4)}")
    A(f"ds_write_b128 {v(T)}, {v(XF+12,4)} offset:1024")
    A(f"s_waitcnt vmcnt(0) lgkmcnt(0)")
    A(f"s_barrier")
    if use_flags:
        nf = A.newlabel('W_nf')
        A(f"s_cmp_lg_u32 {s(sW)}, 0"); A(f"s_cbranch_scc1 {nf}")
        A(f"s_lshl_b32 {s(sTmp)}, {s(sNxt)}, 2")
        A(f"v_mov_b32 {v(T)}, {s(sTmp)}"); A(f"v_mov_b32 {v(T+1)}, 1")
        A(f"global_store_dword {v(T)}, {v(T+1)}, {s(sFKV,2)} sc1")
        A.label(nf)
    trace(A, 80, T, sNxt)
    nx = A.newlabel('W_nx')
    A(f"s_add_u32 {s(sTmp2)}, {s(sNxt)}, {NW}")
    A(f"s_cmp_ge_u32 {s(sTmp2)}, 64"); A(f"s_cbranch_scc1 {nx}")
    xn_dma(sTmp2)
    A.label(nx)
    A.label(NOG)
    A(f"s_xor_b32 {s(sBuf)}, {s(sBuf)}, 16384")
    A(f"s_cmp_lt_i32 {s(sCur)}, 0")
    A(f"s_cbranch_scc1 {NOA}")
    SA, MA_, MB_ = QA, KA_, VA
    A(f"v_add_u32 {v(T)}, {s(sBuf)}, {v(vL16)}")
    A(f"v_add_u32 {v(T+1)}, {L_BIAS}, {v(vL16)}")
    for j in range(4): A(f"ds_read_b128 {v(SA+4*j,4)}, {v(T+1)} offset:{1024*j}")
    for k in range(8): A(f"ds_read_b128 {v(XF+4*k,4)}, {v(T)} offset:{1024*k}")
    A(f"s_waitcnt lgkmcnt(8)")
    for k in range(8): A(f"ds_read_b128 {v(MA_+4*k,4)}, {v(T)} offset:{8192+1024*k}")
    for k in range(8):
        A(f"s_waitcnt lgkmcnt({7-k})")
        A(f"v_mfma_f32_32x32x16_bf16 {v(SA,16)}, {v(MA_+4*k,4)}, {v(XF+4*k,4)}, {v(SA,16)}")
    if use_flags:
        pw, pd = A.newlabel('W_pw'), A.newlabel('W_pd')
        A(f"s_mov_b32 {s(sSpin)}, {SPIN_MAX*8}")
        A(f"v_mov_b32 {v(T)}, 0")
        A.label(pw)
        A(f"global_load_dwordx4 {v(T+4,4)}, {v(T)}, {s(sPROG,2)} sc1")
        A(f"s_waitcnt vmcnt(0)")
        A(f"v_min3_u32 {v(T+4)}, {v(T+4)}, {v(T+5)}, {v(T+6)}")
        A(f"v_min_u32 {v(T+4)}, {v(T+4)}, {v(T+7)}")
        A(f"v_cmp_lt_u32 vcc, {s(sCur)}, {v(T+4)}")
        A(f"s_cbranch_vccnz {pd}")
        A(f"s_sleep 2")
        A(f"s_sub_u32 {s(sSpin)}, {s(sSpin)}, 1")
        A(f"s_cbranch_scc0 {pw}")
        A.label(pd)
        tp(A, 0)
    A(f"s_lshl_b32 {s(sTmp)}, {s(sCur)}, 18")
    add64(A, sA, sKM, s(sTmp))
    add64(A, sB, sO, s(sTmp))
    A(f"s_lshr_b32 {s(sTmp)}, {s(sWM0)}, 3")
    A(f"s_add_u32 m0, {s(sTmp)}, {L_KMS}")
    A(f"v_add_u32 {v(T)}, {s(sTmp)}, {v(vL16)}")
    VM = T + 4
    A(f"global_load_lds_dwordx4 {v(T)}, {s(sA,2)} sc1")
    A(f"global_load_dword {v(VM)}, {v(vVmL)}, {s(sA,2)} sc1")
    A(f"global_load_dword {v(VM+1)}, {v(vVmL)}, {s(sA,2)} offset:256 sc1")
    A(f"v_mov_b64 {v(VM+2,2)}, 0")
    A(f"v_add_u32 {v(T+1)}, {L_KMS}, {v(vKmR)}")
    A(f"v_max3_f32 {v(T+2)}, {v(SA)}, {v(SA+1)}, {v(SA+2)}")
    for i in range(3, 15, 2): A(f"v_max3_f32 {v(T+2)}, {v(T+2)}, {v(SA+i)}, {v(SA+i+1)}")
    A(f"v_max_f32 {v(T+2)}, {v(T+2)}, {v(SA+15)}")
    A(f"s_waitcnt vmcnt(0)")
    A(f"s_barrier")
    tp(A, 1)
    for w_ in range(4):
        A(f"ds_read_b64_tr_b16 {v(KF+4*w_,2)}, {v(T+1)} offset:{1024*w_}")
        A(f"ds_read_b64_tr_b16 {v(KF+4*w_+2,2)}, {v(T+1)} offset:{1024*w_+32}")
    for w_ in range(4):
        A(f"s_waitcnt lgkmcnt({6-2*w_})")
        A(f"v_mfma_f32_32x32x16_bf16 {v(MA_,16)}, {v(KF+4*w_,4)}, {v(XF+8*w_,4)}, {v(MA_,16) if w_ else 0}")
        A(f"v_mfma_f32_32x32x16_bf16 {v(MB_,16)}, {v(KF+4*w_,4)}, {v(XF+8*w_+4,4)}, {v(MB_,16) if w_ else 0}")
    tp(A, 2)
    A(f"s_nop 11")
    SM = KF
    for q, (ra, rb) in enumerate(((0, 2), (1, 3), (4, 6), (5, 7))):
        A(f"v_add_f32 {v(SM+q)}, {v(MA_+ra)}, {v(MB_+rb)}")
    A(f"v_max3_f32 {v(T+2)}, {v(T+2)}, {v(SM)}, {v(SM+1)}")
    A(f"v_max3_f32 {v(T+2)}, {v(T+2)}, {v(SM+2)}, {v(SM+3)}")
    A(f"v_mov_b32 {v(T+3)}, {v(T+2)}")
    A(f"s_nop 1")
    A(f"v_permlane32_swap_b32 {v(T+2)}, {v(T+3)}")
    A(f"v_max_f32 {v(T+2)}, {v(T+2)}, {v(T+3)}")
    A(f"v_mul_f32 {v(T+2)}, {s(sC)}, {v(T+2)}")
    regs = [SA + i for i in range(16)] + [SM + i for i in range(4)]
    for r_ in regs: A(f"v_fma_f32 {v(r_)}, {v(r_)}, {s(sC)}, -{v(T+2)}")
    for r_ in regs: A(f"v_exp_f32 {v(r_)}, {v(r_)}")
    P, PMm, OA_ = XF, XF + 8, MA_
    for i in range(8): A(f"v_cvt_pk_bf16_f32 {v(P+i)}, {v(SA+2*i)}, {v(SA+2*i+1)}")
    A(f"v_cvt_pk_bf16_f32 {v(PMm)}, {v(SM)}, {v(SM+1)}")
    A(f"v_cvt_pk_bf16_f32 {v(PMm+1)}, {v(SM+2)}, {v(SM+3)}")
    A(f"v_mov_b64 {v(PMm+2,2)}, 0")
    A(f"v_mfma_f32_32x32x16_bf16 {v(OA_,16)}, {v(VPC,4)}, {v(P,4)}, 0")
    A(f"v_add_f32 {v(T+2)}, {v(regs[0])}, {v(regs[1])}")
    A(f"v_add_f32 {v(T+3)}, {v(regs[2])}, {v(regs[3])}")
    A(f"v_mfma_f32_32x32x16_bf16 {v(OA_,16)}, {v(VPC+4,4)}, {v(P+4,4)}, {v(OA_,16)}")
    for i in range(4, 12): A(f"v_add_f32 {v(T+2+i%2)}, {v(T+2+i%2)}, {v(regs[i])}")
    A(f"v_mfma_f32_32x32x16_bf16 {v(OA_,16)}, {v(VM,4)}, {v(PMm,4)}, {v(OA_,16)}")
    for i in range(12, 20): A(f"v_add_f32 {v(T+2+i%2)}, {v(T+2+i%2)}, {v(regs[i])}")
    A(f"v_add_f32 {v(T+2)}, {v(T+2)}, {v(T+3)}")
    A(f"v_mov_b32 {v(T+3)}, {v(T+2)}")
    A(f"s_nop 1")
    A(f"v_permlane32_swap_b32 {v(T+2)}, {v(T+3)}")
    A(f"v_add_f32 {v(T+2)}, {v(T+2)}, {v(T+3)}")
    A(f"v_rcp_f32 {v(T+2)}, {v(T+2)}")
    A(f"s_nop 0")
    for i in range(16): A(f"v_mul_f32 {v(OA_+i)}, {v(OA_+i)}, {v(T+2)}")
    for i in range(8): A(f"v_cvt_pk_bf16_f32 {v(P+i)}, {v(OA_+2*i)}, {v(OA_+2*i+1)}")
    A(f"global_store_dwordx4 {v(vWL)}, {v(P,4)}, {s(sB,2)} sc1")
    A(f"global_store_dwordx4 {v(vWL)}, {v(P+4,4)}, {s(sB,2)} offset:1024 sc1")
    if osig:
        ns = A.newlabel('W_ns')
        tp(A, 3)
        A(f"s_waitcnt vmcnt(0)")
        A(f"s_barrier")
        A(f"s_cmp_lg_u32 {s(sW)}, 0"); A(f"s_cbranch_scc1 {ns}")
        A(f"s_lshl_b32 {s(sTmp)}, {s(sCur)}, 8"); A(f"s_lshl_b32 {s(sTmp2)}, {s(sH)}, 2")
        A(f"s_add_u32 {s(sTmp)}, {s(sTmp)}, {s(sTmp2)}"); A(f"s_add_u32 {s(sTmp)}, {s(sTmp)}, {FL_SEG + 4*FO_O}")
        A(f"v_mov_b32 {v(T)}, {s(sTmp)}"); A(f"v_mov_b32 {v(T+1)}, 1")
        A(f"global_store_dword {v(T)}, {v(T+1)}, {s(sWS,2)} sc1")
        A.label(ns)
        tp(A, 4)
        trace(A, 8, T, sCur)
        tdump(A, 5, T)
    A.label(NOA)
    for i in range(0, 8, 2): A(f"v_mov_b64 {v(VPC+i,2)}, {v(VPN+i,2)}")
    A(f"s_mov_b32 {s(sCur)}, {s(sNxt)}")
    A(f"s_add_u32 {s(sNxt)}, {s(sNxt)}, {NW}")
    A(f"s_cmp_lt_u32 {s(sCur)}, 64")
    A(f"s_cbranch_scc1 {LOOP}")
    if chain:
        A(f"s_lshl_b32 {s(sTmp)}, {s(sW)}, 6")
        A(f"v_lshrrev_b32 v0, 4, {v(vL16)}")
        A(f"v_add_u32 v0, {s(sTmp)}, v0")
        A(f"s_waitcnt vmcnt(0) lgkmcnt(0)")
        A(f"s_barrier")
        A(f"s_branch {chain}")
    else:
        A(f"s_endpgm")
```

```python
import sys
from common import *
import team, worker, ln, post

HEADER = open('cdna_kernels/' + NAME + '.s.ref').read().split('; Override launch geometry')[0]

def kernel_desc(name, vgpr, sgpr, accum):
    return f""".amdhsa_kernel {name}
  .amdhsa_next_free_vgpr {vgpr}
  .amdhsa_next_free_sgpr {sgpr}
  .amdhsa_accum_offset {accum}
  .amdhsa_group_segment_fixed_size 0
  .amdhsa_kernarg_size 120
  .amdhsa_user_sgpr_count 2
  .amdhsa_user_sgpr_kernarg_segment_ptr 1
  .amdhsa_system_sgpr_workgroup_id_x 1
  .amdhsa_float_denorm_mode_32 3
.end_amdhsa_kernel
"""

def build(kernels, launches):
    out = HEADER
    for n, g, b, l in launches:
        out += f"; @launch kernel={n} grid=({g},1,1) block=({b},1,1) lds={l}\n"
    out += '.amdgcn_target "amdgcn-amd-amdhsa--gfx950"\n.text\n'
    for n, A, *_ in kernels:
        out += f".globl {n}\n.p2align 8\n.type {n},@function\n{n}:\n" + A.text()
    out += '.section .rodata,"a"\n'
    for n, A, vg, sg, ac in kernels:
        out += ".p2align 6\n" + kernel_desc(n, vg, sg, ac)
    return out

def team_only(prof=False, force_slow=False, cfg={}):
    A = Asm()
    A("s_and_b32 s3, s2, 7")
    A("s_cmp_lg_u32 s3, 0")
    A("s_cbranch_scc1 K_exit")
    A("s_cmp_ge_u32 s2, 256")
    A("s_cbranch_scc1 K_exit")
    team.team(A, use_flags=False, prof=prof, force_slow=force_slow, cfg=cfg)
    A.label("K_exit")
    A("s_endpgm")
    errs = A.check(verbose=not prof)
    return build([("team_kernel", A, 512, 96, 256)], [("team_kernel", 256, 256, 163840)])

ROLES = [("r3", 32, 1), ("r6", 44, 1), ("r4", 8, 2), ("sp0", 4, 1), ("r5", 11, 2), ("sp1", 10, 1)]
NWK = 3
def mega4(prof=False, cfg={}):
    NW = NWK
    A = Asm()
    A("s_cmp_ge_u32 s2, 256"); A("s_cbranch_scc1 K_exit")
    trace_init(A)
    dbgt(A, 11, 100)
    if DBGT['on']: A("s_waitcnt vmcnt(0)")
    A("s_and_b32 s3, s2, 7")
    A("s_cmp_lg_u32 s3, 0")
    A("s_cbranch_scc1 K_work")
    team.team(A, use_flags=True, prof=prof, cfg=cfg, chain="K_late7")
    A.label("K_exit")
    A("s_endpgm")
    A.label("K_work")
    A("s_sub_u32 s3, s3, 1"); A("s_lshl_b32 s3, s3, 5"); A("s_lshr_b32 s5, s2, 3"); A("s_add_u32 s3, s3, s5")
    A(f"s_cmp_ge_u32 s3, {32*NW}"); A("s_cbranch_scc1 K_down")
    A(f"s_mul_i32 s4, s3, {(65536 + NW - 1)//NW}"); A("s_lshr_b32 s4, s4, 16")
    A(f"s_mul_i32 s5, s4, {NW}"); A("s_sub_u32 s6, s3, s5")
    worker.worker(A, NW, True, osig=True, chain="K_late7")
    A.label("K_down")
    A(f"s_sub_u32 s60, s3, {32*NW}")
    ln.ln1_body(A, 60, cfg.get('pf', 1))
    if cfg.get('defer', 1): wait_init(A, 8, 10, 8, DBG_TEAM, cfg.get('defern', 128), 16)
    A("s_branch K_pre7")
    A.label("K_late7")
    A("s_mov_b32 s60, 1000")
    A.label("K_pre7")
    post.r7_preload(A)
    A("s_cmp_ge_u32 s60, 128"); A("s_cbranch_scc1 R7_run")
    fns = dict(r3=lambda n: post.r3(A, n), r6=lambda n: post.r6(A), r4=lambda n: post.r4(A, n), r5=lambda n: post.r5(A, n))
    lo = 0
    for k, (nm, nrole, nrep) in enumerate(ROLES):
        A.label(f"K_{nm}")
        hi = lo + nrole * nrep
        if k + 1 < len(ROLES):
            A(f"s_cmp_ge_u32 s60, {hi}"); A(f"s_cbranch_scc1 K_{ROLES[k+1][0]}")
        if nm in fns:
            A(f"s_sub_u32 s61, s60, {lo}")
            A(f"s_mul_i32 s5, s61, {(65536 + nrole - 1)//nrole}"); A("s_lshr_b32 s5, s5, 16")
            A(f"s_mul_i32 s4, s5, {nrole}"); A("s_sub_u32 s4, s61, s4")
            fns[nm](nrep)
        else:
            wait_init(A, post.T, post.sA, post.sSpin)
            A("s_branch R7_run")
        lo = hi
    assert lo == 128
    post.r7_run(A)
    A.check(verbose=not prof)
    return A

def single(A):
    n = NAME + "_kernel"
    out = HEADER + "; @launch grid=(256,1,1) block=(256,1,1) lds=163840\n"
    out += '.amdgcn_target "amdgcn-amd-amdhsa--gfx950"\n.text\n'
    out += f".globl {n}\n.p2align 8\n.type {n},@function\n{n}:\n" + A.text()
    out += '.section .rodata,"a"\n.p2align 6\n' + kernel_desc(n, 512, 96, 256)
    return out

def t3(cfg={}):
    A = mega4(cfg=cfg, prof=cfg.get('prof', False))
    return build([("mega_kernel", A, 512, 96, 256)], [("mega_kernel", 256, 256, 163840)])

def assemble(parts):
    return build([p[0] for p in parts], [p[1] for p in parts])

if __name__ == '__main__':
    mode = sys.argv[1]
    if mode == 'team':
        open(sys.argv[2], 'w').write(team_only(prof=("all" if "prof" in sys.argv else False), force_slow='slow' in sys.argv))
    DEF = {'d1': 20, 'd4': 0}
    if mode == 't3':
        open(sys.argv[2], 'w').write(t3(DEF))
    if mode == 'final':
        open('cdna_kernels/' + NAME + '.s', 'w').write(single(mega4(cfg=DEF)))
    if mode == 'dbgt':
        DBGT['on'] = True
        open('dbgt.s', 'w').write(single(mega4(cfg=DEF)))
```

```python
from asmlib import *
NAME = "sequential_preLN__memory_aug_recurrent_mem_tr__mixer_gmlp__prompt"
KA = dict(x=0, mem0=8, Wq=16, Wk=24, Wv=32, Wo=40, seg=48, Bx=56, w_in=64, w_sp=72, b_sp=80, w_out=88, out=96, dbg=104, ws=112)
WS_XN   = 0x0000000
WS_KV   = 0x0200000
WS_KM   = 0x2200000
WS_O    = 0x3200000
WS_INB  = 0x4200000
WS_MEM  = 0x4280000
WS_FLAG = 0x4380000
WS_PROF = 0x4400000
WS_PART = 0x4800000
WS_H    = 0x5800000
WS_HN   = 0x5A00000
WS_Z    = 0x5C00000
SEG_Z   = 176 * 512
WS_WSP  = 0x6800000
SEG_F   = 88 * 512
WS_Y    = 0x6500000
FL_KV   = WS_FLAG
FL_PROG = WS_FLAG + 0x2000
FL_SEG  = WS_FLAG + 0x4000
FL_SEG2 = WS_FLAG + 0x8000
FO_O, FO_P, FO_HN, FO_Z, FO_Y = 0, 32, 0, 8, 19
WS_STAT = WS_FLAG + 0xA000
FL_BYTES = 0xE000
DBG_INIT = 32
N_INIT = 128
DBG_WSP = 36
SPIN_MAX = 40000

def add64(A, d, src, imm):
    A(f"s_add_u32 {s(d)}, {s(src)}, {imm}")
    A(f"s_addc_u32 {s(d+1)}, {s(src+1)}, 0")

class Lane:
    def __init__(self, A, lane, tmp):
        self.A, self.L, self.t = A, lane, tmp
    def acc(self, dst, fields, add=False):
        for k, (lo, n, sh) in enumerate(fields):
            self.A(f"v_bfe_u32 {v(self.t)}, {v(self.L)}, {lo}, {n}")
            if k == 0 and not add: self.A(f"v_lshlrev_b32 {v(dst)}, {sh}, {v(self.t)}")
            else: self.A(f"v_lshl_add_u32 {v(dst)}, {v(self.t)}, {sh}, {v(dst)}")

def seq(A, items):
    for x in items:
        if isinstance(x, (list, tuple)): seq(A, x)
        elif x and x.startswith('!'): A(x[1:], nochk=True)
        elif x: A(x)

def load_weight_units(A, units, vSrc, vTr, sLB, SRD, sOff, sTmp):
    pend = []
    def issue(i):
        setup, off, dst, n = units[i]
        if setup: setup()
        for m in range(n):
            r_, imm = off(m)
            A(f"s_add_u32 m0, {s(sLB)}, {(i % 8) * 4096 + m * 1024}")
            A(f"s_add_u32 {s(sOff)}, {s(r_)}, {imm}")
            A(f"buffer_load_dwordx4 {v(vSrc)}, {s(SRD,4)}, {s(sOff)} offen lds")
    N = len(units)
    for i in range(min(8, N)): issue(i)
    for i in range(N):
        younger = sum(units[k][3] for k in range(i + 1, min(i + 8, N)))
        A(f"s_waitcnt vmcnt({younger})")
        _, _, dst, n = units[i]
        for m in range(n):
            for q in range(2):
                A(f"ds_read_b64_tr_b16 {R(dst+4*m+2*q,2)}, {v(vTr)} offset:{(i%8)*4096+m*1024+q*256}")
        A(f"s_waitcnt lgkmcnt(0)")
        if i + 8 < N: issue(i + 8)

def weight_lane_consts(A, ln, vSrc, vTr, sLB, sStride, tmp2):
    A(f"v_lshrrev_b32 {v(tmp2)}, 2, {v(ln.L)}")
    A(f"v_mul_lo_u32 {v(vSrc)}, {v(tmp2)}, {s(sStride)}")
    ln.acc(vSrc, [(0, 2, 4)], add=True)
    ln.acc(vTr, [(5, 1, 9), (2, 2, 6), (4, 1, 5), (0, 1, 4), (1, 1, 3)])
    A(f"v_add_u32 {v(vTr)}, {s(sLB)}, {v(vTr)}")

TRACE = {'on': False}
sTR = 90
def trace_init(A):
    if not TRACE['on']: return
    A(f"s_load_dwordx2 s[90:91], s[0:1], {KA['ws']}")
    A(f"s_memrealtime s[88:89]")
    A(f"s_lshl_b32 s94, s2, 10")
    A(f"s_add_u32 s94, s94, {WS_PROF + 0x100000}")
    A(f"s_waitcnt lgkmcnt(0)")
    A(f"s_add_u32 s90, s90, s94"); A(f"s_addc_u32 s91, s91, 0")
def trace(A, slot, t, sreg=None, first=False):
    if not TRACE['on']: return
    if not first:
        A(f"s_memrealtime s[92:93]")
    if sreg is None: A(f"s_mov_b32 s94, {4*slot}")
    else:
        A(f"s_lshl_b32 s94, {s(sreg)}, 2"); A(f"s_add_u32 s94, s94, {4*slot}")
    A(f"s_waitcnt lgkmcnt(0)")
    A(f"v_mov_b32 {v(t)}, s94"); A(f"v_mov_b32 {v(t+1)}, {'s88' if first else 's92'}")
    A(f"global_store_dword {v(t)}, {v(t+1)}, s[90:91]")

def wait_init(A, t, sP, sSpin, off=DBG_INIT, n=N_INIT):
    lw, ld = A.newlabel('I_w'), A.newlabel('I_d')
    A(f"s_load_dwordx2 {s(sP,2)}, s[0:1], {KA['dbg']}")
    A(f"v_mov_b32 {v(t)}, {off}")
    A(f"s_mov_b32 {s(sSpin)}, {SPIN_MAX*8}")
    A(f"s_waitcnt lgkmcnt(0)")
    A.label(lw)
    A(f"global_load_dword {v(t+1)}, {v(t)}, {s(sP,2)} sc1")
    A(f"s_waitcnt vmcnt(0)")
    A(f"v_cmp_le_u32 vcc, {n}, {v(t+1)}")
    A(f"s_cbranch_vccnz {ld}")
    A(f"s_sleep 4")
    A(f"s_sub_u32 {s(sSpin)}, {s(sSpin)}, 1")
    A(f"s_cbranch_scc0 {lw}")
    A.label(ld)

def tp(A, k):
    if TRACE['on']: A(f"s_memrealtime s[{64+2*k}:{65+2*k}]")
def tdump(A, n, t, slot=160):
    if not TRACE['on']: return
    A("s_waitcnt lgkmcnt(0)")
    for k in range(n):
        A(f"v_mov_b32 {v(t)}, {4*(slot+k)}"); A(f"v_mov_b32 {v(t+1)}, s{64+2*k}")
        A(f"global_store_dword {v(t)}, {v(t+1)}, s[90:91]")

DBGT = {'on': False}
def dbgt(A, idx, t, neg=False):
    if not DBGT['on']: return
    sk = A.newlabel('D_sk')
    A(f"s_and_b32 s86, s2, {31 if idx == 15 else 255}")
    A(f"s_cmp_lg_u32 s86, {5 if idx == 15 else 0}"); A(f"s_cbranch_scc1 {sk}")
    A(f"s_load_dwordx2 s[84:85], s[0:1], {KA['dbg']}")
    A(f"s_memrealtime s[86:87]")
    A(f"s_waitcnt lgkmcnt(0)")
    A(f"s_and_b32 s86, s86, 0xffffff")
    if neg: A(f"s_sub_u32 s86, 0x1000000, s86")
    A(f"v_mov_b32 {v(t)}, {4*idx}"); A(f"v_mov_b32 {v(t+1)}, s86")
    A(f"s_mov_b64 exec, 1")
    A(f"global_atomic_umax {v(t)}, {v(t+1)}, s[84:85] sc1")
    A(f"s_mov_b64 exec, -1")
    A(f"s_waitcnt vmcnt(0)")
    A.label(sk)
```

```python
from asmlib import *
NAME = "sequential_preLN__memory_aug_recurrent_mem_tr__mixer_gmlp__prompt"
KA = dict(x=0, mem0=8, Wq=16, Wk=24, Wv=32, Wo=40, seg=48, Bx=56, w_in=64, w_sp=72, b_sp=80, w_out=88, out=96, dbg=104, ws=112)
WS_XN   = 0x0000000
WS_KV   = 0x0200000
WS_KM   = 0x2200000
WS_O    = 0x3200000
WS_INB  = 0x4200000
WS_MEM  = 0x4280000
WS_FLAG = 0x4380000
WS_PROF = 0x4400000
WS_PART = 0x4800000
WS_H    = 0x5800000
WS_HN   = 0x5A00000
WS_Z    = 0x5C00000
SEG_Z   = 176 * 512
WS_WSP  = 0x6800000
SEG_F   = 88 * 512
WS_Y    = 0x6500000
FL_KV   = WS_FLAG
FL_PROG = WS_FLAG + 0x2000
FL_SEG  = WS_FLAG + 0x4000
FL_SEG2 = WS_FLAG + 0x8000
FO_O, FO_P, FO_HN, FO_Z, FO_Y = 0, 32, 0, 8, 19
WS_STAT = WS_FLAG + 0xA000
FL_BYTES = 0xE000
DBG_INIT = 32
N_INIT = 128
DBG_WSP = 36
DBG_TEAM = 128
SPIN_MAX = 40000

def add64(A, d, src, imm):
    A(f"s_add_u32 {s(d)}, {s(src)}, {imm}")
    A(f"s_addc_u32 {s(d+1)}, {s(src+1)}, 0")

class Lane:
    def __init__(self, A, lane, tmp):
        self.A, self.L, self.t = A, lane, tmp
    def acc(self, dst, fields, add=False):
        for k, (lo, n, sh) in enumerate(fields):
            self.A(f"v_bfe_u32 {v(self.t)}, {v(self.L)}, {lo}, {n}")
            if k == 0 and not add: self.A(f"v_lshlrev_b32 {v(dst)}, {sh}, {v(self.t)}")
            else: self.A(f"v_lshl_add_u32 {v(dst)}, {v(self.t)}, {sh}, {v(dst)}")

def seq(A, items):
    for x in items:
        if isinstance(x, (list, tuple)): seq(A, x)
        elif x and x.startswith('!'): A(x[1:], nochk=True)
        elif x: A(x)

def load_weight_units(A, units, vSrc, vTr, sLB, SRD, sOff, sTmp):
    pend = []
    def issue(i):
        setup, off, dst, n = units[i]
        if setup: setup()
        for m in range(n):
            r_, imm = off(m)
            A(f"s_add_u32 m0, {s(sLB)}, {(i % 8) * 4096 + m * 1024}")
            A(f"s_add_u32 {s(sOff)}, {s(r_)}, {imm}")
            A(f"buffer_load_dwordx4 {v(vSrc)}, {s(SRD,4)}, {s(sOff)} offen lds")
    N = len(units)
    for i in range(min(8, N)): issue(i)
    for i in range(N):
        younger = sum(units[k][3] for k in range(i + 1, min(i + 8, N)))
        A(f"s_waitcnt vmcnt({younger})")
        _, _, dst, n = units[i]
        for m in range(n):
            for q in range(2):
                A(f"ds_read_b64_tr_b16 {R(dst+4*m+2*q,2)}, {v(vTr)} offset:{(i%8)*4096+m*1024+q*256}")
        A(f"s_waitcnt lgkmcnt(0)")
        if i + 8 < N: issue(i + 8)

def weight_lane_consts(A, ln, vSrc, vTr, sLB, sStride, tmp2):
    A(f"v_lshrrev_b32 {v(tmp2)}, 2, {v(ln.L)}")
    A(f"v_mul_lo_u32 {v(vSrc)}, {v(tmp2)}, {s(sStride)}")
    ln.acc(vSrc, [(0, 2, 4)], add=True)
    ln.acc(vTr, [(5, 1, 9), (2, 2, 6), (4, 1, 5), (0, 1, 4), (1, 1, 3)])
    A(f"v_add_u32 {v(vTr)}, {s(sLB)}, {v(vTr)}")

TRACE = {'on': False}
sTR = 90
def trace_init(A):
    if not TRACE['on']: return
    A(f"s_load_dwordx2 s[90:91], s[0:1], {KA['ws']}")
    A(f"s_memrealtime s[88:89]")
    A(f"s_lshl_b32 s94, s2, 10")
    A(f"s_add_u32 s94, s94, {WS_PROF + 0x100000}")
    A(f"s_waitcnt lgkmcnt(0)")
    A(f"s_add_u32 s90, s90, s94"); A(f"s_addc_u32 s91, s91, 0")
def trace(A, slot, t, sreg=None, first=False):
    if not TRACE['on']: return
    if not first:
        A(f"s_memrealtime s[92:93]")
    if sreg is None: A(f"s_mov_b32 s94, {4*slot}")
    else:
        A(f"s_lshl_b32 s94, {s(sreg)}, 2"); A(f"s_add_u32 s94, s94, {4*slot}")
    A(f"s_waitcnt lgkmcnt(0)")
    A(f"v_mov_b32 {v(t)}, s94"); A(f"v_mov_b32 {v(t+1)}, {'s88' if first else 's92'}")
    A(f"global_store_dword {v(t)}, {v(t+1)}, s[90:91]")

def wait_init(A, t, sP, sSpin, off=DBG_INIT, n=N_INIT, sleep=4):
    lw, ld = A.newlabel('I_w'), A.newlabel('I_d')
    A(f"s_load_dwordx2 {s(sP,2)}, s[0:1], {KA['dbg']}")
    A(f"v_mov_b32 {v(t)}, {off}")
    A(f"s_mov_b32 {s(sSpin)}, {SPIN_MAX*8}")
    A(f"s_waitcnt lgkmcnt(0)")
    A.label(lw)
    A(f"global_load_dword {v(t+1)}, {v(t)}, {s(sP,2)} sc1")
    A(f"s_waitcnt vmcnt(0)")
    A(f"v_cmp_le_u32 vcc, {n}, {v(t+1)}")
    A(f"s_cbranch_vccnz {ld}")
    A(f"s_sleep {sleep}")
    A(f"s_sub_u32 {s(sSpin)}, {s(sSpin)}, 1")
    A(f"s_cbranch_scc0 {lw}")
    A.label(ld)

def tp(A, k):
    if TRACE['on']: A(f"s_memrealtime s[{64+2*k}:{65+2*k}]")
def tdump(A, n, t, slot=160):
    if not TRACE['on']: return
    A("s_waitcnt lgkmcnt(0)")
    for k in range(n):
        A(f"v_mov_b32 {v(t)}, {4*(slot+k)}"); A(f"v_mov_b32 {v(t+1)}, s{64+2*k}")
        A(f"global_store_dword {v(t)}, {v(t+1)}, s[90:91]")

DBGT = {'on': False}
def dbgt(A, idx, t, neg=False):
    if not DBGT['on']: return
    sk = A.newlabel('D_sk')
    A(f"s_and_b32 s86, s2, {31 if idx == 15 else 255}")
    A(f"s_cmp_lg_u32 s86, {5 if idx == 15 else 0}"); A(f"s_cbranch_scc1 {sk}")
    A(f"s_load_dwordx2 s[84:85], s[0:1], {KA['dbg']}")
    A(f"s_memrealtime s[86:87]")
    A(f"s_memtime s[82:83]")
    A(f"s_waitcnt lgkmcnt(0)")
    A(f"s_and_b32 s86, s86, 0xffffff")
    if neg: A(f"s_sub_u32 s86, 0x1000000, s86")
    A(f"v_mov_b32 {v(t)}, {4*idx}"); A(f"v_mov_b32 {v(t+1)}, s86")
    A(f"s_mov_b64 exec, 1")
    A(f"global_atomic_umax {v(t)}, {v(t+1)}, s[84:85] sc1")
    A(f"v_mov_b32 {v(t+1)}, s82")
    A(f"global_store_dword {v(t)}, {v(t+1)}, s[84:85] offset:32 sc1")
    A(f"s_mov_b64 exec, -1")
    A(f"s_waitcnt vmcnt(0)")
    A.label(sk)
```

```python
from common import *
dppadd = lambda r_, n: f"v_add_f32_dpp {v(r_)}, {v(r_)}, {v(r_)} row_ror:{n} row_mask:0xf bank_mask:0xf"

def allreduce(A, r_, t, TPW):
    n = TPW
    while n < 16:
        A("s_nop 1"); A(dppadd(r_, n)); n *= 2
    for op in ('v_permlane16_swap_b32', 'v_permlane32_swap_b32'):
        A(f"v_mov_b32 {v(t)}, {v(r_)}")
        A("s_nop 1")
        A(f"{op} {v(r_)}, {v(t)}")
        A(f"v_add_f32 {v(r_)}, {v(r_)}, {v(t)}")

def unpack(A, dst, src, n):
    for i in range(n):
        A(f"v_lshlrev_b32 {v(dst+2*i)}, 16, {v(src+i)}")
        A(f"v_and_b32 {v(dst+2*i+1)}, 0xffff0000, {v(src+i)}")

def rnd1(A, r_):
    A(f"v_cvt_pk_bf16_f32 {v(r_)}, {v(r_)}, {v(r_)}")
    A(f"v_and_b32 {v(r_)}, 0xffff0000, {v(r_)}")

def ln_core(A, X, n, D, TPW, out, t, tailmask=None, ntail=0):
    s0, s1, m, mb = t, t + 1, t + 2, t + 3
    A(f"v_add_f32 {v(s0)}, {v(X)}, {v(X+1)}")
    A(f"v_add_f32 {v(s1)}, {v(X+2)}, {v(X+3)}")
    for i in range(4, n): A(f"v_add_f32 {v(s0+i%2)}, {v(s0+i%2)}, {v(X+i)}")
    A(f"v_add_f32 {v(s0)}, {v(s0)}, {v(s1)}")
    allreduce(A, s0, s1, TPW)
    import struct
    inv = struct.unpack('<I', struct.pack('<f', 1.0 / D))[0]
    A(f"v_mul_f32 {v(m)}, {hex(inv)}, {v(s0)}")
    A(f"v_mov_b32 {v(mb)}, {v(m)}")
    rnd1(A, mb)
    A(f"v_mov_b32 {v(s0)}, 0"); A(f"v_mov_b32 {v(s1)}, 0")
    d = t + 4
    for i in range(n):
        if tailmask is not None and i == n - ntail: A(f"s_mov_b64 exec, {s(tailmask,2)}")
        A(f"v_sub_f32 {v(d+i%2)}, {v(X+i)}, {v(m)}")
        A(f"v_fmac_f32 {v(s0+i%2)}, {v(d+i%2)}, {v(d+i%2)}")
    if tailmask is not None: A(f"s_mov_b64 exec, -1")
    A(f"v_add_f32 {v(s0)}, {v(s0)}, {v(s1)}")
    allreduce(A, s0, s1, TPW)
    A(f"v_mul_f32 {v(s0)}, {hex(inv)}, {v(s0)}")
    rnd1(A, s0)
    A(f"v_add_f32 {v(s0)}, 0x3727c5ac, {v(s0)}")
    rnd1(A, s0)
    A(f"v_sqrt_f32 {v(s0)}, {v(s0)}")
    A(f"s_nop 0")
    rnd1(A, s0)
    A(f"v_rcp_f32 {v(s0)}, {v(s0)}")
    for i in range(0, n, 2):
        A(f"v_sub_f32 {v(X+i)}, {v(X+i)}, {v(mb)}")
        A(f"v_sub_f32 {v(X+i+1)}, {v(X+i+1)}, {v(mb)}")
        A(f"v_cvt_pk_bf16_f32 {v(d)}, {v(X+i)}, {v(X+i+1)}")
        A(f"v_lshlrev_b32 {v(X+i)}, 16, {v(d)}")
        A(f"v_and_b32 {v(X+i+1)}, 0xffff0000, {v(d)}")
        A(f"v_mul_f32 {v(X+i)}, {v(X+i)}, {v(s0)}")
        A(f"v_mul_f32 {v(X+i+1)}, {v(X+i+1)}, {v(s0)}")
        A(f"v_cvt_pk_bf16_f32 {v(out+i//2)}, {v(X+i)}, {v(X+i+1)}")

def ln1_body(A, sD, pf=True):
    TPW = 4
    A(f"s_load_dwordx2 s[10:11], s[0:1], {KA['x']}")
    A(f"s_load_dwordx2 s[12:13], s[0:1], {KA['ws']}")
    A(f"s_load_dwordx2 s[14:15], s[0:1], {KA['dbg']}")
    A(f"s_load_dwordx8 s[20:27], s[0:1], {KA['Wq']}")
    ln = Lane(A, 0, 2)
    ln.acc(3, [(6, 2, 12), (0, 2, 10), (2, 4, 4)])
    ln.acc(4, [(2, 4, 9), (6, 2, 6), (0, 2, 4)])
    A(f"s_lshl_b32 s8, {s(sD)}, 14")
    A(f"s_lshr_b32 s9, {s(sD)}, 1"); A("s_lshl_b32 s9, s9, 15"); A(f"s_and_b32 s7, {s(sD)}, 1"); A("s_lshl_b32 s7, s7, 8"); A("s_add_u32 s9, s9, s7")
    A("s_waitcnt lgkmcnt(0)")
    add64(A, 10, 10, "s8")
    for j in range(4): A(f"global_load_dwordx4 {v(16+4*j,4)}, v3, s[10:11] offset:{256*j}")
    A(f"s_cmp_lg_u32 {s(sD)}, 0"); A("s_cbranch_scc1 LN1_nf")
    A("v_lshlrev_b32 v5, 4, v0")
    A("v_mov_b64 v[8:9], 0"); A("v_mov_b64 v[10:11], 0")
    for q in range(FL_BYTES // 4096):
        add64(A, 16, 12, WS_FLAG + 4096 * q)
        A(f"global_store_dwordx4 v5, v[8:11], s[16:17] sc1")
    A.label("LN1_nf")
    add64(A, 12, 12, "s9")
    if WS_XN: add64(A, 12, 12, WS_XN)
    if pf:
        A(f"s_lshl_b32 s7, {s(sD)}, 15")
        A("v_lshlrev_b32 v5, 4, v0")
        A("v_add_u32 v5, s7, v5")
        for q in range(8):
            for m in (2, 0, 3, 1):
                A(f"global_load_dwordx4 v[64:67], v5, s[{20+2*m}:{21+2*m}]", nochk=True)
            A("v_add_u32 v5, 4096, v5")
    A(f"s_waitcnt vmcnt({32 if pf else 0})")
    unpack(A, 32, 16, 16)
    ln_core(A, 32, 32, 512, TPW, 16, 8)
    for j in range(4):
        A(f"global_store_dwordx4 v4, {v(16+4*j,4)}, s[12:13] sc1")
        if j < 3: add64(A, 12, 12, 8192)
    A("s_waitcnt vmcnt(0)")
    A("s_barrier")
    A("v_cmp_eq_u32 vcc, 0, v0")
    A(f"v_mov_b32 v8, {DBG_INIT}"); A("v_mov_b32 v9, 1")
    A("s_and_saveexec_b64 s[16:17], vcc")
    A("s_cbranch_execz LN1_ns")
    A("global_atomic_add v8, v9, s[14:15] sc1")
    A.label("LN1_ns")
    A("s_mov_b64 exec, -1")
```

```python
from common import *

L_MEM, L_KX, L_VX, L_Q, L_O = 0, 8192, 16384, 24576, 26624
L_K = L_MEM
L_SEL, L_ONES, L_MW, L_ZERO = 28672, 29696, 30720, 31744
L_W = 32768
vL16, vIdx, vInbW, vLdsW, vMemL, vQW, vQR, vKR, vOW, vDum = range(10)
PZ = 10
T0, T1, T2, T3 = 12, 13, 14, 15
MA, WIN, AQ, AK, AV, VX = 16, 48, 96, 104, 112, 120
sW, sH, sStep, sSpin, sTmp, sTmp2 = 3, 4, 5, 6, 7, 8
sC = 9
sHi = 10
sKV, sKM, sINBw, sINBp, sINBr, sMEMr, sMEMw, sFKV, sPROG = 12, 14, 16, 18, 20, 22, 24, 26, 28
sWS, sDBG = 30, 32
sTag = 34
SRD = 36
sPTR = 40
sM0P = 48
sPROF = 50
sRdy = 52
sMode = 54
sKXM0 = 56
sLB = 57
sCnt1, sCnt2 = 58, 59
sLo, sRange = 18, 19
sKV2 = 40
sSlot = 49
sMA, sMB, sMC = 60, 62, 36
sTM = 64
NST = 12

perm_units = [('K', j) for j in range(8)] + [('V', j) for j in range(8)] + [('Q', j) for j in range(3, 8)] + [('O', (0, 0)), ('O', (0, 1)), ('O', (1, 0))]
lds_units = [('Q', 0), ('Q', 1), ('Q', 2), ('O', (1, 1)), ('O', (2, 0)), ('O', (2, 1)), ('O', (3, 0)), ('O', (3, 1))]
units = perm_units + lds_units
PERM = {u: 128 + 16 * i for i, u in enumerate(perm_units)}
LDSU = {u: i for i, u in enumerate(lds_units)}
QWIN = {0: WIN + 16, 1: WIN + 32, 2: WIN}
OWIN = {(1, 1): WIN, (2, 0): MA, (2, 1): MA + 16, (3, 0): WIN + 32, (3, 1): WIN + 16}

def frag(M, j, t):
    u = (M, j)
    if u in PERM: return R(PERM[u] + 8 * t, 8)
    if M == 'Q': return R(QWIN[j] + 8 * t, 8)
    return R(OWIN[j] + 8 * t, 8)

def SM(acc, areg, b):
    return f"v_smfmac_f32_16x16x64_bf16 {v(acc,4)}, {v(areg,4)}, {b}, {v(vIdx)}"

def win_reads(ulist):
    out = []
    for u in ulist:
        base = QWIN[u[1]] if u[0] == 'Q' else OWIN[u[1]]
        for q in range(4):
            out.append(f"ds_read_b128 {v(base+4*q,4)}, {v(vLdsW)} offset:{LDSU[u]*4096+q*1024}")
    return out

def team_prologue(A, use_flags, prof):
    A(f"s_lshr_b32 {s(sH)}, s2, 3")
    A(f"v_lshrrev_b32 {v(T0)}, 6, v0")
    A(f"s_load_dwordx8 {s(sPTR,8)}, s[0:1], {KA['Wq']}")
    A(f"s_load_dwordx2 {s(sM0P,2)}, s[0:1], {KA['mem0']}")
    A(f"s_load_dwordx2 {s(sDBG,2)}, s[0:1], {KA['dbg']}")
    A(f"s_load_dwordx2 {s(sWS,2)}, s[0:1], {KA['ws']}")
    A(f"v_readfirstlane_b32 {s(sW)}, {v(T0)}")
    A(f"v_and_b32 v16, 63, v0")
    L = 16
    n16, g4, ta, tb, tc = 17, 18, 19, 20, 21
    vSrcP, vSrcO, vTr0, vTr1, vCol, vMemW = 22, 23, 24, 25, 26, 27
    def bits(dst, lo, n): A(f"v_bfe_u32 {v(dst)}, {v(L)}, {lo}, {n}")
    def acc(dst, lo, n, sh, first=False, tmp=tb):
        bits(tmp, lo, n)
        if first: A(f"v_lshlrev_b32 {v(dst)}, {sh}, {v(tmp)}")
        else: A(f"v_lshl_add_u32 {v(dst)}, {v(tmp)}, {sh}, {v(dst)}")
    def addw(dst, sh, imm=0):
        A(f"s_lshl_b32 {s(sTmp)}, {s(sW)}, {sh}")
        if imm: A(f"s_add_u32 {s(sTmp)}, {s(sTmp)}, {imm}")
        A(f"v_add_u32 {v(dst)}, {s(sTmp)}, {v(dst)}")
    A(f"v_lshlrev_b32 {v(vL16)}, 4, {v(L)}")
    A(f"v_and_b32 {v(n16)}, 15, {v(L)}")
    A(f"v_cmp_lt_u32 {s(sHi,2)}, 7, {v(n16)}")
    bits(ta, 1, 1)
    A(f"v_cmp_eq_u32 vcc, 1, {v(ta)}")
    A(f"v_mov_b32 {v(ta)}, 0x44444444")
    A(f"v_mov_b32 {v(tb)}, 0xeeeeeeee")
    A(f"v_cndmask_b32 {v(vIdx)}, {v(ta)}, {v(tb)}, vcc")
    acc(vInbW, 3, 3, 13, True); acc(vInbW, 0, 3, 3); addw(vInbW, 16)
    acc(vMemW, 4, 2, 4, True); acc(vMemW, 0, 2, 2)
    A(f"s_lshl_b32 {s(sLB)}, {s(sW)}, 15")
    A(f"s_add_u32 {s(sLB)}, {s(sLB)}, {L_W}")
    A(f"v_add_u32 {v(vLdsW)}, {s(sLB)}, {v(vL16)}")
    A(f"v_mov_b32 {v(vMemL)}, {v(vL16)}"); addw(vMemL, 11)
    A(f"s_add_u32 {s(sKXM0)}, {s(sTmp)}, {L_KX}")
    acc(vQW, 0, 4, 4, True); acc(vQW, 4, 2, 2); addw(vQW, 9, L_Q)
    acc(vQR, 5, 1, 9, True); acc(vQR, 4, 1, 7); acc(vQR, 2, 2, 4); acc(vQR, 0, 1, 3)
    acc(vKR, 5, 1, 10, True); acc(vKR, 0, 2, 7); acc(vKR, 1, 1, 5); acc(vKR, 4, 1, 6); acc(vKR, 2, 2, 3)
    acc(vOW, 5, 1, 8, True); acc(vOW, 1, 2, 6); acc(vOW, 4, 1, 5); acc(vOW, 0, 1, 4); acc(vOW, 3, 1, 3); addw(vOW, 9)
    acc(ta, 2, 1, 4, True)
    A(f"v_mov_b32 {v(tc)}, 0x3f80")
    A(f"v_lshlrev_b32 {v(tc)}, {v(ta)}, {v(tc)}")
    acc(ta, 0, 2, 1, True); acc(ta, 3, 1, 0)
    for q in range(4):
        A(f"v_cmp_eq_u32 vcc, {q}, {v(ta)}")
        A(f"s_nop 1")
        A(f"v_cndmask_b32 {v(28+q)}, 0, {v(tc)}, vcc")
    A(f"ds_write_b128 {v(vL16)}, {v(28,4)} offset:{L_SEL}")
    for q in range(4): A(f"v_mov_b32 {v(40+q)}, 0x3f803f80")
    A(f"ds_write_b128 {v(vL16)}, {v(40,4)} offset:{L_ONES}")
    A(f"ds_write_b32 {v(vL16)}, {v(vMemW)} offset:{L_MW}")
    for q in range(4): A(f"v_mov_b32 {v(44+q)}, 0")
    A(f"ds_write_b128 {v(vL16)}, {v(44,4)} offset:{L_ZERO}")
    bits(ta, 1, 1); bits(tc, 4, 1)
    A(f"v_xor_b32 {v(ta)}, {v(ta)}, {v(tc)}")
    A(f"v_lshlrev_b32 {v(vCol)}, 5, {v(ta)}")
    acc(vCol, 0, 1, 4)
    acc(ta, 4, 2, 2, True); acc(ta, 2, 1, 0); acc(ta, 3, 1, 4)
    A(f"v_lshl_add_u32 {v(vSrcP)}, {v(ta)}, 13, {v(vCol)}")
    acc(ta, 4, 1, 4, True); acc(ta, 5, 1, 3); acc(ta, 3, 1, 2); acc(ta, 2, 1, 0)
    A(f"v_lshl_add_u32 {v(vSrcO)}, {v(ta)}, 10, {v(vCol)}")
    acc(vTr0, 2, 4, 6, True); acc(vTr0, 4, 1, 5); acc(vTr0, 0, 2, 3)
    A(f"v_add_u32 {v(vTr0)}, {s(sLB)}, {v(vTr0)}")
    A(f"v_xor_b32 {v(vTr1)}, 32, {v(vTr0)}")
    A(f"s_waitcnt lgkmcnt(0)")
    def base(dst, terms, imm):
        A(f"s_mov_b32 {s(sTmp2)}, {imm}")
        for r_, sh in terms:
            A(f"s_lshl_b32 {s(sTmp)}, {s(r_)}, {sh}")
            A(f"s_add_u32 {s(sTmp2)}, {s(sTmp2)}, {s(sTmp)}")
        add64(A, dst, sWS, s(sTmp2))
    base(sKV, [(sH, 20)], WS_KV)
    base(sKM, [(sH, 18)], WS_KM)
    base(sINBr, [(sH, 13)], WS_INB)
    base(sINBw, [(sH, 6)], WS_INB + 4096)
    A(f"s_lshr_b32 {s(sCnt1)}, {s(sH)}, 3")
    A(f"s_and_b32 {s(sCnt2)}, {s(sH)}, 1")
    A(f"s_bfe_u32 {s(sSpin)}, {s(sH)}, 0x20001")
    base(sMEMw, [(sW, 11), (sCnt1, 9), (sCnt2, 8), (sSpin, 6)], WS_MEM)
    base(sMEMr, [], WS_MEM)
    base(sFKV, [(sH, 8)], FL_KV)
    base(sPROG, [(sH, 6), (sW, 2)], FL_PROG)
    if prof: base(sPROF, [(sH, 15), (sW, 13)], WS_PROF)
    A(f"s_mov_b32 {s(sC)}, 0x3e0293ee")
    for q in range(4): A(f"v_mov_b32 {v(28+q)}, -1")
    for off in (0, 1024):
        A(f"global_store_dwordx4 {v(vMemL)}, {v(28,4)}, {s(sINBr,2)} offset:{off} sc1")
    for q in range(4):
        A(f"v_add_u32 {v(ta)}, {8192*q}, {v(vMemW)}")
        A(f"global_store_dword {v(ta)}, {v(28)}, {s(sMEMw,2)} sc1")
    acc(ta, 2, 2, 11, True); acc(ta, 0, 1, 10); acc(ta, 5, 1, 8); acc(ta, 4, 1, 4); acc(ta, 1, 1, 5); addw(ta, 6)
    TMPA = 32
    for b in range(2):
        A(f"global_load_dwordx4 {v(TMPA+4*b,4)}, {v(ta)}, {s(sM0P,2)} offset:{512*b}")
    A(f"s_mov_b32 {s(SRD+2)}, 0x400000")
    A(f"s_mov_b32 {s(SRD+3)}, 0x20000")
    sCol, sColO, sOff = 60, 61, 62
    A(f"s_lshl_b32 {s(sCol)}, {s(sH)}, 8")
    A(f"s_lshl_b32 {s(sTmp)}, {s(sW)}, 6")
    A(f"s_add_u32 {s(sCol)}, {s(sCol)}, {s(sTmp)}")
    A(f"s_lshl_b32 {s(sColO)}, {s(sH)}, 17")
    A(f"s_lshl_b32 {s(sTmp)}, {s(sW)}, 8")
    A(f"s_add_u32 {s(sColO)}, {s(sColO)}, {s(sTmp)}")
    A(f"s_lshl_b32 {s(sTmp2)}, {s(sW)}, 1")
    cur = [None]
    def issue(i):
        M, j = units[i]
        slot = i % 8
        if cur[0] != M:
            p = sPTR + 2 * 'QKVO'.index(M)
            A(f"s_mov_b32 {s(SRD)}, {s(p)}")
            A(f"s_and_b32 {s(SRD+1)}, {s(p+1)}, 0xffff")
            cur[0] = M
        if M == 'O':
            p_, kb2 = j
            b0 = 64 * kb2 * 1024 + p_ * 64
            for m in range(4):
                A(f"s_add_u32 m0, {s(sLB)}, {slot*4096 + m*1024}")
                A(f"s_add_u32 {s(sOff)}, {s(sColO)}, {b0 + (32*(m//2) + 2*(m%2)) * 1024}")
                A(f"buffer_load_dwordx4 {v(vSrcO)}, {s(SRD,4)}, {s(sOff)} offen lds")
        else:
            A(f"s_xor_b32 {s(sTmp)}, {s(sTmp2)}, {j}")
            A(f"s_lshr_b32 {s(sTmp)}, {s(sTmp)}, 1")
            A(f"s_lshl_b32 {s(sTmp)}, {s(sTmp)}, 18")
            A(f"s_add_u32 {s(sTmp)}, {s(sTmp)}, {s(sCol)}")
            for m in range(4):
                A(f"s_add_u32 m0, {s(sLB)}, {slot*4096 + m*1024}")
                A(f"s_add_u32 {s(sOff)}, {s(sTmp)}, {(256*(j%2) + 128*(m//2) + 2*(m%2)) * 8192}")
                A(f"buffer_load_dwordx4 {v(vSrcP)}, {s(SRD,4)}, {s(sOff)} offen lds")
    tp(A, 0)
    for i in range(8): issue(i)
    tp(A, 1)
    A(f"s_waitcnt vmcnt(32)")
    A(f"s_barrier")
    lab = A.newlabel('T_noarr')
    A(f"s_cmp_lg_u32 {s(sW)}, 0")
    A(f"s_cbranch_scc1 {lab}")
    A(f"s_getreg_b32 {s(sTmp)}, hwreg(HW_REG_XCC_ID)")
    A(f"s_and_b32 {s(sTmp)}, {s(sTmp)}, 7")
    A(f"s_lshl_b32 {s(sTmp)}, {s(sTmp)}, 2")
    A(f"v_mov_b32 {v(ta)}, {s(sTmp)}")
    A(f"v_mov_b32 {v(tb)}, 1")
    A(f"s_mov_b64 exec, 1")
    A(f"global_atomic_add {v(ta)}, {v(tb)}, {s(sDBG,2)} sc1")
    A(f"s_mov_b64 exec, -1")
    A(f"s_waitcnt vmcnt(0)")
    A.label(lab)
    TW = 48
    for i in range(32):
        slot = i % 8
        A(f"s_waitcnt vmcnt({min(31 - i, 7) * 4 + (1 if i > 23 and use_flags else 0)})")
        if i % 4 == 0: tp(A, 2 + i // 4)
        dst = PERM[units[i]] if units[i] in PERM else TW
        for t in range(2):
            for m in range(4):
                A(f"ds_read_b64_tr_b16 {R(dst+8*t+2*m,2)}, {v(vTr1 if t else vTr0)} offset:{slot*4096+m*1024}")
        A(f"s_waitcnt lgkmcnt(0)")
        if i + 8 < 32: issue(i + 8)
        if i == 23 and use_flags:
            A(f"v_mov_b32 {v(T0)}, {DBG_TEAM}"); A(f"v_mov_b32 {v(T1)}, 1")
            A(f"s_mov_b64 exec, 1")
            A(f"global_atomic_add {v(T0)}, {v(T1)}, {s(sDBG,2)} sc1")
            A(f"s_mov_b64 exec, -1")
        if units[i] not in PERM:
            for q in range(4):
                A(f"ds_write_b128 {v(vLdsW)}, {v(TW+4*q,4)} offset:{slot*4096+q*1024}")
            A(f"s_waitcnt lgkmcnt(0)")
    for q in range(8): A(f"v_mov_b32 {v(MA+q)}, {v(TMPA+q)}")
    trace(A, 0, T0, first=True); trace(A, 1, T0); dbgt(A, 12, T0); tdump(A, 10, T0, 180)
    A(f"s_mov_b32 {s(sSpin)}, {SPIN_MAX}")
    A(f"v_lshrrev_b32 {v(T0)}, 2, {v(vL16)}")
    A(f"v_and_b32 {v(T0)}, 28, {v(T0)}")
    lw, ld = A.newlabel('T_bar'), A.newlabel('T_bard')
    A.label(lw)
    A(f"global_load_dword {v(T1)}, {v(T0)}, {s(sDBG,2)} sc1")
    A(f"s_waitcnt vmcnt(0)")
    A(f"v_cmp_eq_u32 {s(sMode,2)}, 32, {v(T1)}")
    A(f"s_mov_b32 {s(sTmp)}, 0")
    for q in range(8):
        A(f"v_readlane_b32 {s(sTmp2)}, {v(T1)}, {q}")
        A(f"s_add_u32 {s(sTmp)}, {s(sTmp)}, {s(sTmp2)}")
    A(f"s_cmp_ge_u32 {s(sTmp)}, 32")
    A(f"s_cbranch_scc1 {ld}")
    A(f"s_sub_u32 {s(sSpin)}, {s(sSpin)}, 1")
    A(f"s_cmp_lg_u32 {s(sSpin)}, 0")
    A(f"s_cbranch_scc1 {lw}")
    A.label(ld)
    A(f"s_mov_b32 {s(sStep)}, 0")
    A(f"s_mov_b64 {s(sRdy,2)}, 0")
    if use_flags:
        wait_init(A, T0, sM0P, sSpin)
        wait_flag(A, 0)
        wait_flag(A, 1)
    trace(A, 2, T0); dbgt(A, 13, T0)
    add64(A, sKV2, sKV, 8192)
    for x in k_dma() + v_dma(): A(x)
    add64(A, sKV, sKV, 0x4000)
    add64(A, sKV2, sKV2, 0x4000)
    A(f"s_mov_b32 {s(sTag)}, 0")
    A(f"s_mov_b32 {s(sLo)}, {hex((127-30) << 23)}")
    A(f"s_mov_b32 {s(sRange)}, {hex(60 << 23)}")
    A(f"s_mov_b32 {s(sSlot)}, 0")
    A(f"s_cmp_ge_u32 {s(sW)}, 2"); A(f"s_cselect_b64 {s(sMB,2)}, -1, 1")
    A(f"s_cmp_eq_u32 {s(sW)}, 3"); A(f"s_cselect_b64 {s(sMC,2)}, -1, 1")
    for x in win_reads([('Q', 0), ('Q', 1), ('Q', 2)]): A(x)
    zero_acc(A)
    A(f"ds_read_b32 {v(PZ)}, {v(vL16)} offset:{L_MW}")
    A(f"s_waitcnt lgkmcnt(0)")
    for x in pre_step(): A(x)
    A(f"s_waitcnt vmcnt(0) lgkmcnt(0)")

def wait_flag(A, ahead):
    lw, ld = A.newlabel('T_fw'), A.newlabel('T_fd')
    A(f"s_add_u32 {s(sTmp)}, {s(sStep)}, {ahead}")
    A(f"s_min_u32 {s(sTmp)}, {s(sTmp)}, 63")
    A(f"s_bitcmp1_b64 {s(sRdy,2)}, {s(sTmp)}")
    A(f"s_cbranch_scc1 {ld}")
    A(f"s_mov_b32 {s(sSpin)}, {SPIN_MAX*4}")
    A(f"v_lshrrev_b32 {v(T0)}, 2, {v(vL16)}")
    A.label(lw)
    A(f"global_load_dword {v(T1)}, {v(T0)}, {s(sFKV,2)} sc1")
    A(f"s_waitcnt vmcnt(0)")
    A(f"v_cmp_ne_u32 {s(sRdy,2)}, 0, {v(T1)}")
    A(f"s_nop 3")
    A(f"s_bitcmp1_b64 {s(sRdy,2)}, {s(sTmp)}")
    A(f"s_cbranch_scc1 {ld}")
    A(f"s_sub_u32 {s(sSpin)}, {s(sSpin)}, 1")
    A(f"s_cmp_lg_u32 {s(sSpin)}, 0")
    A(f"s_cbranch_scc1 {lw}")
    A.label(ld)

def k_dma():
    return [f"s_mov_b32 m0, {s(sKXM0)}", "s_nop 0",
            f"global_load_lds_dwordx4 {v(vMemL)}, {s(sKV,2)} sc1",
            f"global_load_lds_dwordx4 {v(vMemL)}, {s(sKV,2)} offset:1024 sc1"]
def v_dma():
    return [f"s_add_u32 m0, {s(sKXM0)}, {L_VX-L_KX}", "s_nop 0",
            f"global_load_lds_dwordx4 {v(vMemL)}, {s(sKV2,2)} sc1",
            f"global_load_lds_dwordx4 {v(vMemL)}, {s(sKV2,2)} offset:1024 sc1"]

def zero_acc(A):
    for q in range(0, 24, 2): A(f"v_mov_b64 {v(AQ+q,2)}, 0")

XA = [MA + 12, MA + 20, T2]
tZero, tProg, tMP, tC0, tC1 = MA + 16, MA + 17, MA + 18, MA + 8, MA + 9
tNeg = MA + 19
def pre_step():
    o = [f"v_xor_b32 {v(XA[jj])}, {2048*(jj+1)}, {v(vMemL)}" for jj in range(3)]
    o += [f"v_mov_b32 {v(tZero)}, 0", f"v_mov_b32 {v(tProg)}, {s(sStep)}",
          f"s_xor_b32 {s(sTmp)}, {s(sSlot)}, 0x4000",
          f"v_add_u32 {v(tMP)}, {s(sTmp)}, {v(PZ)}",
          f"v_lshrrev_b32 {v(PZ)}, 2, {v(vL16)}",
          f"v_mov_b32 {v(tNeg)}, -1"]
    return o

def team_loop(A, fast, use_flags, prof, endlabel, cfg):
    sc = "" if fast else " sc1"
    tag = 'F' if fast else 'S'
    ENTRY = f"T_entry_{tag}"
    def stamp(k):
        if prof and k in prof: A(f"s_memtime {s(sTM+2*prof.index(k),2)}")
        if prof and k == 'h1a' and 'rt' in prof: A(f"s_memrealtime {s(sTM+2*prof.index('rt'),2)}")
    lg = lambda n: f"s_waitcnt lgkmcnt({n})"
    def seq(items):
        for x in items:
            if isinstance(x, (list, tuple)): seq(x)
            elif x and x.startswith('@'): stamp(x[1:])
            elif x and x.startswith('!'): A(x[1:], nochk=True)
            elif x and any(pat in x for pat in cfg.get('drop', [])): A("s_nop 0")
            elif x: A(x)
    def nops(n):
        while n > 0:
            A(f"s_nop {min(n,16)-1}"); n -= 16
    IB = MA + 24
    vMR = PZ + 1
    def loads(dst, ad, b):
        A(f"global_load_dwordx4 {v(dst,4)}, {v(ad)}, {s(b,2)} sc1", nochk=True)
        A(f"global_load_dwordx4 {v(dst+4,4)}, {v(ad)}, {s(b,2)} offset:1024 sc1", nochk=True)
    zread = lambda r_: f"ds_read_b128 {v(r_,4)}, {v(vL16)} offset:{L_ZERO}"
    def check2(D):
        A(f"s_waitcnt vmcnt({2*(D-1)+1})")
        A(f"v_max3_u32 {v(tC0)}, {v(MA)}, {v(MA+1)}, {v(MA+2)}")
        A(f"v_max_u32 {v(tC0)}, {v(tC0)}, {v(MA+3)}")
        A(f"s_waitcnt vmcnt({2*(D-1)})")
        A(f"v_max3_u32 {v(tC0)}, {v(tC0)}, {v(MA+4)}, {v(MA+5)}")
        A(f"v_max3_u32 {v(tC0)}, {v(tC0)}, {v(MA+6)}, {v(MA+7)}")
        A(f"v_cmp_eq_u32 vcc, -1, {v(tC0)}")
    if cfg.get('align'): A.raw(f".p2align {cfg['align']}")
    A.label(ENTRY)
    own = [SM(acc+4*t, MA+4*j, frag(M, j, t)) for M, acc in (('Q', AQ), ('K', AK), ('V', AV)) for j in range(2) for t in range(2)]
    mr = []
    for jj in range(3):
        mr.append(f"ds_read_b128 {v(MA+8+8*jj,4)}, {v(XA[jj])}")
        mr.append(f"ds_read_b128 {v(MA+12+8*jj,4)}, {v(XA[jj])} offset:1024")
    vr = [f"ds_read_b128 {v(VX,4)}, {v(vMemL)} offset:{L_VX}", f"ds_read_b128 {v(VX+4,4)}, {v(vMemL)} offset:{L_VX+1024}"]
    seq([own[0], f"ds_write_b128 {v(vMemL)}, {v(MA,4)}", f"ds_write_b128 {v(vMemL)}, {v(MA+4,4)} offset:1024", '@0',
         own[1], own[2], own[3], own[4],
         own[5], '@a1', "s_waitcnt lgkmcnt(0)", "s_barrier", '@a2',
         mr[0], own[6], mr[1], f"global_store_dword {v(tMP)}, {v(tNeg)}, {s(sMEMw,2)}{sc}",
         own[7], f"global_store_dword {v(tZero)}, {v(tProg)}, {s(sPROG,2)} sc1", mr[2], own[8], mr[3], own[9], mr[4], own[10], mr[5], own[11], vr[0]])
    KXR, QB = WIN + 16, WIN
    kxr = [f"ds_read_b128 {v(KXR+4*i,4)}, {v(vL16)} offset:{L_KX+1024*i}" for i in range(8)]
    qorder = [(j, t) for j in range(2, 4) for t in range(2)] + [(j, 0) for j in range(4, 8)] + [(j, 1) for j in range(4, 8)]
    qs = [SM(AQ+4*t, MA+4*j, frag('Q', j, t)) for j, t in qorder]
    vd = v_dma()
    def post(acc, pk):
        return [f"v_add_f32 {v(acc)}, {v(acc)}, {v(acc+2)}", f"v_add_f32 {v(acc+1)}, {v(acc+1)}, {v(acc+3)}",
                f"v_cvt_pk_bf16_f32 {v(pk)}, {v(acc)}, {v(acc+1)}"]
    def postq(acc, pk):
        p_ = post(acc, pk)
        return p_[:2] + [f"v_mul_f32 {v(acc)}, {s(sC)}, {v(acc)}", f"v_mul_f32 {v(acc+1)}, {s(sC)}, {v(acc+1)}", p_[2]]
    q0, q1 = postq(AQ, T0), postq(AQ + 4, T1)
    fl = f"!global_load_dword {v(vDum)}, {v(PZ)}, {s(sFKV,2)} sc1" if use_flags else None
    kw = [f"v_lshrrev_b32 {v(PZ)}, 1, {v(vMemL)}", f"v_bfe_u32 {v(PZ+1)}, {v(vL16)}, 9, 1", f"v_lshl_add_u32 {v(PZ+1)}, {v(PZ+1)}, 5, {v(PZ)}"]
    seq(['@b0', lg(6), qs[0], vr[1], qs[1], fl, lg(6), qs[2], kxr[0], kw[0], qs[3], kxr[1], lg(6), qs[4], kxr[2], kw[1], qs[5], lg(3), kxr[3], qs[6], kxr[4], kw[2], qs[7], vd[0],
         qs[8], kxr[5], qs[9], kxr[6], q0[0], qs[10], kxr[7], q0[1], qs[11], vd[2], q0[2]])
    nvm = 4 + (1 if use_flags else 0)
    ks = [SM(AK+4*t, MA+4*j, frag('K', j, t)) for t in range(2) for j in range(2, 8)]
    qr = []
    for y in range(4):
        off = L_Q + (64 * (y // 2) + 16 * (y % 2)) * 16
        qr += [f"ds_read_b64_tr_b16 {v(QB+4*y,2)}, {v(vQR)} offset:{off}", f"ds_read_b64_tr_b16 {v(QB+4*y+2,2)}, {v(vQR)} offset:{off+64}"]
    k0, k1 = post(AK, T2), post(AK + 4, T3)
    vs = [SM(AV+4*t, MA+4*j, frag('V', j, t)) for t in range(2) for j in range(2, 8)]
    kd = k_dma()
    seq(['@c0', ks[0], vd[3], q0[3], ks[1], q0[4], q1[0], ks[2], q1[1], q1[2], ks[3], q1[3], q1[4],
         ks[4], f"ds_write2st64_b32 {v(vQW)}, {v(T0)}, {v(T1)} offset1:1", ks[5], ks[6],
         ks[7], k0[0], ks[8], k0[1], ks[9], lg(0), "s_barrier", '@1', ks[10], qr[0], qr[1], ks[11], qr[2], qr[3]])
    SX, KM = AQ, AK
    SMa, SMb = KXR, KXR + 4
    sx = [f"v_mfma_f32_16x16x32_bf16 {v(SX+4*kt,4)}, {v(KXR+16*kt+4*y,4)}, {v(QB+4*y,4)}, {v(SX+4*kt,4) if y else 0}" for kt in range(2) for y in range(4)]
    kr = []
    for al in range(2):
        kr += [f"ds_read_b64_tr_b16 {v(KM+4*al,2)}, {v(vKR)} offset:{L_K+2048*al}", f"ds_read_b64_tr_b16 {v(KM+4*al+2,2)}, {v(vKR)} offset:{L_K+2048*al+32}"]
    sm_ = [f"v_mfma_f32_16x16x32_bf16 {v(SMb if y%2 else SMa,4)}, {v(KM+4*(y//2),4)}, {v(QB+4*y,4)}, {v(SMb if y%2 else SMa,4) if y>=2 else 0}" for y in range(4)]
    ONES, PM = KXR + 8, KXR + 12
    PX, LACC = KXR + 16, KXR + 20
    ow11, ow20, ow21, ow30, ow31 = [win_reads([('O', u)]) for u in ((1, 1), (2, 0), (2, 1), (3, 0), (3, 1))]
    v0, v1 = post(AV, AV + 2), post(AV + 4, AV + 3)
    OACC0, OACC1 = AK, AK + 4
    ex = lambda d, r_: f"v_exp_f32 {v(d)}, {v(r_)}"
    cv = lambda d, a_, b_: f"v_cvt_pk_bf16_f32 {v(d)}, {v(a_)}, {v(b_)}"
    pv = [f"v_mfma_f32_16x16x32_bf16 {v(LACC,4)}, {v(ONES,4)}, {v(PX,4)}, 0",
          f"v_mfma_f32_16x16x16_bf16 {v(LACC,4)}, {v(ONES,2)}, {v(PM,2)}, {v(LACC,4)}",
          f"v_mfma_f32_16x16x32_bf16 {v(OACC0,4)}, {v(VX,4)}, {v(PX,4)}, 0",
          f"v_mfma_f32_16x16x32_bf16 {v(OACC1,4)}, {v(VX+4,4)}, {v(PX,4)}, 0",
          f"v_mfma_f32_16x16x16_bf16 {v(OACC0,4)}, {v(AV+2,2)}, {v(PM,2)}, {v(OACC0,4)}",
          f"v_mfma_f32_16x16x16_bf16 {v(OACC1,4)}, {v(AV+2,2)}, {v(PM+2,2)}, {v(OACC1,4)}"]
    FB, BACK = f"T_fb_{tag}", f"T_back_{tag}"
    seq(['@c1', vs[0], qr[4], qr[5], k0[2], vs[1], qr[6], qr[7], k1, lg(6),
         sx[0], f"ds_write_b64 {v(PZ+1)}, {v(T2,2)} offset:{L_K}", '@d1', lg(5), sx[1], kd[0], lg(3), sx[2],
         f"global_store_dwordx2 {v(PZ)}, {v(T2,2)}, {s(sKM,2)} sc1", lg(1),
         sx[3], kd[2], sx[4], '@d2', lg(0), "s_barrier", '@d3',
         kr[0], kr[1], sx[5], kr[2], kr[3], sx[6], ex(T0, SX), sx[7], ex(T1, SX+1),
         vs[2], f"ds_read_b128 {v(ONES,4)}, {v(vL16)} offset:{L_ONES}", zread(PM), cv(PX, T0, T1), '@d4', lg(4),
         sm_[0], ex(T2, SX+2), sm_[1], ex(T3, SX+3), lg(2), sm_[2], ex(T0, SX+4), sm_[3], ex(T1, SX+5), '@2',
         vs[3], kd[3], cv(PX+1, T2, T3), vs[4], ow11[0], cv(PX+2, T0, T1),
         vs[5], ow11[1], f"v_add_f32 {v(PZ)}, {v(SMa)}, {v(SMb+2)}", vs[6], ow11[2], f"v_add_f32 {v(PZ+1)}, {v(SMa+1)}, {v(SMb+3)}",
         vs[7], ow11[3], ex(T2, SX+6), vs[8], f"s_waitcnt vmcnt({nvm+3})", ow20[0], ex(T3, SX+7), '@e1',
         vs[9], ow20[1], ex(T0, PZ), vs[10], ow20[2], ex(T1, PZ+1), vs[11], ow20[3], cv(PX+3, T2, T3), lg(8), cv(PM, T0, T1), v0[0], '@e3',
         pv[0], v0[1], cv(PM+3, T0, T1), pv[2], v1[0], v1[1], pv[1], v0[2], v1[2], pv[3], ow21[0], f"s_cmp_eq_u32 {s(sStep)}, 63",
         f"v_lshrrev_b32 {v(T2)}, 1, {v(vMemL)}",
         pv[4], ow21[1], ow21[2],
         f"v_subrev_u32 {v(T1)}, {s(sLo)}, {v(LACC)}",
         pv[5], f"global_store_dwordx2 {v(T2)}, {v(AV+2,2)}, {s(sKM,2)} offset:512 sc1",
         f"s_cbranch_scc1 {endlabel}", '@e4',
         f"v_cmp_lt_u32 vcc, {s(sRange)}, {v(T1)}",
         f"v_rcp_f32 {v(T0)}, {v(LACC)}",
         f"s_cbranch_vccnz {FB}", "s_nop 2"])
    A.label(BACK)
    seq([f"v_cndmask_b32 {v(OACC0+i)}, {v(OACC0+i)}, {v(OACC1+i)}, {s(sHi,2)}" for i in range(4)])
    seq([f"v_pk_mul_f32 {v(OACC0+i,2)}, {v(OACC0+i,2)}, {v(T0,2)} op_sel_hi:[1,0]" for i in (0, 2)])
    seq([cv(T2, OACC0, OACC0+1), cv(T3, OACC0+2, OACC0+3),
         f"ds_write_b64 {v(vOW)}, {v(T2,2)} offset:{L_O}", '@3', ow21[3],
         [f"v_mov_b64 {v(AQ+q,2)}, 0" for q in range(0, 24, 2)], lg(1), "s_barrier"])
    def fallback():
        A.label(FB)
        seq(["s_nop 7",
             f"v_max3_f32 {v(T0)}, {v(SX)}, {v(SX+1)}, {v(SX+2)}", f"v_max3_f32 {v(T0)}, {v(T0)}, {v(SX+3)}, {v(SX+4)}",
             f"v_max3_f32 {v(T0)}, {v(T0)}, {v(SX+5)}, {v(SX+6)}", f"v_max3_f32 {v(T0)}, {v(T0)}, {v(SX+7)}, {v(PZ)}",
             f"v_max_f32 {v(T0)}, {v(T0)}, {v(PZ+1)}", f"v_mov_b32 {v(T1)}, {v(T0)}", "s_nop 1",
             f"v_permlane32_swap_b32 {v(T0)}, {v(T1)}", f"v_max_f32 {v(T0)}, {v(T0)}, {v(T1)}", f"v_mov_b32 {v(T1)}, {v(T0)}", "s_nop 1",
             f"v_permlane16_swap_b32 {v(T0)}, {v(T1)}", f"v_max_f32 {v(T0)}, {v(T0)}, {v(T1)}"])
        rs = [SX + i for i in range(8)] + [PZ, PZ + 1]
        seq([f"v_sub_f32 {v(r_)}, {v(r_)}, {v(T0)}" for r_ in rs])
        seq([ex(r_, r_) for r_ in rs])
        seq([cv(PX+i, SX+2*i, SX+2*i+1) for i in range(4)] + [cv(PM, PZ, PZ+1), cv(PM+3, PZ, PZ+1), "s_nop 1"])
        seq([pv[0], pv[2], pv[1], pv[3], pv[4], pv[5], "s_nop 7", f"v_rcp_f32 {v(T0)}, {v(LACC)}", f"s_branch {BACK}"])
    OA = VX
    PA = [AQ + 4 * i for i in range(6)] + [WIN, WIN + 4]
    os_ = lambda p, kb, hf: SM(PA[2*p+hf], OA+4*kb, frag('O', (p, kb), hf))
    t = [post(PA[T], T0 + T % 4) for T in range(8)]
    tg = lambda T: f"v_and_or_b32 {v(T0+T%4)}, {v(T0+T%4)}, -2, {s(sTag)}"
    st = lambda p: f"global_store_dwordx2 {v(vInbW)}, {v(T0+2*(p%2),2)}, {s(sINBw,2)} offset:{2048*p-4096}{sc}"
    pk = lambda T: [f"v_pk_add_f32 {v(PA[T],2)}, {v(PA[T],2)}, {v(PA[T]+2,2)}", t[T][2]]
    seq(['@f1', f"ds_read_b128 {v(OA,4)}, {v(vL16)} offset:{L_O}", f"ds_read_b128 {v(OA+4,4)}, {v(vL16)} offset:{L_O+1024}",
         ow30[0:3], lg(4),
         os_(0,0,0), '@f2', lg(3), os_(0,1,0), ow30[3], os_(0,0,1), ow31[0], os_(0,1,1), ow31[1], t[0][0],
         os_(1,0,0), ow31[2], t[0][1], t[0][2], os_(1,1,0), ow31[3], tg(0), t[1][0], os_(1,0,1), zread(PA[6]), t[1][1], t[1][2], os_(1,1,1), st(0), t[2][0],
         os_(2,0,0), '@f3', zread(PA[7]), t[2][1], t[2][2], os_(2,1,0), tg(2), t[3][0], os_(2,0,1), t[3][1], t[3][2], os_(2,1,1), st(1), lg(0), t[4][0],
         os_(3,0,0), t[4][1], t[4][2], os_(3,1,0), tg(4), t[5][0], os_(3,0,1), t[5][1], t[5][2],
         os_(3,1,1), '@f4', st(2), t[6], tg(6), "s_nop 2", pk(7), st(3), '@4'])
    if prof and 'old' in prof:
        A("s_waitcnt vmcnt(5)"); stamp('old')
    if prof and 'old2' in prof:
        A("s_waitcnt vmcnt(4)"); stamp('old2')
    if prof and 'ack' in prof:
        A("s_waitcnt vmcnt(0)"); stamp('ack')
    SEL, RA = VX, VX + 4
    P1 = cfg.get('p1', [[60, 200], [120, 260], [180, 320], [240, 380]])
    P2 = cfg.get('p2', [[180, 320]] * 4)
    def cost(x):
        if x.startswith('ds_read_b128'): return 12
        return 4
    def sched(times, chores, emit, t):
        chores = list(chores)
        for tt in times:
            while chores and t + cost(chores[0]) <= tt:
                x = chores.pop(0); seq([x]); t += cost(x)
            if tt - t >= 4:
                nops((tt - t) // 4); t = tt
            emit(); t += 12
        seq(chores)
    A(f"s_cmp_lt_u32 {s(sW)}, 2")
    A(f"s_cbranch_scc0 T_h2_{tag}")
    A(f"s_cmp_eq_u32 {s(sW)}, 1")
    A(f"s_cbranch_scc1 T_h1_{tag}")
    for w in range(4):
        if w == 1: A.label(f"T_h1_{tag}")
        if w == 2:
            A.label(f"T_h2_{tag}")
            A(f"s_cmp_eq_u32 {s(sW)}, 3")
            A(f"s_cbranch_scc1 T_h3_{tag}")
        if w == 3: A.label(f"T_h3_{tag}")
        t0 = [16, 40, 40, 64][w]
        qw = win_reads([('Q', 0), ('Q', 1), ('Q', 2)])
        za = [f"v_mov_b64 {v(AQ+q,2)}, 0" for q in range(0, 24, 2)]
        sc_ = [f"s_add_u32 {s(sStep)}, {s(sStep)}, 1", f"s_add_u32 {s(sSlot)}, {s(sSlot)}, 0x2000", f"s_and_b32 {s(sSlot)}, {s(sSlot)}, 0x6000",
               f"s_add_u32 {s(sKV)}, {s(sKV)}, 0x4000", f"s_addc_u32 {s(sKV+1)}, {s(sKV+1)}, 0",
               f"s_add_u32 {s(sKV2)}, {s(sKV2)}, 0x4000", f"s_addc_u32 {s(sKV2+1)}, {s(sKV2+1)}, 0",
               f"s_add_u32 {s(sKM)}, {s(sKM)}, 0x1000", f"s_addc_u32 {s(sKM+1)}, {s(sKM+1)}, 0",
               f"s_mov_b32 {s(sSpin)}, {SPIN_MAX}"]
        c1 = [f"ds_read_b128 {v(SEL,4)}, {v(vL16)} offset:{L_SEL}", f"ds_read_b32 {v(PZ)}, {v(vL16)} offset:{L_MW}"] + za[:6] + sc_[:5] + za[6:] + sc_[5:]
        c1 += [lg(0), f"v_add_u32 {v(T3)}, {s(sSlot)}, {v(PZ)}", f"v_add_u32 {v(vMR)}, {s(sSlot)}, {v(vMemL)}"]
        if prof: c1 += [f"s_mov_b32 {s(sCnt1)}, {SPIN_MAX}", '@h1a']
        nq = cfg.get('nq', [2, 2, 2, 2])[w]
        ps = pre_step()
        c1 += qw[:2] + ps[:5] + qw[2:nq] + ps[5:]
        D1, D2 = len(P1[w]), len(P2[w])
        sched(P1[w], c1, lambda: loads(IB, vMemL, sINBr), t0)
        RP, ROK, HP = [f"T_{x}{w}_{tag}" for x in ('rp', 'rok', 'hp')]
        A.label(RP)
        for u in range(cfg.get('unr', 3)):
            A(f"s_waitcnt vmcnt({2*(D1-1)+1})")
            A(f"v_bitop3_b32 {v(T0)}, {v(IB)}, {v(IB+2)}, {s(sTag)} bitop3:0x7e")
            A(f"v_mfma_f32_16x16x32_bf16 {v(RA,4)}, {v(SEL,4)}, {v(IB,4)}, 0")
            A(f"s_waitcnt vmcnt({2*(D1-1)})")
            A(f"v_bitop3_b32 {v(T1)}, {v(IB+4)}, {v(IB+6)}, {s(sTag)} bitop3:0x7e")
            A(f"v_mfma_f32_16x16x32_bf16 {v(RA,4)}, {v(SEL,4)}, {v(IB+4,4)}, {v(RA,4)}")
            A(f"v_bitop3_b32 {v(T0)}, {v(T0)}, {v(T1)}, 1 bitop3:0xa8")
            A(f"v_cmp_ne_u32 vcc, 0, {v(T0)}")
            A(f"s_cbranch_vccz {ROK}")
            A("s_mov_b64 exec, vcc")
            loads(IB, vMemL, sINBr)
            A("s_mov_b64 exec, -1")
            if prof: A(f"s_sub_u32 {s(sCnt1)}, {s(sCnt1)}, 1")
        A(f"s_sub_u32 {s(sSpin)}, {s(sSpin)}, 1")
        A(f"s_cbranch_scc0 {RP}")
        A.label(ROK)
        A(f"s_nop {cfg.get('rnop', 4)}")
        dpp = lambda r_, n: f"v_add_f32_dpp {v(r_)}, {v(r_)}, {v(r_)} row_ror:{n} row_mask:0xf bank_mask:0xf"
        seq([dpp(RA, 4), dpp(RA+1, 4), "s_nop 0", dpp(RA, 8), dpp(RA+1, 8),
             f"v_cvt_pk_bf16_f32 {v(RA+2)}, {v(RA)}, {v(RA+1)}", f"v_min_u32 {v(RA+2)}, -2, {v(RA+2)}"])
        A(f"global_store_dword {v(T3)}, {v(RA+2)}, {s(sMEMw,2)}{sc}")
        stamp(5)
        t2 = 8
        A(f"s_xor_b32 {s(sTag)}, {s(sTag)}, 1")
        if use_flags:
            A(f"v_cmp_ne_u32 {s(sRdy,2)}, 0, {v(vDum)}")
            A(f"s_nop 3")
            wait_flag(A, 1); t2 += 60
        if prof:
            A(f"s_waitcnt lgkmcnt(0)")
            for k in range(6): A(f"v_writelane_b32 {v(T0)}, {s(sTM+2*k)}, {k}")
            A(f"v_writelane_b32 {v(T0)}, {s(sCnt1)}, 6")
            A(f"v_writelane_b32 {v(T0)}, {s(sCnt2)}, 7")
            A(f"s_mov_b64 exec, 0xff")
            A(f"global_store_dword {v(PZ)}, {v(T0)}, {s(sPROF,2)}")
            A(f"s_mov_b64 exec, -1")
            add64(A, sPROF, sPROF, 32)
            A(f"s_mov_b32 {s(sCnt2)}, {SPIN_MAX}")
            t2 += 60
        elif TRACE['on']:
            trace(A, 8, T0, sStep); t2 += 60
        sched(P2[w], [f"s_mov_b32 {s(sSpin)}, {SPIN_MAX}"] + qw[nq:] + [lg(0)], lambda: loads(MA, vMR, sMEMr), t2)
        A.label(HP)
        for u in range(cfg.get('unr', 3)):
            check2(D2)
            A(f"s_cbranch_vccz {ENTRY}")
            A("s_mov_b64 exec, vcc")
            loads(MA, vMR, sMEMr)
            A("s_mov_b64 exec, -1")
            if prof: A(f"s_sub_u32 {s(sCnt2)}, {s(sCnt2)}, 1")
        A(f"s_sub_u32 {s(sSpin)}, {s(sSpin)}, 1")
        A(f"s_cbranch_scc0 {HP}")
        A(f"s_branch {ENTRY}")
    fallback()

def team(A, use_flags=False, prof=False, force_slow=False, cfg={}, chain=None):
    if prof: prof = [str(x) if str(x) in ('0','1','2','3','4') else x for x in prof]
    team_prologue(A, use_flags, prof)
    end = "T_end"
    if not force_slow:
        A(f"s_cmp_lg_u64 {s(sMode,2)}, 0")
        A(f"s_cbranch_scc1 T_entry_F")
    A(f"s_branch T_entry_S")
    if not force_slow:
        team_loop(A, True, use_flags, prof, end, cfg)
    team_loop(A, False, use_flags, prof, end, cfg)
    A.label(end)
    A(f"s_waitcnt vmcnt(0)")
    A(f"v_mov_b32 {v(PZ)}, 0")
    A(f"v_mov_b32 {v(PZ+1)}, 64")
    A(f"global_store_dword {v(PZ)}, {v(PZ+1)}, {s(sPROG,2)} sc1")
    trace(A, 5, PZ); dbgt(A, 14, PZ)
    if chain:
        A(f"s_lshl_b32 {s(sTmp)}, {s(sW)}, 6")
        A(f"v_lshrrev_b32 v0, 4, {v(vL16)}")
        A(f"v_add_u32 v0, {s(sTmp)}, v0")
        A(f"s_waitcnt vmcnt(0) lgkmcnt(0)")
        A(f"s_barrier")
        A(f"s_branch {chain}")
    else:
        A(f"s_endpgm")
```

```python
from common import *
L_XN, L_QK, L_KMS, L_BIAS = 0, 32768, 65536, 69632
vL16, vWL, vKst, vVst, vKmR, vVmL = 0, 1, 2, 3, 4, 5
T = 8
XF, QA, KA_, VA, VPC, VPN, KF = 16, 48, 64, 80, 96, 104, 112
WQ, WK, WV = 256, 384, 128
sW, sH, sCur, sNxt, sTmp, sTmp2, sSpin, sC, sBuf = 3, 4, 5, 6, 7, 8, 9, 10, 11
sWS, sXN, sKV, sFKV, sPROG, sKM, sO, sA, sB = 12, 14, 16, 18, 20, 22, 24, 26, 28
SRD, sPTR, sLB, sOff, sCol, sStride, sWM0 = 32, 36, 44, 45, 46, 47, 48

def worker(A, NW, use_flags, osig=False, chain=False):
    L, tb = 16, 17
    ln = Lane(A, L, tb)
    A(f"v_lshrrev_b32 {v(T)}, 6, v0")
    A(f"s_load_dwordx4 {s(sPTR,4)}, s[0:1], {KA['Wq']}")
    A(f"s_load_dwordx2 {s(sPTR+4,2)}, s[0:1], {KA['Wv']}")
    A(f"s_load_dwordx2 {s(sWS,2)}, s[0:1], {KA['ws']}")
    A(f"v_readfirstlane_b32 {s(sW)}, {v(T)}")
    A(f"v_and_b32 {v(L)}, 63, v0")
    A(f"v_lshlrev_b32 {v(vL16)}, 4, {v(L)}")
    A(f"s_lshl_b32 {s(sLB)}, {s(sW)}, 15")
    A(f"s_mov_b32 {s(sStride)}, 8192")
    vSrc, vTr = 18, 19
    weight_lane_consts(A, ln, vSrc, vTr, sLB, sStride, 20)
    A(f"s_lshl_b32 {s(sTmp)}, {s(sW)}, 11")
    A(f"v_add_u32 {v(vWL)}, {s(sTmp)}, {v(vL16)}")
    ln.acc(vKst, [(3, 1, 12), (4, 1, 7), (0, 3, 4), (5, 1, 8)])
    A(f"s_lshr_b32 {s(sTmp)}, {s(sW)}, 1"); A(f"s_lshl_b32 {s(sTmp)}, {s(sTmp)}, 11")
    A(f"s_and_b32 {s(sTmp2)}, {s(sW)}, 1"); A(f"s_lshl_b32 {s(sTmp2)}, {s(sTmp2)}, 9")
    A(f"s_add_u32 {s(sTmp)}, {s(sTmp)}, {s(sTmp2)}")
    A(f"v_add_u32 {v(vKst)}, {s(sTmp)}, {v(vKst)}")
    ln.acc(vVst, [(4, 1, 10), (2, 1, 7), (3, 1, 6), (0, 2, 4), (5, 1, 8)])
    A(f"s_lshl_b32 {s(sTmp)}, {s(sW)}, 11"); A(f"s_add_u32 {s(sTmp)}, {s(sTmp)}, 8192")
    A(f"v_add_u32 {v(vVst)}, {s(sTmp)}, {v(vVst)}")
    ln.acc(vKmR, [(0, 2, 7), (5, 1, 6), (2, 2, 3)])
    ln.acc(vVmL, [(5, 1, 7), (2, 1, 6), (3, 1, 5), (0, 2, 3), (4, 1, 2)])
    A(f"s_lshl_b32 {s(sTmp)}, {s(sW)}, 10"); A(f"s_add_u32 {s(sTmp)}, {s(sTmp)}, 512")
    A(f"v_add_u32 {v(vVmL)}, {s(sTmp)}, {v(vVmL)}")
    A(f"s_mov_b32 {s(sC)}, 0x3e0293ee")
    A(f"s_waitcnt lgkmcnt(0)")
    def base(dst, terms, imm):
        A(f"s_mov_b32 {s(sTmp2)}, {imm}")
        for r_, sh in terms:
            A(f"s_lshl_b32 {s(sTmp)}, {s(r_)}, {sh}")
            A(f"s_add_u32 {s(sTmp2)}, {s(sTmp2)}, {s(sTmp)}")
        add64(A, dst, sWS, s(sTmp2))
    base(sXN, [(sW, 13)], WS_XN)
    base(sKV, [(sH, 20)], WS_KV)
    base(sFKV, [(sH, 8)], FL_KV)
    base(sPROG, [(sH, 6)], FL_PROG)
    base(sKM, [(sH, 18)], WS_KM)
    base(sO, [(sH, 13)], WS_O)
    A(f"s_mov_b32 {s(SRD+2)}, 0x400000"); A(f"s_mov_b32 {s(SRD+3)}, 0x20000")
    A(f"s_lshl_b32 {s(sCol)}, {s(sH)}, 8"); A(f"s_lshl_b32 {s(sTmp)}, {s(sW)}, 6"); A(f"s_add_u32 {s(sCol)}, {s(sCol)}, {s(sTmp)}")
    units = []
    for mi, dst in ((1, WK), (2, WV), (0, WQ)):
        def setup(mi=mi):
            A(f"s_mov_b32 {s(SRD)}, {s(sPTR+2*mi)}"); A(f"s_and_b32 {s(SRD+1)}, {s(sPTR+2*mi+1)}, 0xffff")
        for u in range(8):
            units.append((setup if u == 0 else None, (lambda m, u=u: (sCol, (64*u + 16*m) * 8192)), dst + 16*u, 4))
    load_weight_units(A, units, vSrc, vTr, sLB, SRD, sOff, sTmp)
    A(f"s_barrier")
    trace(A, 0, T, first=True); trace(A, 1, T)
    A(f"v_and_b32 {v(20)}, 31, {v(L)}")
    A(f"v_lshrrev_b32 {v(21)}, 5, {v(L)}")
    A(f"v_lshlrev_b32 {v(21)}, 2, {v(21)}")
    A(f"v_sub_u32 {v(20)}, {v(20)}, {v(21)}")
    A(f"v_mov_b32 {v(21)}, 0xf149f2ca")
    for j in range(4):
        for i in range(4):
            A(f"v_cmp_gt_i32 vcc, {8*j+i}, {v(20)}")
            A(f"s_nop 1")
            A(f"v_cndmask_b32 {v(24+i)}, 0, {v(21)}, vcc")
        A(f"v_add_u32 {v(22)}, {L_BIAS + 1024*j}, {v(vL16)}")
        A(f"ds_write_b128 {v(22)}, {v(24,4)}")
    A(f"s_lshl_b32 {s(sWM0)}, {s(sW)}, 13")
    def xn_dma(sSeg):
        A(f"s_lshl_b32 {s(sTmp)}, {s(sSeg)}, 15")
        add64(A, sA, sXN, s(sTmp))
        add64(A, sB, sA, 4096)
        for hfi, b in enumerate((sA, sB)):
            A(f"s_add_u32 m0, {s(sWM0)}, {L_XN + 4096*hfi}")
            A(f"s_nop 0")
            for q in range(4):
                A(f"global_load_lds_dwordx4 {v(vL16)}, {s(b,2)} offset:{1024*q} sc1")
    if use_flags: wait_init(A, T, sA, sSpin)
    xn_dma(sNxt)
    A(f"s_mov_b32 {s(sCur)}, -1")
    A(f"s_mov_b32 {s(sBuf)}, {L_QK}")
    LOOP, NOG, NOA, END = "W_loop", "W_nogemm", "W_noatt", "W_end"
    A.label(LOOP)
    A(f"s_waitcnt vmcnt(0) lgkmcnt(0)")
    A(f"s_barrier")
    A(f"s_cmp_ge_u32 {s(sNxt)}, 64")
    A(f"s_cbranch_scc1 {NOG}")
    rd = lambda k: f"ds_read_b128 {v(XF+4*(k%8),4)}, {v(vL16)} offset:{L_XN+1024*k}"
    for k in range(6): A(rd(k))
    for k in range(32):
        x = v(XF + 4 * (k % 8), 4)
        A(f"s_waitcnt lgkmcnt({min(5, 31-k)})")
        A(f"v_mfma_f32_32x32x16_bf16 {v(KA_,16)}, {R(WK+4*k,4)}, {x}, {v(KA_,16) if k else 0}")
        if k + 6 < 32: A(rd(k + 6))
        A(f"v_mfma_f32_32x32x16_bf16 {v(VA,16)}, {x}, {R(WV+4*k,4)}, {v(VA,16) if k else 0}")
        A(f"v_mfma_f32_32x32x16_bf16 {v(QA,16)}, {R(WQ+4*k,4)}, {x}, {v(QA,16) if k else 0}")
    A(f"s_lshl_b32 {s(sTmp)}, {s(sNxt)}, 14")
    add64(A, sA, sKV, s(sTmp))
    A(f"v_add_u32 {v(T)}, {s(sBuf)}, {v(vWL)}")
    for i in range(8): A(f"v_cvt_pk_bf16_f32 {v(XF+i)}, {v(KA_+2*i)}, {v(KA_+2*i+1)}")
    A(f"global_store_dwordx4 {v(vKst)}, {v(XF,4)}, {s(sA,2)} sc1")
    A(f"global_store_dwordx4 {v(vKst)}, {v(XF+4,4)}, {s(sA,2)} offset:1024 sc1")
    A(f"ds_write_b128 {v(T)}, {v(XF,4)} offset:8192")
    A(f"ds_write_b128 {v(T)}, {v(XF+4,4)} offset:9216")
    for i in range(8): A(f"v_cvt_pk_bf16_f32 {v(VPN+i)}, {v(VA+2*i)}, {v(VA+2*i+1)}")
    A(f"global_store_dwordx4 {v(vVst)}, {v(VPN,4)}, {s(sA,2)} sc1")
    A(f"global_store_dwordx4 {v(vVst)}, {v(VPN+4,4)}, {s(sA,2)} offset:512 sc1")
    for i in range(8): A(f"v_cvt_pk_bf16_f32 {v(XF+8+i)}, {v(QA+2*i)}, {v(QA+2*i+1)}")
    A(f"ds_write_b128 {v(T)}, {v(XF+8,4)}")
    A(f"ds_write_b128 {v(T)}, {v(XF+12,4)} offset:1024")
    A(f"s_waitcnt vmcnt(0) lgkmcnt(0)")
    A(f"s_barrier")
    if use_flags:
        nf = A.newlabel('W_nf')
        A(f"s_cmp_lg_u32 {s(sW)}, 0"); A(f"s_cbranch_scc1 {nf}")
        A(f"s_lshl_b32 {s(sTmp)}, {s(sNxt)}, 2")
        A(f"v_mov_b32 {v(T)}, {s(sTmp)}"); A(f"v_mov_b32 {v(T+1)}, 1")
        A(f"global_store_dword {v(T)}, {v(T+1)}, {s(sFKV,2)} sc1")
        A.label(nf)
    trace(A, 80, T, sNxt)
    nx = A.newlabel('W_nx')
    A(f"s_add_u32 {s(sTmp2)}, {s(sNxt)}, {NW}")
    A(f"s_cmp_ge_u32 {s(sTmp2)}, 64"); A(f"s_cbranch_scc1 {nx}")
    xn_dma(sTmp2)
    A.label(nx)
    A.label(NOG)
    A(f"s_xor_b32 {s(sBuf)}, {s(sBuf)}, 16384")
    A(f"s_cmp_lt_i32 {s(sCur)}, 0")
    A(f"s_cbranch_scc1 {NOA}")
    SA, MA_, MB_ = QA, KA_, VA
    A(f"v_add_u32 {v(T)}, {s(sBuf)}, {v(vL16)}")
    A(f"v_add_u32 {v(T+1)}, {L_BIAS}, {v(vL16)}")
    for j in range(4): A(f"ds_read_b128 {v(SA+4*j,4)}, {v(T+1)} offset:{1024*j}")
    for k in range(8): A(f"ds_read_b128 {v(XF+4*k,4)}, {v(T)} offset:{1024*k}")
    A(f"s_waitcnt lgkmcnt(8)")
    for k in range(8): A(f"ds_read_b128 {v(MA_+4*k,4)}, {v(T)} offset:{8192+1024*k}")
    for k in range(8):
        A(f"s_waitcnt lgkmcnt({7-k})")
        A(f"v_mfma_f32_32x32x16_bf16 {v(SA,16)}, {v(MA_+4*k,4)}, {v(XF+4*k,4)}, {v(SA,16)}")
    if use_flags:
        pw, pd = A.newlabel('W_pw'), A.newlabel('W_pd')
        A(f"s_mov_b32 {s(sSpin)}, {SPIN_MAX*8}")
        A(f"v_mov_b32 {v(T)}, 0")
        A.label(pw)
        A(f"global_load_dwordx4 {v(T+4,4)}, {v(T)}, {s(sPROG,2)} sc1")
        A(f"s_waitcnt vmcnt(0)")
        A(f"v_min3_u32 {v(T+4)}, {v(T+4)}, {v(T+5)}, {v(T+6)}")
        A(f"v_min_u32 {v(T+4)}, {v(T+4)}, {v(T+7)}")
        A(f"v_cmp_lt_u32 vcc, {s(sCur)}, {v(T+4)}")
        A(f"s_cbranch_vccnz {pd}")
        A(f"s_sleep 2")
        A(f"s_sub_u32 {s(sSpin)}, {s(sSpin)}, 1")
        A(f"s_cbranch_scc0 {pw}")
        A.label(pd)
        tp(A, 0)
    A(f"s_lshl_b32 {s(sTmp)}, {s(sCur)}, 18")
    add64(A, sB, sO, s(sTmp))
    A(f"s_lshl_b32 {s(sTmp)}, {s(sCur)}, 12")
    add64(A, sA, sKM, s(sTmp))
    A(f"s_lshr_b32 {s(sTmp)}, {s(sWM0)}, 3")
    A(f"s_add_u32 m0, {s(sTmp)}, {L_KMS}")
    A(f"v_add_u32 {v(T)}, {s(sTmp)}, {v(vL16)}")
    VM = T + 4
    A(f"global_load_lds_dwordx4 {v(T)}, {s(sA,2)} sc1")
    A(f"global_load_dword {v(VM)}, {v(vVmL)}, {s(sA,2)} sc1")
    A(f"global_load_dword {v(VM+1)}, {v(vVmL)}, {s(sA,2)} offset:256 sc1")
    A(f"v_mov_b64 {v(VM+2,2)}, 0")
    A(f"v_add_u32 {v(T+1)}, {L_KMS}, {v(vKmR)}")
    A(f"v_max3_f32 {v(T+2)}, {v(SA)}, {v(SA+1)}, {v(SA+2)}")
    for i in range(3, 15, 2): A(f"v_max3_f32 {v(T+2)}, {v(T+2)}, {v(SA+i)}, {v(SA+i+1)}")
    A(f"v_max_f32 {v(T+2)}, {v(T+2)}, {v(SA+15)}")
    A(f"s_waitcnt vmcnt(0)")
    A(f"s_barrier")
    tp(A, 1)
    for w_ in range(4):
        A(f"ds_read_b64_tr_b16 {v(KF+4*w_,2)}, {v(T+1)} offset:{1024*w_}")
        A(f"ds_read_b64_tr_b16 {v(KF+4*w_+2,2)}, {v(T+1)} offset:{1024*w_+32}")
    for w_ in range(4):
        A(f"s_waitcnt lgkmcnt({6-2*w_})")
        A(f"v_mfma_f32_32x32x16_bf16 {v(MA_,16)}, {v(KF+4*w_,4)}, {v(XF+8*w_,4)}, {v(MA_,16) if w_ else 0}")
        A(f"v_mfma_f32_32x32x16_bf16 {v(MB_,16)}, {v(KF+4*w_,4)}, {v(XF+8*w_+4,4)}, {v(MB_,16) if w_ else 0}")
    tp(A, 2)
    A(f"s_nop 11")
    SM = KF
    for q, (ra, rb) in enumerate(((0, 2), (1, 3), (4, 6), (5, 7))):
        A(f"v_add_f32 {v(SM+q)}, {v(MA_+ra)}, {v(MB_+rb)}")
    A(f"v_max3_f32 {v(T+2)}, {v(T+2)}, {v(SM)}, {v(SM+1)}")
    A(f"v_max3_f32 {v(T+2)}, {v(T+2)}, {v(SM+2)}, {v(SM+3)}")
    A(f"v_mov_b32 {v(T+3)}, {v(T+2)}")
    A(f"s_nop 1")
    A(f"v_permlane32_swap_b32 {v(T+2)}, {v(T+3)}")
    A(f"v_max_f32 {v(T+2)}, {v(T+2)}, {v(T+3)}")
    A(f"v_mul_f32 {v(T+2)}, {s(sC)}, {v(T+2)}")
    regs = [SA + i for i in range(16)] + [SM + i for i in range(4)]
    for r_ in regs: A(f"v_fma_f32 {v(r_)}, {v(r_)}, {s(sC)}, -{v(T+2)}")
    for r_ in regs: A(f"v_exp_f32 {v(r_)}, {v(r_)}")
    P, PMm, OA_ = XF, XF + 8, MA_
    for i in range(8): A(f"v_cvt_pk_bf16_f32 {v(P+i)}, {v(SA+2*i)}, {v(SA+2*i+1)}")
    A(f"v_cvt_pk_bf16_f32 {v(PMm)}, {v(SM)}, {v(SM+1)}")
    A(f"v_cvt_pk_bf16_f32 {v(PMm+1)}, {v(SM+2)}, {v(SM+3)}")
    A(f"v_mov_b64 {v(PMm+2,2)}, 0")
    A(f"v_mfma_f32_32x32x16_bf16 {v(OA_,16)}, {v(VPC,4)}, {v(P,4)}, 0")
    A(f"v_add_f32 {v(T+2)}, {v(regs[0])}, {v(regs[1])}")
    A(f"v_add_f32 {v(T+3)}, {v(regs[2])}, {v(regs[3])}")
    A(f"v_mfma_f32_32x32x16_bf16 {v(OA_,16)}, {v(VPC+4,4)}, {v(P+4,4)}, {v(OA_,16)}")
    for i in range(4, 12): A(f"v_add_f32 {v(T+2+i%2)}, {v(T+2+i%2)}, {v(regs[i])}")
    A(f"v_mfma_f32_32x32x16_bf16 {v(OA_,16)}, {v(VM,4)}, {v(PMm,4)}, {v(OA_,16)}")
    for i in range(12, 20): A(f"v_add_f32 {v(T+2+i%2)}, {v(T+2+i%2)}, {v(regs[i])}")
    A(f"v_add_f32 {v(T+2)}, {v(T+2)}, {v(T+3)}")
    A(f"v_mov_b32 {v(T+3)}, {v(T+2)}")
    A(f"s_nop 1")
    A(f"v_permlane32_swap_b32 {v(T+2)}, {v(T+3)}")
    A(f"v_add_f32 {v(T+2)}, {v(T+2)}, {v(T+3)}")
    A(f"v_rcp_f32 {v(T+2)}, {v(T+2)}")
    A(f"s_nop 0")
    for i in range(16): A(f"v_mul_f32 {v(OA_+i)}, {v(OA_+i)}, {v(T+2)}")
    for i in range(8): A(f"v_cvt_pk_bf16_f32 {v(P+i)}, {v(OA_+2*i)}, {v(OA_+2*i+1)}")
    A(f"global_store_dwordx4 {v(vWL)}, {v(P,4)}, {s(sB,2)} sc1")
    A(f"global_store_dwordx4 {v(vWL)}, {v(P+4,4)}, {s(sB,2)} offset:1024 sc1")
    if osig:
        ns = A.newlabel('W_ns')
        tp(A, 3)
        A(f"s_waitcnt vmcnt(0)")
        A(f"s_barrier")
        A(f"s_cmp_lg_u32 {s(sW)}, 0"); A(f"s_cbranch_scc1 {ns}")
        A(f"s_lshl_b32 {s(sTmp)}, {s(sCur)}, 8"); A(f"s_lshl_b32 {s(sTmp2)}, {s(sH)}, 2")
        A(f"s_add_u32 {s(sTmp)}, {s(sTmp)}, {s(sTmp2)}"); A(f"s_add_u32 {s(sTmp)}, {s(sTmp)}, {FL_SEG + 4*FO_O}")
        A(f"v_mov_b32 {v(T)}, {s(sTmp)}"); A(f"v_mov_b32 {v(T+1)}, 1")
        A(f"global_store_dword {v(T)}, {v(T+1)}, {s(sWS,2)} sc1")
        A.label(ns)
        tp(A, 4)
        trace(A, 8, T, sCur)
        tdump(A, 5, T)
    A.label(NOA)
    for i in range(0, 8, 2): A(f"v_mov_b64 {v(VPC+i,2)}, {v(VPN+i,2)}")
    A(f"s_mov_b32 {s(sCur)}, {s(sNxt)}")
    A(f"s_add_u32 {s(sNxt)}, {s(sNxt)}, {NW}")
    A(f"s_cmp_lt_u32 {s(sCur)}, 64")
    A(f"s_cbranch_scc1 {LOOP}")
    if chain:
        A(f"s_lshl_b32 {s(sTmp)}, {s(sW)}, 6")
        A(f"v_lshrrev_b32 v0, 4, {v(vL16)}")
        A(f"v_add_u32 v0, {s(sTmp)}, v0")
        A(f"s_waitcnt vmcnt(0) lgkmcnt(0)")
        A(f"s_barrier")
        A(f"s_branch {chain}")
    else:
        A(f"s_endpgm")
```

```python
import sys
from common import *
from gen import build
def mk(tests):
    A = Asm()
    A("s_cmp_lg_u32 s2, 0"); A("s_cbranch_scc1 K_exit")
    A("s_load_dwordx2 s[4:5], s[0:1], 112")
    A("v_and_b32 v1, 63, v0"); A("v_lshlrev_b32 v1, 4, v1")
    A("v_lshrrev_b32 v2, 6, v0"); A("v_lshlrev_b32 v3, 11, v2"); A("v_add_u32 v3, v3, v1")
    A("v_lshlrev_b32 v2, 8, v2")
    A("v_mov_b32 v4, 0x44444444"); A("v_lshrrev_b32 v6, 1, v1")
    for i in range(8, 256): A(f"v_mov_b32 v{i}, 0")
    for i in range(256): A(f"v_accvgpr_write_b32 a{i}, 0")
    A("s_waitcnt lgkmcnt(0)")
    for k, (name, body) in enumerate(tests):
        A("s_barrier")
        A("s_mov_b32 s10, 20")
        A("s_nop 15")
        A.label(f"U_{k}")
        A("s_cmp_eq_u32 s10, 16"); A(f"s_cbranch_scc0 U_{k}_a")
        A("s_memtime s[12:13]"); A("s_waitcnt lgkmcnt(0)"); A("s_barrier")
        A.label(f"U_{k}_a")
        body(A)
        A("s_sub_u32 s10, s10, 1"); A("s_cmp_lg_u32 s10, 0"); A(f"s_cbranch_scc1 U_{k}")
        A("s_memtime s[14:15]"); A("s_waitcnt lgkmcnt(0) vmcnt(0)")
        A("s_sub_u32 s14, s14, s12")
        A("s_nop 15")
        A("v_mov_b32 v5, s14")
        A(f"global_store_dword v2, v5, s[4:5] offset:{4*k}")
        A("s_waitcnt vmcnt(0)")
    A.label("K_exit"); A("s_endpgm")
    return build([("ub_kernel", A, 512, 96, 256)], [("ub_kernel", 8, 256, 163840)])

def sm(acc, ar, b): return f"v_smfmac_f32_16x16x64_bf16 {v(acc,4)}, {v(ar,4)}, {b}, v4"
def t_empty(A): pass
def t_smA(A):
    for i in range(32): A(sm(96+4*(i%2), 16+4*((i//2)%8), a(8*i, 8)))
def t_smV(A):
    for i in range(32): A(sm(96+4*(i%2), 16+4*((i//2)%8), v(128+8*(i%16), 8)))
def t_smA_v1(A):
    for i in range(32):
        A(sm(96+4*(i%2), 16+4*((i//2)%8), a(8*i, 8))); A(f"v_add_f32 v{60+i%8}, v70, v71")
def t_smA_v2(A):
    for i in range(32):
        A(sm(96+4*(i%2), 16+4*((i//2)%8), a(8*i, 8))); A(f"v_add_f32 v{60+i%8}, v70, v71"); A(f"v_add_f32 v{80+i%8}, v70, v71")
def t_smA_v3(A):
    for i in range(32):
        A(sm(96+4*(i%2), 16+4*((i//2)%8), a(8*i, 8))); A(f"v_add_f32 v{60+i%8}, v70, v71"); A(f"v_add_f32 v{80+i%8}, v70, v71"); A(f"v_add_f32 v{72+i%8}, v70, v71")
def t_smA_ds(A):
    for i in range(32):
        A(sm(96+4*(i%2), 16+4*((i//2)%8), a(8*i, 8))); A(f"ds_read_b128 {v(128+4*(i%16),4)}, v1 offset:{1024*(i%16)}")
    A("s_waitcnt lgkmcnt(0)")
def t_mf(A):
    for i in range(32): A(f"v_mfma_f32_16x16x32_bf16 {v(96+4*(i%2),4)}, {v(16+4*(i%8),4)}, {v(48+4*(i%8),4)}, {v(96+4*(i%2),4)}")
def t_bar(A):
    for i in range(8): A("s_barrier")
def t_trip(A):
    for i in range(4):
        A("ds_write_b64 v3, v[10:11]"); A("s_waitcnt lgkmcnt(0)"); A("s_barrier"); A("ds_read_b128 v[12:15], v1"); A("s_waitcnt lgkmcnt(0)")
def t_wr(A):
    for i in range(8):
        A("ds_write_b64 v3, v[10:11]"); A("s_waitcnt lgkmcnt(0)")
def t_wr128(A):
    for i in range(8):
        A("ds_write_b128 v3, v[12:15]"); A("s_waitcnt lgkmcnt(0)")
def t_rd(A):
    for i in range(8):
        A("ds_read_b128 v[12:15], v1"); A("s_waitcnt lgkmcnt(0)")
def t_rd8(A):
    for i in range(8): A(f"ds_read_b128 {v(128+4*i,4)}, v1 offset:{1024*i}")
    A("s_waitcnt lgkmcnt(0)")
def t_tr(A):
    for i in range(8):
        A("ds_read_b64_tr_b16 v[12:13], v1"); A("s_waitcnt lgkmcnt(0)")
def t_valu(A):
    for i in range(32): A(f"v_add_f32 v{60+i%8}, v70, v71")
def t_valud(A):
    for i in range(32): A(f"v_add_f32 v60, v60, v71")
def t_fma(A):
    for i in range(32): A(f"v_fma_f32 v{60+i%8}, v70, s10, -v71")
def t_exp(A):
    for i in range(32): A(f"v_exp_f32 v{60+i%8}, v70")
def t_perm(A):
    for i in range(32): A(f"v_permlane32_swap_b32 v{60+i%8}, v{80+i%8}")
def t_cvt(A):
    for i in range(32): A(f"v_cvt_pk_bf16_f32 v{60+i%8}, v70, v71")
def t_mov64(A):
    for i in range(32): A(f"v_mov_b64 v[{60+2*(i%8)}:{61+2*(i%8)}], 0")
def t_nop7(A):
    for i in range(8): A("s_nop 7")
def t_salu(A):
    for i in range(32): A(f"s_add_u32 s{20+i%8}, s30, s31")
def t_mfdep(A):
    for i in range(8):
        A(f"v_mfma_f32_16x16x32_bf16 v[96:99], v[16:19], v[48:51], 0"); A("s_nop 7"); A("v_add_f32 v16, v96, v97"); A("s_nop 1")
def t_memtime(A):
    for i in range(8):
        A("s_memtime s[20:21]"); A("s_waitcnt lgkmcnt(0)")
def t_pkadd(A):
    for i in range(32): A(f"v_pk_add_f32 v[{60+2*(i%8)}:{61+2*(i%8)}], v[80:81], v[82:83]")

def valu_n(n):
    def f(A):
        for i in range(n): A(f"v_add_f32 v{60+i%8}, v70, v71")
    f.__name__ = f"valu{n}"
    return f
def gap(nnop, nv, reps):
    def f(A):
        for r in range(reps):
            for i in range(nv): A(f"v_add_f32 v{60+i%8}, v70, v71")
            k = nnop
            while k > 0:
                A(f"s_nop {min(k,16)-1}"); k -= 16
    f.__name__ = f"gap_nop{nnop}_v{nv}_x{reps}"
    return f
def smv(n, k):
    def f(A):
        for i in range(n):
            A(sm(96+4*(i%2), 16+4*((i//2)%8), a(8*(i%32), 8)))
            for q in range(k): A(f"v_add_f32 v{60+(i*k+q)%16}, v90, v91")
    f.__name__ = f"sm{n}_v{k}"
    return f
def mv32(n, k):
    def f(A):
        for i in range(n):
            A(f"v_mfma_f32_32x32x16_bf16 {v(128+16*(i%2),16)}, {v(16+4*(i%8),4)}, {v(48,4)}, {v(128+16*(i%2),16)}")
            for q in range(k): A(f"v_add_f32 v{60+(i*k+q)%16}, v90, v91")
    f.__name__ = f"mf32_{n}_v{k}"
    return f

def seq(name, fn):
    fn.__name__ = name
    return fn
VA = lambda A, i: A(f"v_add_f32 v{60+i%16}, v90, v91")
EX = lambda A, i: A(f"v_exp_f32 v{60+i%16}, v90")
DS = lambda A, i: A(f"ds_read_b128 {v(128+4*(i%16),4)}, v1 offset:{1024*(i%16)}")
SA = lambda A, i: A(f"s_add_u32 s{20+i%8}, s30, s31")
SMi = lambda A, i: A(sm(96+4*(i%2), 16+4*((i//2)%8), a(8*(i%32), 8)))
MF = lambda A, i: A(f"v_mfma_f32_16x16x32_bf16 {v(96+4*(i%2),4)}, {v(16+4*(i%8),4)}, {v(48+4*(i%2),4)}, {v(96+4*(i%2),4)}")
PK = lambda A, i: A(f"v_pk_fma_f32 v[{60+2*(i%8)}:{61+2*(i%8)}], v[80:81], s[30:31], v[82:83] op_sel_hi:[1,1,0] neg_lo:[0,0,1] neg_hi:[0,0,1]")
WT = lambda A, i: A("s_waitcnt lgkmcnt(15)")
def pat(name, parts):
    def f(A):
        for n, fs in parts:
            for i in range(n):
                for k, g in enumerate(fs): g(A, i*len(fs)+k if g in (VA, EX, PK) else i)
        A("s_waitcnt lgkmcnt(0)")
    f.__name__ = name
    return f

ST4 = lambda A, i: A(f"global_store_dwordx4 v3, v[92:95], s[4:5] offset:1024")
ST2 = lambda A, i: A(f"global_store_dwordx2 v3, v[92:93], s[4:5] offset:1024")
ST1 = lambda A, i: A(f"global_store_dword v3, v92, s[4:5] offset:1024")
LD1 = lambda A, i: A(f"global_load_dword v110, v3, s[4:5] offset:1024 sc1", nochk=True)
LD4 = lambda A, i: A(f"global_load_dwordx4 v[112:115], v3, s[4:5] offset:1024 sc1", nochk=True)
DMA = lambda A, i: A(f"global_load_lds_dwordx4 v3, s[4:5] offset:1024 sc1")
NOP = lambda A, i: A("s_nop 0")
def pat2(name, op, every, n=64, lead=SMi):
    def f(A):
        A("s_mov_b32 m0, 0x4000")
        for i in range(n):
            lead(A, i)
            if i % every == 1: op(A, i)
        A("s_waitcnt vmcnt(0) lgkmcnt(0)")
    f.__name__ = name
    return f
N4 = lambda A, i: A("s_nop 3")
DPP = lambda A, i: A(f"v_add_f32_dpp v{60+i%8}, v90, v91 row_ror:4 row_mask:0xf bank_mask:0xf")

CV = lambda A, i: A(f"v_cvt_pk_bf16_f32 v{76+i%4}, v90, v91")
AO = lambda A, i: A(f"v_and_or_b32 v{76+i%4}, v90, -2, s30")
TR = lambda A, i: A(f"ds_read_b64_tr_b16 {v(128+2*(i%16),2)}, v6 offset:{512*(i%16)}")
M16 = lambda A, i: A(f"v_mfma_f32_16x16x16_bf16 {v(96+4*(i%2),4)}, {v(16+2*(i%8),2)}, {v(48+2*(i%2),2)}, {v(96+4*(i%2),4)}")
BAR = lambda A, i: A("s_barrier")
SMD = lambda A, i: A(sm(96+4*((i//2)%2), 16+4*(i%2), a(8*(i%32), 8)))
SMV = lambda A, i: A(sm(96+4*(i%2), 16+4*((i//2)%8), v(192+8*(i%8), 8)))
VD = lambda A, i: A(f"v_add_f32 v{104+(i%2)}, v{104+(i%2)}, v{106+(i%2)}")
AD2 = lambda A, i: (A(f"v_add_f32 v108, v108, v110"), A(f"v_cvt_pk_bf16_f32 v76, v109, v108"))
W0 = lambda A, i: A("s_waitcnt lgkmcnt(8)")
tests = [(f.__name__, f) for f in [t_empty, pat("sm", [(64,[SMi])]), pat("sm_cv", [(64,[SMi,CV])]), pat("sm_va_cv", [(64,[SMi,VA,CV])]), pat("sm_ds_va_va", [(64,[SMi,DS,VA,VA])]), pat("sm_ds_va_cv", [(64,[SMi,DS,VA,CV])]),
   pat("sm_ao_va", [(64,[SMi,AO,VA])]), pat("sm_tr_tr", [(64,[SMi,TR,TR])]), pat("sm_tr_tr_va", [(64,[SMi,TR,TR,VA])]), pat("sm_ds_ex", [(64,[SMi,DS,EX])]), pat("mf_tr_tr", [(64,[MF,TR,TR])]),
   pat("mf_w_ex", [(64,[MF,EX,W0])]), pat("m16", [(64,[M16])]), pat("m16_va2", [(64,[M16,VA,VA])]), pat("mf_m16", [(32,[MF,M16])]), pat("sm_mf", [(32,[SMi,MF])]), pat("sm_bar", [(64,[SMi,W0,BAR])]),
   pat("smdep", [(64,[SMD])]), pat("smdep_va", [(64,[SMD,VA])]), pat("smdep_va2", [(64,[SMD,VA,VA])]), pat("smv_va", [(64,[SMV,VA])]), pat("sm_addcvt", [(64,[SMi,AD2])]), pat("mf_va_cv", [(64,[MF,VA,CV])]), pat("mf_ds_va", [(64,[MF,DS,VA])]),
   pat("mf_w_mf", [(64,[MF,W0])]), pat("mf_ds_w", [(64,[MF,DS,W0])]),
   ]]
if __name__ == '__main__':
    if sys.argv[1] == 'gen':
        open('ub.s', 'w').write(mk(tests))
    else:
        from harness import *
        R_ = Runner('ub.s'); R_.run()
        p = R_.get(0, np.uint32, (4, 64))
        for k, (n, _) in enumerate(tests): print(n, ((p[:, k].mean() / 16.0 - 52) / 64).round(2))
```

```python
from asmlib import *
NAME = "sequential_preLN__memory_aug_recurrent_mem_tr__mixer_gmlp__prompt"
KA = dict(x=0, mem0=8, Wq=16, Wk=24, Wv=32, Wo=40, seg=48, Bx=56, w_in=64, w_sp=72, b_sp=80, w_out=88, out=96, dbg=104, ws=112)
WS_XN   = 0x0000000
WS_KV   = 0x0200000
WS_KM   = 0x2200000
WS_O    = 0x3200000
WS_INB  = 0x4200000
WS_MEM  = 0x4280000
WS_FLAG = 0x4380000
WS_PROF = 0x4400000
WS_PART = 0x4800000
WS_H    = 0x5800000
WS_HN   = 0x5A00000
WS_Z    = 0x5C00000
SEG_Z   = 176 * 512
WS_WSP  = 0x6800000
SEG_F   = 88 * 512
WS_Y    = 0x6500000
FL_KV   = WS_FLAG
FL_PROG = WS_FLAG + 0x2000
WS_STAT = WS_FLAG + 0x4000
FL_SEG  = WS_FLAG + 0x8000
FROW = 2048
FO_O, FO_P, FO_HN, FO_Z, FO_Y = 0, 1024, 1152, 1280, 1408
FL_BYTES = 0x40000
WS_DUMMY = 0x7000000
DBG_INIT = 32
N_INIT = 128
DBG_WSP = 36
DBG_TEAM = 128
SPIN_MAX = 40000

def add64(A, d, src, imm):
    A(f"s_add_u32 {s(d)}, {s(src)}, {imm}")
    A(f"s_addc_u32 {s(d+1)}, {s(src+1)}, 0")

class Lane:
    def __init__(self, A, lane, tmp):
        self.A, self.L, self.t = A, lane, tmp
    def acc(self, dst, fields, add=False):
        for k, (lo, n, sh) in enumerate(fields):
            self.A(f"v_bfe_u32 {v(self.t)}, {v(self.L)}, {lo}, {n}")
            if k == 0 and not add: self.A(f"v_lshlrev_b32 {v(dst)}, {sh}, {v(self.t)}")
            else: self.A(f"v_lshl_add_u32 {v(dst)}, {v(self.t)}, {sh}, {v(dst)}")

def seq(A, items):
    for x in items:
        if isinstance(x, (list, tuple)): seq(A, x)
        elif x and x.startswith('!'): A(x[1:], nochk=True)
        elif x: A(x)

def load_weight_units(A, units, vSrc, vTr, sLB, SRD, sOff, sTmp):
    pend = []
    def issue(i):
        setup, off, dst, n = units[i]
        if setup: setup()
        for m in range(n):
            r_, imm = off(m)
            A(f"s_add_u32 m0, {s(sLB)}, {(i % 8) * 4096 + m * 1024}")
            A(f"s_add_u32 {s(sOff)}, {s(r_)}, {imm}")
            A(f"buffer_load_dwordx4 {v(vSrc)}, {s(SRD,4)}, {s(sOff)} offen lds")
    N = len(units)
    for i in range(min(8, N)): issue(i)
    for i in range(N):
        younger = sum(units[k][3] for k in range(i + 1, min(i + 8, N)))
        A(f"s_waitcnt vmcnt({younger})")
        _, _, dst, n = units[i]
        for m in range(n):
            for q in range(2):
                A(f"ds_read_b64_tr_b16 {R(dst+4*m+2*q,2)}, {v(vTr)} offset:{(i%8)*4096+m*1024+q*256}")
        A(f"s_waitcnt lgkmcnt(0)")
        if i + 8 < N: issue(i + 8)

def weight_lane_consts(A, ln, vSrc, vTr, sLB, sStride, tmp2):
    A(f"v_lshrrev_b32 {v(tmp2)}, 2, {v(ln.L)}")
    A(f"v_mul_lo_u32 {v(vSrc)}, {v(tmp2)}, {s(sStride)}")
    ln.acc(vSrc, [(0, 2, 4)], add=True)
    ln.acc(vTr, [(5, 1, 9), (2, 2, 6), (4, 1, 5), (0, 1, 4), (1, 1, 3)])
    A(f"v_add_u32 {v(vTr)}, {s(sLB)}, {v(vTr)}")

TRACE = {'on': False}
sTR = 90
def trace_init(A):
    if not TRACE['on']: return
    A(f"s_load_dwordx2 s[90:91], s[0:1], {KA['ws']}")
    A(f"s_memrealtime s[88:89]")
    A(f"s_lshl_b32 s94, s2, 10")
    A(f"s_add_u32 s94, s94, {WS_PROF + 0x100000}")
    A(f"s_waitcnt lgkmcnt(0)")
    A(f"s_add_u32 s90, s90, s94"); A(f"s_addc_u32 s91, s91, 0")
def trace(A, slot, t, sreg=None, first=False):
    if not TRACE['on']: return
    if not first:
        A(f"s_memrealtime s[92:93]")
    if sreg is None: A(f"s_mov_b32 s94, {4*slot}")
    else:
        A(f"s_lshl_b32 s94, {s(sreg)}, 2"); A(f"s_add_u32 s94, s94, {4*slot}")
    A(f"s_waitcnt lgkmcnt(0)")
    A(f"v_mov_b32 {v(t)}, s94"); A(f"v_mov_b32 {v(t+1)}, {'s88' if first else 's92'}")
    A(f"global_store_dword {v(t)}, {v(t+1)}, s[90:91]")

def wait_init(A, t, sP, sSpin, off=DBG_INIT, n=N_INIT, sleep=4):
    lw, ld = A.newlabel('I_w'), A.newlabel('I_d')
    A(f"s_load_dwordx2 {s(sP,2)}, s[0:1], {KA['dbg']}")
    A(f"v_mov_b32 {v(t)}, {off}")
    A(f"s_mov_b32 {s(sSpin)}, {SPIN_MAX*8}")
    A(f"s_waitcnt lgkmcnt(0)")
    A.label(lw)
    A(f"global_load_dword {v(t+1)}, {v(t)}, {s(sP,2)} sc1")
    A(f"s_waitcnt vmcnt(0)")
    A(f"v_cmp_le_u32 vcc, {n}, {v(t+1)}")
    A(f"s_cbranch_vccnz {ld}")
    A(f"s_sleep {sleep}")
    A(f"s_sub_u32 {s(sSpin)}, {s(sSpin)}, 1")
    A(f"s_cbranch_scc0 {lw}")
    A.label(ld)

def tp(A, k):
    if TRACE['on']: A(f"s_memrealtime s[{64+2*k}:{65+2*k}]")
def tdump(A, n, t, slot=160):
    if not TRACE['on']: return
    A("s_waitcnt lgkmcnt(0)")
    for k in range(n):
        A(f"v_mov_b32 {v(t)}, {4*(slot+k)}"); A(f"v_mov_b32 {v(t+1)}, s{64+2*k}")
        A(f"global_store_dword {v(t)}, {v(t+1)}, s[90:91]")

DBGT = {'on': False}
def dbgt(A, idx, t, neg=False):
    if not DBGT['on']: return
    sk = A.newlabel('D_sk')
    A(f"s_and_b32 s86, s2, {31 if idx == 15 else 255}")
    A(f"s_cmp_lg_u32 s86, {5 if idx == 15 else 0}"); A(f"s_cbranch_scc1 {sk}")
    A(f"s_load_dwordx2 s[84:85], s[0:1], {KA['dbg']}")
    A(f"s_memrealtime s[86:87]")
    A(f"s_memtime s[82:83]")
    A(f"s_waitcnt lgkmcnt(0)")
    A(f"s_and_b32 s86, s86, 0xffffff")
    if neg: A(f"s_sub_u32 s86, 0x1000000, s86")
    A(f"v_mov_b32 {v(t)}, {4*idx}"); A(f"v_mov_b32 {v(t+1)}, s86")
    A(f"s_mov_b64 exec, 1")
    A(f"global_atomic_umax {v(t)}, {v(t+1)}, s[84:85] sc1")
    A(f"v_mov_b32 {v(t+1)}, s82")
    A(f"global_store_dword {v(t)}, {v(t+1)}, s[84:85] offset:32 sc1")
    A(f"s_mov_b64 exec, -1")
    A(f"s_waitcnt vmcnt(0)")
    A.label(sk)
```

```python
import sys
from common import *
import team, worker, ln, post

HEADER = open('cdna_kernels/' + NAME + '.s.ref').read().split('; Override launch geometry')[0]

def kernel_desc(name, vgpr, sgpr, accum):
    return f""".amdhsa_kernel {name}
  .amdhsa_next_free_vgpr {vgpr}
  .amdhsa_next_free_sgpr {sgpr}
  .amdhsa_accum_offset {accum}
  .amdhsa_group_segment_fixed_size 0
  .amdhsa_kernarg_size 120
  .amdhsa_user_sgpr_count 2
  .amdhsa_user_sgpr_kernarg_segment_ptr 1
  .amdhsa_system_sgpr_workgroup_id_x 1
  .amdhsa_float_denorm_mode_32 3
.end_amdhsa_kernel
"""

def build(kernels, launches):
    out = HEADER
    for n, g, b, l in launches:
        out += f"; @launch kernel={n} grid=({g},1,1) block=({b},1,1) lds={l}\n"
    out += '.amdgcn_target "amdgcn-amd-amdhsa--gfx950"\n.text\n'
    for n, A, *_ in kernels:
        out += f".globl {n}\n.p2align 8\n.type {n},@function\n{n}:\n" + A.text()
    out += '.section .rodata,"a"\n'
    for n, A, vg, sg, ac in kernels:
        out += ".p2align 6\n" + kernel_desc(n, vg, sg, ac)
    return out

def team_only(prof=False, force_slow=False, cfg={}):
    A = Asm()
    A("s_and_b32 s3, s2, 7")
    A("s_cmp_lg_u32 s3, 0")
    A("s_cbranch_scc1 K_exit")
    A("s_cmp_ge_u32 s2, 256")
    A("s_cbranch_scc1 K_exit")
    team.team(A, use_flags=False, prof=prof, force_slow=force_slow, cfg=cfg)
    A.label("K_exit")
    A("s_endpgm")
    errs = A.check(verbose=not prof)
    return build([("team_kernel", A, 512, 96, 256)], [("team_kernel", 256, 256, 163840)])

LAYOUTS = {
 'A': [('r3', 32, 0, 0), ('r6', 44, 0, 0), ('r4', 8, 0, 0), ('r4', 8, 0, 1), ('sp', 4, 0, 0), ('r5', 11, 0, 0), ('r5', 11, 0, 1), ('sp', 10, 0, 0)],
 'B': [('r3', 32, 0, 0), ('r6', 15, 0, 0), ('r4', 8, 0, 0), ('r4', 8, 0, 1), ('sp', 1, 0, 0), ('r6', 15, 15, 0), ('r5', 11, 0, 0), ('sp', 6, 0, 0), ('r6', 14, 30, 0), ('r5', 11, 0, 1), ('sp', 7, 0, 0)],
 'C': [('r3', 32, 0, 0), ('r6', 22, 0, 0), ('r4', 8, 0, 1), ('sp', 2, 0, 0), ('r6', 22, 22, 0), ('sp', 10, 0, 0), ('r5', 11, 0, 0), ('r5', 11, 0, 1), ('r4', 8, 0, 0), ('sp', 2, 0, 0)],
 'D': [('r3', 32, 0, 0), ('r6', 22, 0, 0), ('r4', 8, 0, 0), ('sp', 2, 0, 0), ('r6', 22, 22, 0), ('sp', 10, 0, 0), ('r5', 11, 0, 0), ('r5', 11, 0, 1), ('r4', 8, 0, 1), ('sp', 2, 0, 0)],
}
LAYOUT = ['A']
def role_of(d):
    lo = 0
    for nm, n, r0, rep in LAYOUTS[LAYOUT[0]]:
        if d < lo + n: return nm
        lo += n
NWK = 3
def mega4(prof=False, cfg={}):
    NW = NWK
    A = Asm()
    A("s_cmp_ge_u32 s2, 256"); A("s_cbranch_scc1 K_exit")
    trace_init(A)
    dbgt(A, 11, 100)
    if DBGT['on']: A("s_waitcnt vmcnt(0)")
    A("s_and_b32 s3, s2, 7")
    A("s_cmp_lg_u32 s3, 0")
    A("s_cbranch_scc1 K_work")
    team.team(A, use_flags=True, prof=prof, cfg=cfg, chain="K_late7")
    A.label("K_exit")
    A("s_endpgm")
    A.label("K_work")
    A("s_sub_u32 s3, s3, 1"); A("s_lshl_b32 s3, s3, 5"); A("s_lshr_b32 s5, s2, 3"); A("s_add_u32 s3, s3, s5")
    A(f"s_cmp_ge_u32 s3, {32*NW}"); A("s_cbranch_scc1 K_down")
    A(f"s_mul_i32 s4, s3, {(65536 + NW - 1)//NW}"); A("s_lshr_b32 s4, s4, 16")
    A(f"s_mul_i32 s5, s4, {NW}"); A("s_sub_u32 s6, s3, s5")
    worker.worker(A, NW, True, osig=True, chain="K_late7")
    A.label("K_down")
    A(f"s_sub_u32 s60, s3, {32*NW}")
    ln.ln1_body(A, 60, cfg.get('pf', 1))
    if cfg.get('defer', 0): wait_init(A, 8, 10, 8, DBG_TEAM, cfg.get('defern', 128), 16)
    A("s_branch K_pre7")
    A.label("K_late7")
    A("s_mov_b32 s60, 1000")
    A.label("K_pre7")
    post.r7_preload(A)
    if cfg.get('dry', 1):
        A("s_mov_b32 s62, 1")
        A("s_branch R7_dry")
    A.label("K_disp")
    A("s_waitcnt vmcnt(0)")
    A("s_barrier")
    A("s_cmp_ge_u32 s60, 128"); A("s_cbranch_scc1 R7_run")
    post.PIPE['on'] = cfg.get('pipe', 1)
    table = LAYOUTS[cfg.get('layout', LAYOUT[0])]
    lo = 0
    for nm, n, r0, rep in table:
        nxt = A.newlabel('K_n')
        A(f"s_cmp_ge_u32 s60, {lo + n}"); A(f"s_cbranch_scc1 {nxt}")
        A(f"s_sub_u32 s4, s60, {lo - r0}") if lo >= r0 else A(f"s_add_u32 s4, s60, {r0 - lo}")
        A(f"s_mov_b32 s5, {rep}")
        A(f"s_branch K_{nm}")
        A.label(nxt)
        lo += n
    assert lo == 128
    A.label("K_r3"); post.r3(A, 1)
    A.label("K_r6"); post.r6(A)
    A.label("K_r4"); post.r4(A, 1 + max(t[3] for t in table if t[0] == 'r4'))
    A.label("K_r5"); post.r5(A, 2)
    A.label("K_sp")
    wait_init(A, post.T, post.sA, post.sSpin)
    post.r7_run(A, "K_disp")
    A.check(verbose=not prof)
    return A

def single(A):
    n = NAME + "_kernel"
    out = HEADER + "; @launch grid=(256,1,1) block=(256,1,1) lds=163840\n"
    out += '.amdgcn_target "amdgcn-amd-amdhsa--gfx950"\n.text\n'
    out += f".globl {n}\n.p2align 8\n.type {n},@function\n{n}:\n" + A.text()
    out += '.section .rodata,"a"\n.p2align 6\n' + kernel_desc(n, 512, 96, 256)
    return out

def t3(cfg={}):
    A = mega4(cfg=cfg, prof=cfg.get('prof', False))
    return build([("mega_kernel", A, 512, 96, 256)], [("mega_kernel", 256, 256, 163840)])

def assemble(parts):
    return build([p[0] for p in parts], [p[1] for p in parts])

if __name__ == '__main__':
    mode = sys.argv[1]
    if mode == 'team':
        open(sys.argv[2], 'w').write(team_only(prof=("all" if "prof" in sys.argv else False), force_slow='slow' in sys.argv))
    DEF = {}
    if mode == 't3':
        open(sys.argv[2], 'w').write(t3(DEF))
    if mode == 'final':
        open('cdna_kernels/' + NAME + '.s', 'w').write(single(mega4(cfg=DEF)))
    if mode == 'dbgt':
        DBGT['on'] = True
        open('dbgt.s', 'w').write(single(mega4(cfg=DEF)))
```

```python
from common import *
dppadd = lambda r_, n: f"v_add_f32_dpp {v(r_)}, {v(r_)}, {v(r_)} row_ror:{n} row_mask:0xf bank_mask:0xf"

def allreduce(A, r_, t, TPW):
    n = TPW
    while n < 16:
        A("s_nop 1"); A(dppadd(r_, n)); n *= 2
    for op in ('v_permlane16_swap_b32', 'v_permlane32_swap_b32'):
        A(f"v_mov_b32 {v(t)}, {v(r_)}")
        A("s_nop 1")
        A(f"{op} {v(r_)}, {v(t)}")
        A(f"v_add_f32 {v(r_)}, {v(r_)}, {v(t)}")

def unpack(A, dst, src, n):
    for i in range(n):
        A(f"v_lshlrev_b32 {v(dst+2*i)}, 16, {v(src+i)}")
        A(f"v_and_b32 {v(dst+2*i+1)}, 0xffff0000, {v(src+i)}")

def rnd1(A, r_):
    A(f"v_cvt_pk_bf16_f32 {v(r_)}, {v(r_)}, {v(r_)}")
    A(f"v_and_b32 {v(r_)}, 0xffff0000, {v(r_)}")

def ln_core(A, X, n, D, TPW, out, t, tailmask=None, ntail=0):
    s0, s1, m, mb = t, t + 1, t + 2, t + 3
    A(f"v_add_f32 {v(s0)}, {v(X)}, {v(X+1)}")
    A(f"v_add_f32 {v(s1)}, {v(X+2)}, {v(X+3)}")
    for i in range(4, n): A(f"v_add_f32 {v(s0+i%2)}, {v(s0+i%2)}, {v(X+i)}")
    A(f"v_add_f32 {v(s0)}, {v(s0)}, {v(s1)}")
    allreduce(A, s0, s1, TPW)
    import struct
    inv = struct.unpack('<I', struct.pack('<f', 1.0 / D))[0]
    A(f"v_mul_f32 {v(m)}, {hex(inv)}, {v(s0)}")
    A(f"v_mov_b32 {v(mb)}, {v(m)}")
    rnd1(A, mb)
    A(f"v_mov_b32 {v(s0)}, 0"); A(f"v_mov_b32 {v(s1)}, 0")
    d = t + 4
    for i in range(n):
        if tailmask is not None and i == n - ntail: A(f"s_mov_b64 exec, {s(tailmask,2)}")
        A(f"v_sub_f32 {v(d+i%2)}, {v(X+i)}, {v(m)}")
        A(f"v_fmac_f32 {v(s0+i%2)}, {v(d+i%2)}, {v(d+i%2)}")
    if tailmask is not None: A(f"s_mov_b64 exec, -1")
    A(f"v_add_f32 {v(s0)}, {v(s0)}, {v(s1)}")
    allreduce(A, s0, s1, TPW)
    A(f"v_mul_f32 {v(s0)}, {hex(inv)}, {v(s0)}")
    rnd1(A, s0)
    A(f"v_add_f32 {v(s0)}, 0x3727c5ac, {v(s0)}")
    rnd1(A, s0)
    A(f"v_sqrt_f32 {v(s0)}, {v(s0)}")
    A(f"s_nop 0")
    rnd1(A, s0)
    A(f"v_rcp_f32 {v(s0)}, {v(s0)}")
    for i in range(0, n, 2):
        A(f"v_sub_f32 {v(X+i)}, {v(X+i)}, {v(mb)}")
        A(f"v_sub_f32 {v(X+i+1)}, {v(X+i+1)}, {v(mb)}")
        A(f"v_cvt_pk_bf16_f32 {v(d)}, {v(X+i)}, {v(X+i+1)}")
        A(f"v_lshlrev_b32 {v(X+i)}, 16, {v(d)}")
        A(f"v_and_b32 {v(X+i+1)}, 0xffff0000, {v(d)}")
        A(f"v_mul_f32 {v(X+i)}, {v(X+i)}, {v(s0)}")
        A(f"v_mul_f32 {v(X+i+1)}, {v(X+i+1)}, {v(s0)}")
        A(f"v_cvt_pk_bf16_f32 {v(out+i//2)}, {v(X+i)}, {v(X+i+1)}")

def ln1_body(A, sD, pf=True):
    TPW = 4
    A(f"s_load_dwordx2 s[10:11], s[0:1], {KA['x']}")
    A(f"s_load_dwordx2 s[12:13], s[0:1], {KA['ws']}")
    A(f"s_load_dwordx2 s[14:15], s[0:1], {KA['dbg']}")
    A(f"s_load_dwordx8 s[20:27], s[0:1], {KA['Wq']}")
    ln = Lane(A, 0, 2)
    ln.acc(3, [(6, 2, 12), (0, 2, 10), (2, 4, 4)])
    ln.acc(4, [(2, 4, 9), (6, 2, 6), (0, 2, 4)])
    A(f"s_lshl_b32 s8, {s(sD)}, 14")
    A(f"s_lshr_b32 s9, {s(sD)}, 1"); A("s_lshl_b32 s9, s9, 15"); A(f"s_and_b32 s7, {s(sD)}, 1"); A("s_lshl_b32 s7, s7, 8"); A("s_add_u32 s9, s9, s7")
    A("s_waitcnt lgkmcnt(0)")
    add64(A, 10, 10, "s8")
    for j in range(4): A(f"global_load_dwordx4 {v(16+4*j,4)}, v3, s[10:11] offset:{256*j}")
    assert FL_BYTES == 128 * 2048
    A("v_lshlrev_b32 v5, 3, v0")
    A("v_mov_b64 v[8:9], 0")
    A(f"s_lshl_b32 s7, {s(sD)}, 11"); A(f"s_add_u32 s7, s7, {WS_FLAG}")
    add64(A, 16, 12, "s7")
    A(f"global_store_dwordx2 v5, v[8:9], s[16:17] sc1")
    add64(A, 12, 12, "s9")
    if WS_XN: add64(A, 12, 12, WS_XN)
    if pf:
        A(f"s_lshl_b32 s7, {s(sD)}, 15")
        A("v_lshlrev_b32 v5, 4, v0")
        A("v_add_u32 v5, s7, v5")
        for q in range(1, 8): A(f"v_add_u32 v{68+q}, {4096*q}, v5")
        for m in (1, 2, 0, 3):
            for q in range(8):
                A(f"global_load_dwordx4 v[64:67], v{68+q if q else 5}, s[{20+2*m}:{21+2*m}]", nochk=True)
    A(f"s_waitcnt vmcnt({33 if pf else 1})")
    unpack(A, 32, 16, 16)
    ln_core(A, 32, 32, 512, TPW, 16, 8)
    for j in range(4):
        A(f"global_store_dwordx4 v4, {v(16+4*j,4)}, s[12:13] sc1")
        if j < 3: add64(A, 12, 12, 8192)
    A("s_waitcnt vmcnt(0)")
    A("s_barrier")
    A("v_cmp_eq_u32 vcc, 0, v0")
    A(f"v_mov_b32 v8, {DBG_INIT}"); A("v_mov_b32 v9, 1")
    A("s_and_saveexec_b64 s[16:17], vcc")
    A("s_cbranch_execz LN1_ns")
    A("global_atomic_add v8, v9, s[14:15] sc1")
    A.label("LN1_ns")
    A("s_mov_b64 exec, -1")
```

```python
from common import *
import ln, struct, math
f2u = lambda x: hex(struct.unpack('<I', struct.pack('<f', x))[0])
sW, sRole, sSeg, sTmp, sTmp2, sSpin = 3, 4, 5, 6, 7, 8
sWS, sA, sB, sIn, sOut, sFl, sMask, sP1, sP2, sGot, sFs = 10, 12, 14, 16, 18, 20, 22, 24, 26, 28, 30
SRD, sLB, sOff, sCol, sStride, sBuf, sNx, sFo = 32, 36, 37, 38, 39, 40, 41, 42
vL16, vL4, vPoll, T = 0, 1, 7, 8
L, tb = 16, 17
WOUT = 256

def start(A, ptrs):
    A(f"v_lshrrev_b32 {v(T)}, 6, v0")
    A(f"s_load_dwordx2 {s(sWS,2)}, s[0:1], {KA['ws']}")
    for r_, k in ptrs: A(f"s_load_dwordx2 {s(r_,2)}, s[0:1], {KA[k]}")
    A(f"v_readfirstlane_b32 {s(sW)}, {v(T)}")
    A(f"v_and_b32 {v(L)}, 63, v0")
    A(f"v_lshlrev_b32 {v(vL16)}, 4, {v(L)}")
    A(f"v_lshlrev_b32 {v(vL4)}, 2, {v(L)}")
    A(f"v_and_b32 {v(vL4)}, 127, {v(vL4)}")
    A(f"s_lshl_b32 {s(sLB)}, {s(sW)}, 15")
    return Lane(A, L, tb)

def relane(A):
    A(f"v_lshrrev_b32 {v(L)}, 4, {v(vL16)}")
    return Lane(A, L, tb)

def base(A, dst, terms, imm, src=sWS):
    A(f"s_mov_b32 {s(sTmp2)}, {imm}")
    for r_, mul in terms:
        A(f"s_mul_i32 {s(sTmp)}, {s(r_)}, {mul}")
        A(f"s_add_u32 {s(sTmp2)}, {s(sTmp2)}, {s(sTmp)}")
    add64(A, dst, src, s(sTmp2))

def seg_addr(A, dst, src, sS, stride):
    A(f"s_mul_i32 {s(sTmp)}, {s(sS)}, {stride}")
    add64(A, dst, src, s(sTmp))

def poll_issue(A, sS):
    seg_addr(A, sB, sFl, sS, FROW)
    A(f"global_load_dword {v(vPoll)}, {v(vL4)}, {s(sB,2)} sc1")

def poll_finish(A, sleep=1, landed=False):
    lw, ld = A.newlabel('P_w'), A.newlabel('P_d')
    A(f"s_mov_b32 {s(sSpin)}, {SPIN_MAX*8}")
    if not landed: A(f"s_waitcnt vmcnt(0)")
    A.label(lw)
    A(f"v_cmp_ne_u32 {s(sGot,2)}, 0, {v(vPoll)}")
    A(f"s_nop 3")
    A(f"s_andn2_b64 {s(sGot,2)}, {s(sMask,2)}, {s(sGot,2)}")
    A(f"s_cbranch_scc0 {ld}")
    if sleep: A(f"s_sleep {sleep}")
    A(f"global_load_dword {v(vPoll)}, {v(vL4)}, {s(sB,2)} sc1")
    A(f"s_sub_u32 {s(sSpin)}, {s(sSpin)}, 1")
    A(f"s_waitcnt vmcnt(0)")
    A(f"s_cbranch_scc0 {lw}")
    A.label(ld)
    tp(A, 0)

def finish_seg(A, name, step):
    tp(A, 3)
    A(f"s_add_u32 {s(sNx)}, {s(sSeg)}, {step}")
    poll_issue(A, sNx)
    A(f"s_mul_i32 {s(sTmp)}, {s(sSeg)}, {FROW}")
    A(f"v_mov_b32 {v(T)}, {s(sTmp)}"); A(f"v_mov_b32 {v(T+1)}, 1")
    A(f"s_waitcnt vmcnt(1)")
    A(f"s_barrier")
    nf = A.newlabel('P_nf')
    A(f"s_cmp_lg_u32 {s(sW)}, 3"); A(f"s_cbranch_scc1 {nf}")
    A(f"global_store_dword {v(T)}, {v(T+1)}, {s(sFs,2)} sc1")
    A(f"s_waitcnt vmcnt(1)")
    A(f"s_branch {nf}j")
    A.label(nf)
    A(f"s_waitcnt vmcnt(0)")
    A.label(nf + "j")
    tp(A, 4)
    trace(A, 8, T, sSeg)
    if TRACE['on']:
        sk = A.newlabel('P_tk')
        A(f"s_cmp_gt_u32 {s(sSeg)}, 9"); A(f"s_cbranch_scc1 {sk}")
        tdump(A, 5, T)
        A.label(sk)
    A(f"s_mov_b32 {s(sSeg)}, {s(sNx)}")
    A(f"s_cmp_lt_u32 {s(sSeg)}, 64")
    A(f"s_cbranch_scc1 {name}_loop")
    A(f"s_branch R7_run")

def srd(A, ptr, nbytes):
    A(f"s_mov_b32 {s(SRD)}, {s(ptr)}"); A(f"s_and_b32 {s(SRD+1)}, {s(ptr+1)}, 0xffff")
    A(f"s_mov_b32 {s(SRD+2)}, {nbytes}"); A(f"s_mov_b32 {s(SRD+3)}, 0x20000")

def ws_weights(A, lane, stride, nk, W):
    A(f"s_mov_b32 {s(sStride)}, {stride}")
    weight_lane_consts(A, lane, 18, 19, sLB, sStride, 20)
    units = []
    for u in range((nk + 3) // 4):
        units.append((None, (lambda m, u=u: (sCol, (64*u + 16*m) * stride)), W + 16*u, min(4, nk - 4*u)))
    load_weight_units(A, units, 18, 19, sLB, SRD, sOff, sTmp)
    A(f"s_barrier")

def act_dma(A, nk, sS, segstride, buf=None):
    seg_addr(A, sA, sIn, sS, segstride)
    A(f"s_lshl_b32 {s(sTmp2)}, {s(sW)}, 10")
    if buf is not None: A(f"s_add_u32 {s(sTmp2)}, {s(sTmp2)}, {s(buf)}")
    n = (nk + 3) // 4
    skip = None
    for q in range(n):
        if 4 * q + 3 >= nk:
            skip = A.newlabel('P_sk')
            A(f"s_cmp_ge_u32 {s(sW)}, {nk - 4*q}"); A(f"s_cbranch_scc1 {skip}")
        A(f"s_add_u32 m0, {s(sTmp2)}, {4096*q}")
        if q: add64(A, sA, sA, 4096)
        else: A("s_nop 0")
        A(f"global_load_lds_dwordx4 {v(vL16)}, {s(sA,2)} sc1")
    if skip: A.label(skip)

def gemm_core(A, nk, W, ACC, cuts, vA=vL16, after_last_gate=None):
    XF = 16
    n = (nk + 3) // 4
    slack = 0 if nk % 4 == 0 else 1
    gate = {0: cuts[0]}
    for a_, b_ in zip(cuts, cuts[1:] + [n]): gate[4 * a_] = b_
    def rd(k):
        if k in gate:
            A(f"s_waitcnt vmcnt({max(0, n - gate[k] - slack)})")
            A(f"s_barrier")
            if k == 0: tp(A, 1)
            if k == max(gate) and after_last_gate: after_last_gate()
        A(f"ds_read_b128 {v(XF+4*(k%8),4)}, {v(vA)} offset:{1024*k}")
    for k in range(6): rd(k)
    for k in range(nk):
        A(f"s_waitcnt lgkmcnt({min(5, nk-1-k)})")
        A(f"v_mfma_f32_32x32x16_bf16 {v(ACC,16)}, {R(W+4*k,4)}, {v(XF+4*(k%8),4)}, {v(ACC,16) if k else 0}")
        if k + 6 < nk: rd(k + 6)
    tp(A, 2)

sPre = 43
PIPE = {'on': True}
def pipe_gemm(A, name, nk, W, ACC, segstride, step):
    vA = 6
    A(f"s_mov_b32 {s(sBuf)}, 0"); A(f"s_mov_b32 {s(sPre)}, 0")
    A.label(f"{name}_loop")
    have = A.newlabel('P_have')
    A(f"s_cmp_lg_u32 {s(sPre)}, 0"); A(f"s_cbranch_scc1 {have}")
    poll_finish(A, landed=True)
    act_dma(A, nk, sSeg, segstride, sBuf)
    A.label(have)
    A(f"v_add_u32 {v(vA)}, {s(sBuf)}, {v(vL16)}")
    A(f"s_add_u32 {s(sNx)}, {s(sSeg)}, {step}")
    A(f"v_mov_b32 {v(vPoll)}, 0")
    def look():
        seg_addr(A, sB, sFl, sNx, FROW)
        A(f"global_load_dword {v(vPoll)}, {v(vL4)}, {s(sB,2)} sc1", nochk=True)
    gemm_core(A, nk, W, ACC, [3, 5], vA, look if PIPE['on'] else None)
    A(f"s_xor_b32 {s(sBuf)}, {s(sBuf)}, 32768")
    no = A.newlabel('P_nopre')
    A(f"v_cmp_ne_u32 {s(sGot,2)}, 0, {v(vPoll)}")
    A(f"s_mov_b32 {s(sPre)}, 0")
    A(f"s_cmp_ge_u32 {s(sNx)}, 64"); A(f"s_cbranch_scc1 {no}")
    A(f"s_andn2_b64 {s(sGot,2)}, {s(sMask,2)}, {s(sGot,2)}")
    A(f"s_cbranch_scc1 {no}")
    act_dma(A, nk, sNx, segstride, sBuf)
    A(f"s_mov_b32 {s(sPre)}, 1")
    A.label(no)

def first_poll(A):
    wait_init(A, T, sA, sSpin)
    trace(A, 0, T, first=True); trace(A, 1, T)
    poll_issue(A, sSeg)
    A(f"s_waitcnt vmcnt(0)")

def r3(A, step):
    A(f"s_load_dwordx2 {s(sP1,2)}, s[0:1], {KA['Wo']}")
    lane = relane(A)
    A(f"s_lshr_b32 {s(sNx)}, {s(sRole)}, 2")
    A(f"s_and_b32 {s(sBuf)}, {s(sRole)}, 3")
    A(f"s_waitcnt lgkmcnt(0)")
    srd(A, sP1, 0x400000)
    A(f"s_lshl_b32 {s(sCol)}, {s(sNx)}, 19"); A(f"s_lshl_b32 {s(sTmp)}, {s(sBuf)}, 8"); A(f"s_add_u32 {s(sCol)}, {s(sCol)}, {s(sTmp)}")
    A(f"s_lshl_b32 {s(sTmp)}, {s(sW)}, 6"); A(f"s_add_u32 {s(sCol)}, {s(sCol)}, {s(sTmp)}")
    base(A, sIn, [(sNx, 32768), (sW, 1024)], WS_O)
    base(A, sOut, [(sRole, 8192), (sW, 2048)], WS_PART)
    base(A, sFl, [(sNx, 128)], FL_SEG + FO_O)
    base(A, sFs, [(sRole, 4)], FL_SEG + FO_P)
    A(f"s_mov_b64 {s(sMask,2)}, 0xf")
    ws_weights(A, lane, 1024, 32, 128)
    first_poll(A)
    ACC = 48
    pipe_gemm(A, "R3", 32, 128, ACC, 262144, step)
    seg_addr(A, sA, sOut, sSeg, 262144)
    A("s_nop 4")
    for i in range(8): A(f"v_cvt_pk_bf16_f32 {v(64+i)}, {v(ACC+2*i)}, {v(ACC+2*i+1)}")
    A(f"global_store_dwordx4 {v(vL16)}, {v(64,4)}, {s(sA,2)} sc1")
    A(f"global_store_dwordx4 {v(vL16)}, {v(68,4)}, {s(sA,2)} offset:1024 sc1")
    finish_seg(A, "R3", step)

def stats_finish(A, S, D, mb, rs):
    A(f"v_mul_f32 {v(mb)}, {f2u(1.0/D)}, {v(S)}")
    A(f"v_mul_f32 {v(rs)}, {f2u(1.0/D)}, {v(S+1)}")
    A(f"v_fma_f32 {v(rs)}, -{v(mb)}, {v(mb)}, {v(rs)}")
    A(f"v_max_f32 {v(rs)}, 0, {v(rs)}")
    A(f"v_cvt_pk_bf16_f32 {v(S)}, {v(mb)}, {v(rs)}")
    A(f"v_lshlrev_b32 {v(mb)}, 16, {v(S)}")
    A(f"v_and_b32 {v(rs)}, 0xffff0000, {v(S)}")
    A(f"v_add_f32 {v(rs)}, 0x3727c5ac, {v(rs)}")
    ln.rnd1(A, rs)
    A(f"v_sqrt_f32 {v(rs)}, {v(rs)}")
    A(f"s_nop 0")
    ln.rnd1(A, rs)
    A(f"v_rcp_f32 {v(rs)}, {v(rs)}")

def normalize8(A, X, out, mb, rs):
    for i in range(4): A(f"v_pk_add_f32 {v(X+2*i,2)}, {v(X+2*i,2)}, {v(mb,2)} op_sel_hi:[1,0] neg_lo:[0,1] neg_hi:[0,1]")
    for i in range(4): A(f"v_cvt_pk_bf16_f32 {v(out+i)}, {v(X+2*i)}, {v(X+2*i+1)}")
    ln.unpack(A, X, out, 4)
    for i in range(4): A(f"v_pk_mul_f32 {v(X+2*i,2)}, {v(X+2*i,2)}, {v(rs,2)} op_sel_hi:[1,0]")
    for i in range(4): A(f"v_cvt_pk_bf16_f32 {v(out+i)}, {v(X+2*i)}, {v(X+2*i+1)}")

def r4(A, step):
    A(f"s_load_dwordx2 {s(sP1,2)}, s[0:1], {KA['x']}")
    lane = relane(A)
    vC, vX, vSW, vSR = 2, 3, 4, 5
    lane.acc(vC, [(2, 4, 9), (0, 2, 4)])
    lane.acc(vX, [(0, 2, 10), (2, 4, 4)])
    lane.acc(vSR, [(0, 2, 5)])
    A(f"s_lshl_b32 {s(sTmp)}, {s(sW)}, 3"); A(f"v_add_u32 {v(vSW)}, {s(sTmp)}, {v(vSR)}")
    A(f"s_waitcnt lgkmcnt(0)")
    base(A, sIn, [(sRole, 64), (sW, 8192)], WS_PART)
    base(A, sOut, [(sRole, 64), (sW, 8192)], WS_H)
    base(A, sP2, [(sRole, 4096), (sW, 256)], 0, sP1)
    base(A, sFl, [], FL_SEG + FO_P)
    base(A, sFs, [(sRole, 4)], FL_SEG + FO_HN)
    A(f"s_mov_b64 {s(sMask,2)}, -1")
    first_poll(A)
    XR, PR, X, U, S, MB, RS = 16, 20, 52, 60, 68, 78, 80
    A.label("R4_loop")
    seg_addr(A, sA, sP2, sSeg, 32768)
    A(f"global_load_dwordx4 {v(XR,4)}, {v(vX)}, {s(sA,2)}")
    poll_finish(A, landed=True)
    seg_addr(A, sA, sIn, sSeg, 262144)
    for p in range(8):
        A(f"global_load_dwordx4 {v(PR+4*p,4)}, {v(vC)}, {s(sA,2)} sc1")
        if p < 7: add64(A, sA, sA, 32768)
    seg_addr(A, sA, sOut, sSeg, 32768)
    A(f"s_waitcnt vmcnt(7)")
    ln.unpack(A, X, PR, 4)
    for p in range(1, 8):
        A(f"s_waitcnt vmcnt({7-p})")
        ln.unpack(A, U, PR + 4 * p, 4)
        for i in range(4): A(f"v_pk_add_f32 {v(X+2*i,2)}, {v(X+2*i,2)}, {v(U+2*i,2)}")
    tp(A, 1)
    for i in range(4): A(f"v_cvt_pk_bf16_f32 {v(PR+i)}, {v(X+2*i)}, {v(X+2*i+1)}")
    ln.unpack(A, X, PR, 4)
    ln.unpack(A, U, XR, 4)
    for i in range(4): A(f"v_pk_add_f32 {v(X+2*i,2)}, {v(X+2*i,2)}, {v(U+2*i,2)}")
    for i in range(4): A(f"v_cvt_pk_bf16_f32 {v(PR+4+i)}, {v(X+2*i)}, {v(X+2*i+1)}")
    A(f"global_store_dwordx4 {v(vC)}, {v(PR+4,4)}, {s(sA,2)} sc1")
    ln.unpack(A, X, PR + 4, 4)
    A(f"v_pk_add_f32 {v(U,2)}, {v(X,2)}, {v(X+2,2)}")
    A(f"v_pk_mul_f32 {v(U+2,2)}, {v(X,2)}, {v(X,2)}")
    for i in range(1, 4): A(f"v_pk_fma_f32 {v(U+2,2)}, {v(X+2*i,2)}, {v(X+2*i,2)}, {v(U+2,2)}")
    for i in range(2, 4): A(f"v_pk_add_f32 {v(U,2)}, {v(U,2)}, {v(X+2*i,2)}")
    A(f"v_add_f32 {v(S+1)}, {v(U+2)}, {v(U+3)}")
    A(f"v_add_f32 {v(S)}, {v(U)}, {v(U+1)}")
    for n in (4, 8):
        A("s_nop 0"); A(ln.dppadd(S + 1, n)); A(ln.dppadd(S, n))
    for op in ('v_permlane16_swap_b32', 'v_permlane32_swap_b32'):
        A(f"v_mov_b64 {v(U,2)}, {v(S,2)}")
        A("s_nop 1")
        A(f"{op} {v(S)}, {v(U)}"); A(f"{op} {v(S+1)}, {v(U+1)}")
        A(f"v_pk_add_f32 {v(S,2)}, {v(S,2)}, {v(U,2)}")
    A(f"ds_write_b64 {v(vSW)}, {v(S,2)}")
    add64(A, sA, sA, WS_HN - WS_H)
    A(f"s_waitcnt lgkmcnt(0)")
    A(f"s_barrier")
    tp(A, 2)
    A(f"ds_read_b128 {v(U,4)}, {v(vSR)}")
    A(f"ds_read_b128 {v(U+4,4)}, {v(vSR)} offset:16")
    A(f"s_waitcnt lgkmcnt(0)")
    A(f"v_pk_add_f32 {v(U,2)}, {v(U,2)}, {v(U+2,2)}")
    A(f"v_pk_add_f32 {v(U+4,2)}, {v(U+4,2)}, {v(U+6,2)}")
    A(f"v_pk_add_f32 {v(S,2)}, {v(U,2)}, {v(U+4,2)}")
    stats_finish(A, S, 512, MB, RS)
    normalize8(A, X, PR + 8, MB, RS)
    A(f"global_store_dwordx4 {v(vC)}, {v(PR+8,4)}, {s(sA,2)} sc1")
    finish_seg(A, "R4", step)

def r5(A, step):
    A(f"s_load_dwordx2 {s(sP1,2)}, s[0:1], {KA['w_in']}")
    lane = relane(A)
    sQ, sK1, sHalf, sSt = 44, 45, 46, 48
    vSt = 2
    lane.acc(vSt, [(0, 5, 3), (5, 1, 2)])
    A(f"s_lshl_b32 {s(sQ)}, {s(sRole)}, 2"); A(f"s_add_u32 {s(sQ)}, {s(sQ)}, {s(sW)}")
    A(f"s_lshl_b32 {s(sCol)}, {s(sQ)}, 6")
    A(f"s_cmp_ge_u32 {s(sQ)}, 22"); A(f"s_cselect_b32 {s(sTmp)}, 32, 0"); A(f"s_sub_u32 {s(sCol)}, {s(sCol)}, {s(sTmp)}")
    A(f"s_cmp_eq_u32 {s(sQ)}, 43"); A(f"s_cselect_b32 {s(sHalf)}, 0, -1")
    A(f"s_waitcnt lgkmcnt(0)")
    srd(A, sP1, 512 * 2752)
    base(A, sIn, [(sW, 1024)], WS_HN)
    base(A, sOut, [(sQ, 2048)], WS_Z)
    base(A, sFl, [], FL_SEG + FO_HN)
    base(A, sFs, [(sRole, 4)], FL_SEG + FO_Z)
    base(A, sSt, [], WS_STAT)
    A(f"s_mov_b64 {s(sMask,2)}, 0xff")
    ws_weights(A, lane, 2752, 32, 128)
    k0 = -2.0 * math.log2(math.e) * math.sqrt(2.0 / math.pi)
    A(f"v_mov_b32 {v(4)}, {f2u(k0)}")
    A(f"v_mov_b32 {v(5)}, {f2u(k0 * 0.044715)}")
    first_poll(A)
    ACC, U, PK = 48, 64, 80
    pipe_gemm(A, "R5", 32, 128, ACC, 32768, step)
    seg_addr(A, sA, sOut, sSeg, SEG_Z)
    A("s_nop 4")
    for i in range(8): A(f"v_cvt_pk_bf16_f32 {v(PK+i)}, {v(ACC+2*i)}, {v(ACC+2*i+1)}")
    ln.unpack(A, ACC, PK, 8)
    P2 = lambda r_, i: v(r_ + 2 * i, 2)
    for i in range(8): A(f"v_pk_mul_f32 {P2(U,i)}, {P2(ACC,i)}, {P2(ACC,i)}")
    for i in range(8): A(f"v_pk_fma_f32 {P2(U,i)}, {P2(U,i)}, {v(4,2)}, {v(4,2)} op_sel:[0,1,0] op_sel_hi:[1,1,0]")
    for i in range(8): A(f"v_pk_mul_f32 {P2(U,i)}, {P2(U,i)}, {P2(ACC,i)}")
    for i in range(16): A(f"v_exp_f32 {v(U+i)}, {v(U+i)}")
    for i in range(8): A(f"v_pk_add_f32 {P2(U,i)}, {P2(U,i)}, 1.0 op_sel_hi:[1,0]")
    for i in range(16): A(f"v_rcp_f32 {v(U+i)}, {v(U+i)}")
    for i in range(8): A(f"v_pk_mul_f32 {P2(U,i)}, {P2(U,i)}, {P2(ACC,i)}")
    for i in range(8): A(f"v_cvt_pk_bf16_f32 {v(PK+i)}, {v(U+2*i)}, {v(U+2*i+1)}")
    A(f"global_store_dwordx4 {v(vL16)}, {v(PK,4)}, {s(sA,2)} sc1")
    A(f"global_store_dwordx4 {v(vL16)}, {v(PK+4,4)}, {s(sA,2)} offset:1024 sc1")
    A(f"s_cmp_lt_u32 {s(sQ)}, 22"); A(f"s_cbranch_scc1 R5_nost")
    for i in range(4): A(f"v_and_b32 {v(ACC+i)}, {s(sHalf)}, {v(PK+4+i)}")
    ln.unpack(A, U, PK, 4)
    ln.unpack(A, U + 8, ACC, 4)
    S1, S2 = ACC + 4, ACC + 6
    A(f"v_pk_add_f32 {v(S1,2)}, {P2(U,0)}, {P2(U,1)}")
    A(f"v_pk_mul_f32 {v(S2,2)}, {P2(U,0)}, {P2(U,0)}")
    for i in range(1, 8):
        A(f"v_pk_fma_f32 {v(S2,2)}, {P2(U,i)}, {P2(U,i)}, {v(S2,2)}")
        if i > 1: A(f"v_pk_add_f32 {v(S1,2)}, {v(S1,2)}, {P2(U,i)}")
    A(f"v_add_f32 {v(S1)}, {v(S1)}, {v(S1+1)}")
    A(f"v_add_f32 {v(S2)}, {v(S2)}, {v(S2+1)}")
    seg_addr(A, sA, sSt, sSeg, 256)
    A(f"v_permlane32_swap_b32 {v(S1)}, {v(S2)}")
    A(f"v_add_f32 {v(S1)}, {v(S1)}, {v(S2)}")
    A(f"global_atomic_add_f32 {v(vSt)}, {v(S1)}, {s(sA,2)} sc1")
    A.label("R5_nost")
    finish_seg(A, "R5", step)

def r6(A):
    A(f"s_load_dwordx2 {s(sP1,2)}, s[0:1], {KA['w_sp']}")
    A(f"s_load_dwordx2 {s(sP2,2)}, s[0:1], {KA['b_sp']}")
    lane = relane(A)
    vSW, vSt, vR0, vR1, vWs = 2, 3, 4, 5, 6
    sT0, sFg, sWsp, sSt, sZ1 = 44, 45, 46, 54, 56
    A(f"s_mul_i32 {s(sT0)}, {s(sRole)}, 5958"); A(f"s_lshr_b32 {s(sT0)}, {s(sT0)}, 16")
    A(f"s_mul_i32 {s(sFg)}, {s(sT0)}, 11"); A(f"s_sub_u32 {s(sFg)}, {s(sRole)}, {s(sFg)}")
    A(f"s_lshl_b32 {s(sT0)}, {s(sT0)}, 2"); A(f"s_add_u32 {s(sT0)}, {s(sT0)}, {s(sW)}"); A(f"s_lshl_b32 {s(sT0)}, {s(sT0)}, 2")
    lane.acc(vSW, [(5, 1, 6)])
    A(f"v_xor_b32 {v(vSW)}, {v(vSW)}, {v(vL16)}")
    A(f"s_and_b32 {s(sTmp)}, {s(sW)}, 1"); A(f"s_lshl_b32 {s(sTmp)}, {s(sTmp)}, 7")
    A(f"v_xor_b32 {v(vSW)}, {s(sTmp)}, {v(vSW)}")
    A(f"s_lshl_b32 {s(sTmp)}, {s(sW)}, 10"); A(f"v_add_u32 {v(vSW)}, {s(sTmp)}, {v(vSW)}")
    lane.acc(vSt, [(0, 5, 3)])
    lane.acc(vR0, [(5, 1, 7), (2, 2, 4)])
    lane.acc(vR1, [(0, 1, 6), (4, 1, 7)])
    A(f"v_xor_b32 {v(vR0)}, {v(vR0)}, {v(vR1)}")
    lane.acc(vR0, [(4, 1, 10), (0, 1, 9), (1, 1, 3)], add=True)
    A(f"v_xor_b32 {v(vR1)}, 64, {v(vR0)}")
    lane.acc(vWs, [(0, 5, 12), (5, 1, 4)])
    A(f"s_waitcnt lgkmcnt(0)")
    base(A, sIn, [(sFg, 4096), (sW, 1024)], WS_Z + SEG_F)
    base(A, sZ1, [(sFg, 4096)], WS_Z)
    base(A, sFl, [], FL_SEG + FO_Z)
    base(A, sSt, [], WS_STAT)
    A(f"s_mov_b64 {s(sMask,2)}, 0x7ff")
    A(f"s_mov_b32 {s(sSeg)}, 0")
    A(f"s_branch R6_gate")
    A.label("R6_warm")
    lane.acc(T, [(0, 5, 1)])
    for j in range(4): base(A, sWsp + 2 * j, [(sT0, 131072)], 131072 * j, sP1)
    base(A, sA, [(sT0, 64)], 0, sP2)
    ACC, WB, Z1, AF, ZR, X, S, MB, RS = 128, 256 + 176, 64, 16, 32, 40, 36, 48, 50
    for j in range(4): A(f"global_load_ushort {v(20+j)}, {v(T)}, {s(sA,2)} offset:{64*j}")
    A(f"s_load_dwordx2 {s(sP2,2)}, s[0:1], {KA['dbg']}")
    base(A, sOut, [(sT0, 131072)], WS_WSP)
    A(f"s_mov_b32 {s(sNx)}, {s(sFg)}")
    A.label("R6_fmt")
    A(f"s_lshl_b32 {s(sTmp)}, {s(sNx)}, 7"); A(f"v_add_u32 {v(T+2)}, {s(sTmp)}, {v(vWs)}")
    A(f"s_lshl_b32 {s(sTmp)}, {s(sNx)}, 12"); A(f"v_add_u32 {v(T+3)}, {s(sTmp)}, {v(vL16)}")
    for j in range(4):
        for k in range(4):
            A(f"global_load_dwordx4 {v(Z1+16*j+4*k,4)}, {v(T+2)}, {s(sWsp+2*j,2)} offset:{32*k}")
    for j in range(4):
        A(f"s_waitcnt vmcnt(12)")
        for k in range(4):
            A(f"global_store_dwordx4 {v(T+3)}, {v(Z1+16*j+4*k,4)}, {s(sOut,2)} offset:{1024*k} sc1")
        A(f"v_add_u32 {v(T+3)}, 131072, {v(T+3)}")
    A(f"s_add_u32 {s(sNx)}, {s(sNx)}, 11")
    A(f"s_cmp_lt_u32 {s(sNx)}, 32"); A(f"s_cbranch_scc1 R6_fmt")
    A(f"v_mov_b32 {v(T+2)}, {DBG_WSP}"); A(f"v_mov_b32 {v(T+3)}, 1")
    A(f"s_waitcnt vmcnt(0) lgkmcnt(0)")
    A(f"s_mov_b64 exec, 1")
    A(f"global_atomic_add {v(T+2)}, {v(T+3)}, {s(sP2,2)} sc1")
    A(f"s_mov_b64 exec, -1")
    wait_init(A, T, sA, sSpin, DBG_WSP, 176)
    for j in range(4): add64(A, sWsp + 2 * j, sOut, 131072 * j)
    A(f"v_mov_b32 {v(vWs)}, {v(vL16)}")
    def wsp(setn):
        for j in range(4):
            for k in range(2):
                A(f"global_load_dwordx4 {R(WB+32*setn+8*j+4*k,4)}, {v(vWs)}, {s(sWsp+2*j,2)} offset:{1024*k} sc1")
        A(f"v_add_u32 {v(vWs)}, 2048, {v(vWs)}")
    wsp(0)
    for j in range(4):
        A(f"v_lshlrev_b32 {v(20+j)}, 16, {v(20+j)}")
        for i in range(32): A(f"v_mov_b32 {v(ACC+32*j+i)}, {v(20+j)}")
    A(f"s_mov_b32 {s(sSeg)}, 0")
    first_poll(A)
    A.label("R6_loop")
    for par in range(2):
        poll_finish(A)
        seg_addr(A, sA, sIn, sSeg, SEG_Z)
        A(f"global_load_dwordx4 {v(ZR,4)}, {v(vL16)}, {s(sA,2)} sc1")
        seg_addr(A, sA, sSt, sSeg, 256)
        A(f"global_load_dwordx2 {v(S,2)}, {v(vSt)}, {s(sA,2)} sc1")
        A(f"s_waitcnt vmcnt(0)")
        tp(A, 1)
        A(f"s_sub_u32 {s(sTmp2)}, {s(sSeg)}, {s(sT0)}")
        nz = A.newlabel('R6_nz')
        A(f"s_cmp_ge_u32 {s(sTmp2)}, 4"); A(f"s_cbranch_scc1 {nz}")
        seg_addr(A, sA, sZ1, sSeg, SEG_Z)
        for j in range(4):
            nj = A.newlabel('R6_nj')
            A(f"s_cmp_lg_u32 {s(sTmp2)}, {j}"); A(f"s_cbranch_scc1 {nj}")
            for q in range(4): A(f"global_load_dwordx4 {v(Z1+16*j+4*q,4)}, {v(vL16)}, {s(sA,2)} offset:{1024*q} sc1")
            A.label(nj)
        A.label(nz)
        stats_finish(A, S, 688, MB, RS)
        ln.unpack(A, X, ZR, 4)
        normalize8(A, X, ZR, MB, RS)
        A(f"ds_write_b128 {v(vSW)}, {v(ZR,4)} offset:{4096*par}")
        nw = A.newlabel('R6_nw')
        if par:
            A(f"s_cmp_eq_u32 {s(sSeg)}, 63"); A(f"s_cbranch_scc1 {nw}")
        wsp(1 - par)
        A(f"s_add_u32 {s(sNx)}, {s(sSeg)}, 1")
        poll_issue(A, sNx)
        A.label(nw)
        A(f"s_waitcnt lgkmcnt(0)")
        A(f"s_barrier")
        tp(A, 2)
        for i in range(4):
            f, k = i // 2, i % 2
            A(f"ds_read_b64_tr_b16 {v(AF+4*i,2)}, {v(vR0)} offset:{4096*par+2048*f+256*k}")
            A(f"ds_read_b64_tr_b16 {v(AF+4*i+2,2)}, {v(vR1)} offset:{4096*par+2048*f+256*k}")
        for i in range(4):
            f, k = i // 2, i % 2
            A(f"s_waitcnt lgkmcnt({6-2*i})")
            for j in range(4):
                d = v(ACC + 32 * j + 16 * f, 16)
                A(f"v_mfma_f32_32x32x16_bf16 {d}, {v(AF+4*i,4)}, {R(WB+32*par+8*j+4*k,4)}, {d}", nochk=True)
        trace(A, 8, T, sSeg)
        A(f"s_add_u32 {s(sSeg)}, {s(sSeg)}, 1")
    A(f"s_cmp_lt_u32 {s(sSeg)}, 64")
    A(f"s_cbranch_scc1 R6_loop")
    A.label("R6_gate")
    A(f"s_cmp_eq_u32 {s(sSeg)}, 0")
    A(f"s_cselect_b32 {s(sNx)}, {WS_DUMMY - WS_Y}, 0")
    A(f"s_cselect_b32 {s(sBuf)}, {WS_DUMMY - FL_SEG - FO_Y}, 0")
    base(A, sA, [(sT0, SEG_F), (sFg, 4096), (sNx, 1)], WS_Y)
    base(A, sFs, [(sT0, FROW), (sFg, 4), (sBuf, 1)], FL_SEG + FO_Y)
    A(f"s_waitcnt vmcnt(0)")
    order = [(j, q) for q2 in range(2) for j in range(4) for q in (2*q2, 2*q2+1)]
    for j in range(4):
        if j: add64(A, sWsp + 2*j, sA, SEG_F * j)
    for n, (j, q) in enumerate(order):
        G = 32 + 8 * (n % 2)
        ln.unpack(A, G, Z1 + 16*j + 4*q, 4)
        for i in range(4): A(f"v_pk_mul_f32 {v(G+2*i,2)}, {v(G+2*i,2)}, {v(ACC+32*j+8*q+2*i,2)}")
        for i in range(4): A(f"v_cvt_pk_bf16_f32 {v(Z1+16*j+4*q+i)}, {v(G+2*i)}, {v(G+2*i+1)}")
        A(f"global_store_dwordx4 {v(vL16)}, {v(Z1+16*j+4*q,4)}, {s(sA if j == 0 else sWsp+2*j,2)} offset:{1024*q} sc1")
    tp(A, 3)
    A(f"v_lshlrev_b32 {v(T)}, 7, {v(vL16)}"); A(f"v_mov_b32 {v(T+1)}, 1")
    A(f"s_waitcnt vmcnt(0)")
    A(f"s_mov_b64 exec, 15")
    A(f"global_store_dword {v(T)}, {v(T+1)}, {s(sFs,2)} sc1")
    A(f"s_mov_b64 exec, -1")
    A(f"s_cmp_eq_u32 {s(sSeg)}, 0")
    A(f"s_cbranch_scc1 R6_warm")
    tp(A, 4)
    tdump(A, 5, T)
    trace(A, 5, T)
    A(f"s_branch R7_run")

def r7_preload(A):
    lane = start(A, [(sP1, 'w_out')])
    A(f"s_bfe_u32 {s(sCol)}, s2, 0x20003")
    A(f"s_lshl_b32 {s(sCol)}, {s(sCol)}, 8"); A(f"s_lshl_b32 {s(sTmp)}, {s(sW)}, 6"); A(f"s_add_u32 {s(sCol)}, {s(sCol)}, {s(sTmp)}")
    A(f"s_waitcnt lgkmcnt(0)")
    srd(A, sP1, 688 * 1024)
    ws_weights(A, lane, 1024, 43, WOUT)

def r7_run(A, back):
    A.label("R7_run")
    A("s_mov_b32 s62, 0")
    trace(A, 4, T)
    A.label("R7_dry")
    A(f"s_load_dwordx2 {s(sP2,2)}, s[0:1], {KA['out']}")
    lane = relane(A)
    vO = 2
    lane.acc(vO, [(0, 5, 10), (5, 1, 4)])
    A(f"s_bfe_u32 {s(sRole)}, s2, 0x20003"); A(f"s_and_b32 {s(sSeg)}, s2, 7"); A(f"s_lshl_b32 {s(sSeg)}, {s(sSeg)}, 3")
    A(f"s_lshr_b32 {s(sTmp)}, s2, 5"); A(f"s_add_u32 {s(sSeg)}, {s(sSeg)}, {s(sTmp)}")
    base(A, sFl, [], FL_SEG + FO_Y)
    A(f"s_mov_b64 {s(sMask,2)}, 0x7ff")
    add64(A, sA, sWS, WS_DUMMY + 0x400000)
    A(f"s_waitcnt vmcnt(0) lgkmcnt(0)")
    A("s_cmp_eq_u32 s62, 1")
    A(f"s_cselect_b64 {s(sP2,2)}, {s(sA,2)}, {s(sP2,2)}")
    A(f"s_cselect_b32 {s(sNx)}, {WS_DUMMY - WS_Y}, 0")
    A(f"s_cselect_b32 {s(sBuf)}, {WS_DUMMY - WS_H}, 0")
    A(f"s_cselect_b32 {s(sFo)}, 0, {s(sSeg)}")
    base(A, sIn, [(sW, 1024), (sNx, 1)], WS_Y)
    base(A, sOut, [(sSeg, 32768), (sRole, 256), (sW, 64)], 0, sP2)
    base(A, sP1, [(sFo, 32768), (sRole, 8192), (sW, 2048), (sBuf, 1)], WS_H)
    A(f"s_barrier")
    A("s_cmp_eq_u32 s62, 1")
    A(f"s_cselect_b64 {s(sMask,2)}, 0, {s(sMask,2)}")
    poll_issue(A, sSeg)
    poll_finish(A, 2)
    ACC, H = 48, 64
    A(f"global_load_dwordx4 {v(H,4)}, {v(vL16)}, {s(sP1,2)} sc1")
    A(f"global_load_dwordx4 {v(H+4,4)}, {v(vL16)}, {s(sP1,2)} offset:1024 sc1")
    act_dma(A, 43, sFo, SEG_F)
    gemm_core(A, 43, WOUT, ACC, [3, 5, 8])
    ln.unpack(A, 80, H, 8)
    for i in range(8): A(f"v_cvt_pk_bf16_f32 {v(H+i)}, {v(ACC+2*i)}, {v(ACC+2*i+1)}")
    ln.unpack(A, ACC, H, 8)
    for i in range(8): A(f"v_pk_add_f32 {v(ACC+2*i,2)}, {v(ACC+2*i,2)}, {v(80+2*i,2)}")
    for i in range(8): A(f"v_cvt_pk_bf16_f32 {v(96+i)}, {v(ACC+2*i)}, {v(ACC+2*i+1)}")
    A(f"global_store_dwordx4 {v(vO)}, {v(96,4)}, {s(sOut,2)}")
    A(f"global_store_dwordx4 {v(vO)}, {v(100,4)}, {s(sOut,2)} offset:32")
    A("s_cmp_eq_u32 s62, 1")
    A(f"s_cbranch_scc1 {back}")
    tp(A, 3)
    if TRACE['on']: A("s_waitcnt vmcnt(0)")
    tp(A, 4)
    tdump(A, 5, T, 170)
    trace(A, 3, T)
    if DBGT['on']: A("s_waitcnt vmcnt(0)")
    dbgt(A, 15, T)
    A("s_endpgm")
```

```python
from common import *

L_MEM, L_KX, L_VX, L_Q, L_O = 0, 8192, 16384, 24576, 26624
L_K = L_MEM
L_SEL, L_ONES, L_MW, L_ZERO = 28672, 29696, 30720, 31744
L_W = 32768
vL16, vIdx, vInbW, vLdsW, vMemL, vQW, vQR, vKR, vOW, vDum = range(10)
PZ = 10
T0, T1, T2, T3 = 12, 13, 14, 15
MA, WIN, AQ, AK, AV, VX = 16, 48, 96, 104, 112, 120
sW, sH, sStep, sSpin, sTmp, sTmp2 = 3, 4, 5, 6, 7, 8
sC = 9
sHi = 10
sKV, sKM, sINBw, sINBp, sINBr, sMEMr, sMEMw, sFKV, sPROG = 12, 14, 16, 18, 20, 22, 24, 26, 28
sWS, sDBG = 30, 32
sTag = 34
SRD = 36
sPTR = 40
sM0P = 48
sPROF = 50
sRdy = 52
sMode = 54
sKXM0 = 56
sLB = 57
sCnt1, sCnt2 = 58, 59
sKV2x = 18
sLo, sRange = 18, 19
sKV2 = 40
sSlot = 49
sMA, sMB, sMC = 60, 62, 36
sTM = 64
NST = 12

perm_units = [('K', j) for j in range(8)] + [('V', j) for j in range(8)] + [('Q', j) for j in range(4, 8)] + [('Q', 3), ('O', (0, 0)), ('O', (1, 0)), ('O', (0, 1))]
lds_units = [('Q', 0), ('Q', 1), ('Q', 2), ('O', (1, 1)), ('O', (2, 0)), ('O', (3, 0)), ('O', (2, 1)), ('O', (3, 1))]
units = perm_units + lds_units
PERM = {u: 128 + 16 * i for i, u in enumerate(perm_units)}
LDSU = {u: i for i, u in enumerate(lds_units)}
QWIN = {0: WIN + 16, 1: WIN + 32, 2: WIN}
OWIN = {(1, 1): WIN, (2, 0): MA, (2, 1): MA + 16, (3, 0): WIN + 32, (3, 1): WIN + 16}

def frag(M, j, t):
    u = (M, j)
    if u in PERM: return R(PERM[u] + 8 * t, 8)
    if M == 'Q': return R(QWIN[j] + 8 * t, 8)
    return R(OWIN[j] + 8 * t, 8)

def SM(acc, areg, b):
    return f"v_smfmac_f32_16x16x64_bf16 {v(acc,4)}, {v(areg,4)}, {b}, {v(vIdx)}"

def win_reads(ulist):
    out = []
    for u in ulist:
        base = QWIN[u[1]] if u[0] == 'Q' else OWIN[u[1]]
        for q in range(4):
            out.append(f"ds_read_b128 {v(base+4*q,4)}, {v(vLdsW)} offset:{LDSU[u]*4096+q*1024}")
    return out

def team_prologue(A, use_flags, prof):
    A(f"s_lshr_b32 {s(sH)}, s2, 3")
    A(f"v_lshrrev_b32 {v(T0)}, 6, v0")
    A(f"s_load_dwordx8 {s(sPTR,8)}, s[0:1], {KA['Wq']}")
    A(f"s_load_dwordx2 {s(sM0P,2)}, s[0:1], {KA['mem0']}")
    A(f"s_load_dwordx2 {s(sDBG,2)}, s[0:1], {KA['dbg']}")
    A(f"s_load_dwordx2 {s(sWS,2)}, s[0:1], {KA['ws']}")
    A(f"v_readfirstlane_b32 {s(sW)}, {v(T0)}")
    A(f"v_and_b32 v16, 63, v0")
    L = 16
    n16, g4, ta, tb, tc = 17, 18, 19, 20, 21
    vSrcP, vSrcO, vTr0, vTr1, vCol, vMemW = 22, 23, 24, 25, 26, 27
    def bits(dst, lo, n): A(f"v_bfe_u32 {v(dst)}, {v(L)}, {lo}, {n}")
    def acc(dst, lo, n, sh, first=False, tmp=tb):
        bits(tmp, lo, n)
        if first: A(f"v_lshlrev_b32 {v(dst)}, {sh}, {v(tmp)}")
        else: A(f"v_lshl_add_u32 {v(dst)}, {v(tmp)}, {sh}, {v(dst)}")
    def addw(dst, sh, imm=0):
        A(f"s_lshl_b32 {s(sTmp)}, {s(sW)}, {sh}")
        if imm: A(f"s_add_u32 {s(sTmp)}, {s(sTmp)}, {imm}")
        A(f"v_add_u32 {v(dst)}, {s(sTmp)}, {v(dst)}")
    bits(ta, 1, 1); bits(tc, 4, 1)
    A(f"v_xor_b32 {v(ta)}, {v(ta)}, {v(tc)}")
    A(f"v_lshlrev_b32 {v(vCol)}, 5, {v(ta)}")
    acc(vCol, 0, 1, 4)
    acc(ta, 4, 2, 2, True); acc(ta, 2, 1, 0); acc(ta, 3, 1, 4)
    A(f"v_lshl_add_u32 {v(vSrcP)}, {v(ta)}, 13, {v(vCol)}")
    A(f"s_lshl_b32 {s(sLB)}, {s(sW)}, 15")
    A(f"s_add_u32 {s(sLB)}, {s(sLB)}, {L_W}")
    A(f"s_mov_b32 {s(SRD+2)}, 0x400000")
    A(f"s_mov_b32 {s(SRD+3)}, 0x20000")
    sCol, sColO, sOff, sX2, sSw, sOk = 60, 61, 62, 63, 35, 34
    A(f"s_lshl_b32 {s(sCol)}, {s(sH)}, 8")
    A(f"s_lshl_b32 {s(sTmp)}, {s(sW)}, 6")
    A(f"s_add_u32 {s(sCol)}, {s(sCol)}, {s(sTmp)}")
    A(f"s_lshl_b32 {s(sColO)}, {s(sH)}, 17")
    A(f"s_lshl_b32 {s(sTmp)}, {s(sW)}, 8")
    A(f"s_add_u32 {s(sColO)}, {s(sColO)}, {s(sTmp)}")
    A(f"s_and_b32 {s(sX2)}, {s(sW)}, 2")
    A(f"s_and_b32 {s(sSw)}, {s(sW)}, 1")
    A(f"s_lshl_b32 {s(sSw)}, {s(sSw)}, 13")
    A(f"s_waitcnt lgkmcnt(0)")
    cur = [None]
    Q = []
    def wait_tag(tag):
        last = max(k for k, x in enumerate(Q) if x == tag)
        A(f"s_waitcnt vmcnt({len(Q) - 1 - last})")
    def issue(i):
        M, j = units[i]
        slot = i % 8
        if cur[0] != M:
            p = sPTR + 2 * 'QKVO'.index(M)
            A(f"s_mov_b32 {s(SRD)}, {s(p)}")
            A(f"s_and_b32 {s(SRD+1)}, {s(p+1)}, 0xffff")
            cur[0] = M
        if M == 'O':
            p_, kb2 = j
            b0 = 64 * kb2 * 1024 + p_ * 64
            for m in range(4):
                A(f"s_add_u32 m0, {s(sLB)}, {slot*4096 + m*1024}")
                A(f"s_add_u32 {s(sOff)}, {s(sColO)}, {b0 + (32*(m//2) + 2*(m%2)) * 1024}")
                A(f"buffer_load_dwordx4 {v(vSrcO)}, {s(SRD,4)}, {s(sOff)} offen lds")
        else:
            paired = units[i ^ 2] == (M, j ^ 2)
            A(f"s_xor_b32 {s(sTmp)}, {s(sX2 if paired else sW)}, {j // 2}")
            A(f"s_lshl_b32 {s(sTmp)}, {s(sTmp)}, 18")
            A(f"s_add_u32 {s(sTmp)}, {s(sTmp)}, {s(sCol)}")
            if paired:
                A(f"s_xor_b32 {s(sTmp2)}, {s(sSw)}, {slot*4096}")
                A(f"s_add_u32 {s(sTmp2)}, {s(sTmp2)}, {s(sLB)}")
            for m in range(4):
                if paired: A(f"s_add_u32 m0, {s(sTmp2)}, {m*1024}")
                else: A(f"s_add_u32 m0, {s(sLB)}, {slot*4096 + m*1024}")
                A(f"s_add_u32 {s(sOff)}, {s(sTmp)}, {(256*(j%2) + 128*(m//2) + 2*(m%2)) * 8192}")
                A(f"buffer_load_dwordx4 {v(vSrcP)}, {s(SRD,4)}, {s(sOff)} offen lds")
        Q.extend([i // 4] * 4)
    tp(A, 0)
    for i in range(8): issue(i)
    tp(A, 1)
    A(f"v_lshlrev_b32 {v(vL16)}, 4, {v(L)}")
    A(f"v_and_b32 {v(n16)}, 15, {v(L)}")
    A(f"v_cmp_lt_u32 {s(sHi,2)}, 7, {v(n16)}")
    bits(ta, 1, 1)
    A(f"v_cmp_eq_u32 vcc, 1, {v(ta)}")
    A(f"v_mov_b32 {v(ta)}, 0x44444444")
    A(f"v_mov_b32 {v(tb)}, 0xeeeeeeee")
    A(f"v_cndmask_b32 {v(vIdx)}, {v(ta)}, {v(tb)}, vcc")
    acc(vInbW, 3, 3, 13, True); acc(vInbW, 0, 3, 3); addw(vInbW, 16)
    acc(vMemW, 4, 2, 4, True); acc(vMemW, 0, 2, 2)
    A(f"v_add_u32 {v(vLdsW)}, {s(sLB)}, {v(vL16)}")
    A(f"v_mov_b32 {v(vMemL)}, {v(vL16)}"); addw(vMemL, 11)
    A(f"s_add_u32 {s(sKXM0)}, {s(sTmp)}, {L_KX}")
    acc(vQW, 0, 4, 4, True); acc(vQW, 4, 2, 2); addw(vQW, 9, L_Q)
    acc(vQR, 5, 1, 9, True); acc(vQR, 4, 1, 7); acc(vQR, 2, 2, 4); acc(vQR, 0, 1, 3)
    acc(vKR, 5, 1, 10, True); acc(vKR, 0, 2, 7); acc(vKR, 1, 1, 5); acc(vKR, 4, 1, 6); acc(vKR, 2, 2, 3)
    acc(vOW, 5, 1, 8, True); acc(vOW, 1, 2, 6); acc(vOW, 4, 1, 5); acc(vOW, 0, 1, 4); acc(vOW, 3, 1, 3); addw(vOW, 9)
    acc(ta, 2, 1, 4, True)
    A(f"v_mov_b32 {v(tc)}, 0x3f80")
    A(f"v_lshlrev_b32 {v(tc)}, {v(ta)}, {v(tc)}")
    acc(ta, 0, 2, 1, True); acc(ta, 3, 1, 0)
    for q in range(4):
        A(f"v_cmp_eq_u32 vcc, {q}, {v(ta)}")
        A(f"s_nop 1")
        A(f"v_cndmask_b32 {v(28+q)}, 0, {v(tc)}, vcc")
    A(f"ds_write_b128 {v(vL16)}, {v(28,4)} offset:{L_SEL}")
    for q in range(4): A(f"v_mov_b32 {v(40+q)}, 0x3f803f80")
    A(f"ds_write_b128 {v(vL16)}, {v(40,4)} offset:{L_ONES}")
    A(f"ds_write_b32 {v(vL16)}, {v(vMemW)} offset:{L_MW}")
    for q in range(4): A(f"v_mov_b32 {v(44+q)}, 0")
    A(f"ds_write_b128 {v(vL16)}, {v(44,4)} offset:{L_ZERO}")
    acc(ta, 4, 1, 4, True); acc(ta, 5, 1, 3); acc(ta, 3, 1, 2); acc(ta, 2, 1, 0)
    A(f"v_lshl_add_u32 {v(vSrcO)}, {v(ta)}, 10, {v(vCol)}")
    acc(vTr0, 2, 4, 6, True); acc(vTr0, 4, 1, 5); acc(vTr0, 0, 2, 3)
    A(f"v_add_u32 {v(vTr0)}, {s(sLB)}, {v(vTr0)}")
    A(f"v_xor_b32 {v(vTr1)}, 32, {v(vTr0)}")
    A(f"s_waitcnt lgkmcnt(0)")
    def base(dst, terms, imm):
        A(f"s_mov_b32 {s(sTmp2)}, {imm}")
        for r_, sh in terms:
            A(f"s_lshl_b32 {s(sTmp)}, {s(r_)}, {sh}")
            A(f"s_add_u32 {s(sTmp2)}, {s(sTmp2)}, {s(sTmp)}")
        add64(A, dst, sWS, s(sTmp2))
    base(sKV, [(sH, 20)], WS_KV)
    base(sKM, [(sH, 18)], WS_KM)
    base(sINBr, [(sH, 13)], WS_INB)
    base(sINBw, [(sH, 6)], WS_INB + 4096)
    A(f"s_lshr_b32 {s(sCnt1)}, {s(sH)}, 3")
    A(f"s_and_b32 {s(sCnt2)}, {s(sH)}, 1")
    A(f"s_bfe_u32 {s(sSpin)}, {s(sH)}, 0x20001")
    base(sMEMw, [(sW, 11), (sCnt1, 9), (sCnt2, 8), (sSpin, 6)], WS_MEM)
    base(sMEMr, [], WS_MEM)
    base(sFKV, [(sH, 8)], FL_KV)
    base(sPROG, [(sH, 8), (sW, 2)], FL_PROG)
    if prof: base(sPROF, [(sH, 15), (sW, 13)], WS_PROF)
    A(f"s_mov_b32 {s(sC)}, 0x3e0293ee")
    for q in range(4): A(f"v_mov_b32 {v(28+q)}, -1")
    for off in (0, 1024):
        A(f"global_store_dwordx4 {v(vMemL)}, {v(28,4)}, {s(sINBr,2)} offset:{off} sc1")
    for q in range(4):
        A(f"v_add_u32 {v(ta)}, {8192*q}, {v(vMemW)}")
        A(f"global_store_dword {v(ta)}, {v(28)}, {s(sMEMw,2)} sc1")
    acc(ta, 2, 2, 11, True); acc(ta, 0, 1, 10); acc(ta, 5, 1, 8); acc(ta, 4, 1, 4); acc(ta, 1, 1, 5); addw(ta, 6)
    TMPA = 32
    for b in range(2):
        A(f"global_load_dwordx4 {v(TMPA+4*b,4)}, {v(ta)}, {s(sM0P,2)} offset:{512*b}")
    Q.extend(['init'] * 8)
    A(f"v_mov_b32 v120, {s(sC)}")
    A(f"s_mov_b32 {s(sStep)}, 0")
    add64(A, sKV2x, sKV, 8192)
    TW = 48
    vP1, vP2 = 44, 45
    def team_eval(r_):
        A(f"v_cmp_eq_u32 {s(sMode,2)}, 32, {v(r_)}")
        A(f"s_mov_b32 {s(sTmp)}, 0")
        for q in range(8):
            A(f"v_readlane_b32 {s(sTmp2)}, {v(r_)}, {q}")
            A(f"s_add_u32 {s(sTmp)}, {s(sTmp)}, {s(sTmp2)}")
        A(f"s_and_b64 {s(sMode,2)}, {s(sMode,2)}, 0xff")
        A(f"s_cmp_ge_u32 {s(sTmp)}, 32")
    for g in range(8):
        wait_tag('p2' if g == 7 else g)
        tp(A, 2 + g)
        if g == 7:
            slow, go = A.newlabel('T_slow'), A.newlabel('T_go')
            A(f"v_cmp_ne_u32 {s(sRdy,2)}, 0, {v(vP2)}")
            A(f"s_cmp_lg_u32 {s(sOk)}, 0")
            A(f"s_cbranch_scc1 {go}")
            A(f"s_mov_b32 {s(sSpin)}, {SPIN_MAX}")
            lw, ld = A.newlabel('T_bar'), A.newlabel('T_bard')
            A.label(lw)
            A(f"global_load_dword {v(vP1)}, {v(T2)}, {s(sDBG,2)} sc1")
            A(f"s_waitcnt vmcnt(0)")
            team_eval(vP1)
            A(f"s_cbranch_scc1 {ld}")
            A(f"s_sub_u32 {s(sSpin)}, {s(sSpin)}, 1")
            A(f"s_cbranch_scc0 {lw}")
            A.label(ld)
            if use_flags: wait_init(A, T0, sM0P, sSpin)
            A(f"s_mov_b64 {s(sRdy,2)}, 0")
            A.label(go)
            if use_flags:
                wait_flag(A, 0)
                wait_flag(A, 1)
            A(f"s_mov_b64 {s(sKV2,2)}, {s(sKV2x,2)}")
            for x in k_dma() + v_dma(): A(x)
        lds_grp = units[4*g] not in PERM
        for i in range(4*g, 4*g + 4):
            slot = i % 8
            dst = TW + 16 * (i % 4) if lds_grp or units[i][0] == 'Q' else PERM[units[i]]
            for t in range(2):
                for m in range(4):
                    A(f"ds_read_b64_tr_b16 {R(dst+8*t+2*m,2)}, {v(vTr1 if t else vTr0)} offset:{slot*4096+m*1024}")
        A(f"s_waitcnt lgkmcnt(0)")
        if g == 6:
            wait_tag('p1')
            team_eval(vP1)
            A(f"s_cselect_b32 {s(sOk)}, 1, 0")
            if use_flags:
                A(f"v_readlane_b32 {s(sTmp2)}, {v(vP1)}, {DBG_INIT//4}")
                A(f"s_cmp_ge_u32 {s(sTmp2)}, {N_INIT}")
                A(f"s_cselect_b32 {s(sOk)}, {s(sOk)}, 0")
        if g + 2 < 8:
            for i in range(4*g + 8, 4*g + 12): issue(i)
        if g == 2:
            A(f"s_barrier")
            lab = A.newlabel('T_noarr')
            A(f"s_cmp_lg_u32 {s(sW)}, 0")
            A(f"s_cbranch_scc1 {lab}")
            A(f"s_getreg_b32 {s(sTmp)}, hwreg(HW_REG_XCC_ID)")
            A(f"s_and_b32 {s(sTmp)}, {s(sTmp)}, 7")
            A(f"s_lshl_b32 {s(sTmp)}, {s(sTmp)}, 2")
            A(f"v_mov_b32 {v(ta)}, {s(sTmp)}")
            A(f"v_mov_b32 {v(tb)}, 1")
            A(f"s_mov_b64 exec, 1")
            A(f"global_atomic_add {v(ta)}, {v(tb)}, {s(sDBG,2)} sc1")
            A(f"s_mov_b64 exec, -1")
            A.label(lab)
        if g == 4:
            A(f"v_lshrrev_b32 {v(T2)}, 2, {v(vL16)}")
            A(f"v_and_b32 {v(T2)}, 60, {v(T2)}")
            A(f"global_load_dword {v(vP1)}, {v(T2)}, {s(sDBG,2)} sc1", nochk=True); Q.append('p1')
        if g == 5:
            if use_flags:
                A(f"v_mov_b32 {v(T0)}, {DBG_TEAM}"); A(f"v_mov_b32 {v(T1)}, 1")
                A(f"s_mov_b64 exec, 1")
                A(f"global_atomic_add {v(T0)}, {v(T1)}, {s(sDBG,2)} sc1"); Q.append('at')
                A(f"s_mov_b64 exec, -1")
        for i in range(4*g, 4*g + 4):
            if units[i][0] != 'Q': continue
            for r_ in range(16):
                x = TW + 16 * (i % 4) + r_
                u_ = 112 + 2 * (r_ % 4)
                A(f"v_lshlrev_b32 {v(u_)}, 16, {v(x)}")
                A(f"v_and_b32 {v(u_+1)}, 0xffff0000, {v(x)}")
                A(f"v_pk_mul_f32 {v(u_,2)}, {v(u_,2)}, {v(120,2)} op_sel_hi:[1,0]")
                if lds_grp or PERM[units[i]] >= 256:
                    A(f"v_cvt_pk_bf16_f32 {v(x)}, {v(u_)}, {v(u_+1)}")
                    if not lds_grp: A(f"v_accvgpr_write_b32 {R(PERM[units[i]]+r_)}, {v(x)}")
                else:
                    A(f"v_cvt_pk_bf16_f32 {R(PERM[units[i]]+r_)}, {v(u_)}, {v(u_+1)}")
        if lds_grp:
            for i in range(4*g, 4*g + 4):
                for q in range(4):
                    A(f"ds_write_b128 {v(vLdsW)}, {v(TW+16*(i%4)+4*q,4)} offset:{(i%8)*4096+q*1024}")
            A(f"s_waitcnt lgkmcnt(0)")
        if g == 6:
            A(f"v_lshrrev_b32 {v(T3)}, 2, {v(vL16)}")
            A(f"global_load_dword {v(vP2)}, {v(T3)}, {s(sFKV,2)} sc1", nochk=True); Q.append('p2')
    for q in range(8): A(f"v_mov_b32 {v(MA+q)}, {v(TMPA+q)}")
    trace(A, 0, T0, first=True); trace(A, 1, T0); dbgt(A, 12, T0); tdump(A, 10, T0, 180)
    trace(A, 2, T0); dbgt(A, 13, T0)
    add64(A, sKV, sKV, 0x4000)
    add64(A, sKV2, sKV2, 0x4000)
    A(f"s_mov_b32 {s(sTag)}, 0")
    A(f"s_mov_b32 {s(sLo)}, {hex((127-30) << 23)}")
    A(f"s_mov_b32 {s(sRange)}, {hex(60 << 23)}")
    A(f"s_mov_b32 {s(sSlot)}, 0")
    for x in win_reads([('Q', 0), ('Q', 1), ('Q', 2)]): A(x)
    zero_acc(A)
    A(f"ds_read_b32 {v(PZ)}, {v(vL16)} offset:{L_MW}")
    A(f"s_waitcnt lgkmcnt(0)")
    for x in pre_step(): A(x)
    A(f"s_waitcnt vmcnt(0) lgkmcnt(0)")

def wait_flag(A, ahead):
    lw, ld = A.newlabel('T_fw'), A.newlabel('T_fd')
    A(f"s_add_u32 {s(sTmp)}, {s(sStep)}, {ahead}")
    A(f"s_min_u32 {s(sTmp)}, {s(sTmp)}, 63")
    A(f"s_bitcmp1_b64 {s(sRdy,2)}, {s(sTmp)}")
    A(f"s_cbranch_scc1 {ld}")
    A(f"s_mov_b32 {s(sSpin)}, {SPIN_MAX*4}")
    A(f"v_lshrrev_b32 {v(T0)}, 2, {v(vL16)}")
    A.label(lw)
    A(f"global_load_dword {v(T1)}, {v(T0)}, {s(sFKV,2)} sc1")
    A(f"s_waitcnt vmcnt(0)")
    A(f"v_cmp_ne_u32 {s(sRdy,2)}, 0, {v(T1)}")
    A(f"s_nop 3")
    A(f"s_bitcmp1_b64 {s(sRdy,2)}, {s(sTmp)}")
    A(f"s_cbranch_scc1 {ld}")
    A(f"s_sub_u32 {s(sSpin)}, {s(sSpin)}, 1")
    A(f"s_cmp_lg_u32 {s(sSpin)}, 0")
    A(f"s_cbranch_scc1 {lw}")
    A.label(ld)

def k_dma():
    return [f"s_mov_b32 m0, {s(sKXM0)}", "s_nop 0",
            f"global_load_lds_dwordx4 {v(vMemL)}, {s(sKV,2)} sc1",
            f"global_load_lds_dwordx4 {v(vMemL)}, {s(sKV,2)} offset:1024 sc1"]
def v_dma():
    return [f"s_add_u32 m0, {s(sKXM0)}, {L_VX-L_KX}", "s_nop 0",
            f"global_load_lds_dwordx4 {v(vMemL)}, {s(sKV2,2)} sc1",
            f"global_load_lds_dwordx4 {v(vMemL)}, {s(sKV2,2)} offset:1024 sc1"]

def zero_acc(A):
    for q in range(0, 24, 2): A(f"v_mov_b64 {v(AQ+q,2)}, 0")

XA = [MA + 12, MA + 20, T2]
tZero, tProg, tMP, tC0, tC1 = MA + 16, MA + 17, MA + 18, MA + 8, MA + 9
tNeg = MA + 19
def pre_step():
    o = [f"v_xor_b32 {v(XA[jj])}, {2048*(jj+1)}, {v(vMemL)}" for jj in range(3)]
    o += [f"v_mov_b32 {v(tZero)}, 0", f"v_mov_b32 {v(tProg)}, {s(sStep)}",
          f"s_xor_b32 {s(sTmp)}, {s(sSlot)}, 0x4000",
          f"v_add_u32 {v(tMP)}, {s(sTmp)}, {v(PZ)}",
          f"v_lshrrev_b32 {v(PZ)}, 2, {v(vL16)}",
          f"v_mov_b32 {v(tNeg)}, -1"]
    return o

def team_loop(A, fast, use_flags, prof, endlabel, cfg):
    sc = "" if fast else " sc1"
    tag = 'F' if fast else 'S'
    ENTRY = f"T_entry_{tag}"
    def stamp(k):
        if prof and k in prof: A(f"s_memtime {s(sTM+2*prof.index(k),2)}")
        if prof and k == 'h1a' and 'rt' in prof: A(f"s_memrealtime {s(sTM+2*prof.index('rt'),2)}")
    lg = lambda n: f"s_waitcnt lgkmcnt({n})"
    def seq(items):
        for x in items:
            if isinstance(x, (list, tuple)): seq(x)
            elif x and x.startswith('@'): stamp(x[1:])
            elif x and x.startswith('!'): A(x[1:], nochk=True)
            elif x and any(pat in x for pat in cfg.get('drop', [])): A("s_nop 0")
            elif x: A(x)
    def nops(n):
        while n > 0:
            A(f"s_nop {min(n,16)-1}"); n -= 16
    IB = MA + 24
    vMR = PZ + 1
    def loads(dst, ad, b):
        A(f"global_load_dwordx4 {v(dst,4)}, {v(ad)}, {s(b,2)} sc1", nochk=True)
        A(f"global_load_dwordx4 {v(dst+4,4)}, {v(ad)}, {s(b,2)} offset:1024 sc1", nochk=True)
    zread = lambda r_: f"ds_read_b128 {v(r_,4)}, {v(vL16)} offset:{L_ZERO}"
    def check2(D):
        A(f"s_waitcnt vmcnt({2*(D-1)+1})")
        A(f"v_max3_u32 {v(tC0)}, {v(MA)}, {v(MA+1)}, {v(MA+2)}")
        A(f"v_max_u32 {v(tC0)}, {v(tC0)}, {v(MA+3)}")
        A(f"s_waitcnt vmcnt({2*(D-1)})")
        A(f"v_max3_u32 {v(tC0)}, {v(tC0)}, {v(MA+4)}, {v(MA+5)}")
        A(f"v_max3_u32 {v(tC0)}, {v(tC0)}, {v(MA+6)}, {v(MA+7)}")
        A(f"v_cmp_eq_u32 vcc, -1, {v(tC0)}")
    P2 = cfg.get('p2', [[180, 320]] * 4)
    FT = cfg.get('ft', [0, 1, 2, 3])
    R2, HPF = f"T_r2_{tag}", f"T_hpf_{tag}"
    A.label(R2)
    A("s_mov_b64 exec, vcc")
    loads(MA, vMR, sMEMr)
    A("s_mov_b64 exec, -1")
    if prof: A(f"s_sub_u32 {s(sCnt2)}, {s(sCnt2)}, 1")
    A(f"s_sub_u32 {s(sSpin)}, {s(sSpin)}, 1")
    A(f"s_cbranch_scc1 {ENTRY}")
    A.label(HPF)
    check2(len(P2[3]))
    A(f"s_cbranch_vccnz {R2}")
    A.label(ENTRY)
    own = [SM(acc+4*t, MA+4*j, frag(M, j, t)) for M, acc in (('Q', AQ), ('K', AK), ('V', AV)) for j in range(2) for t in range(2)]
    mr = []
    for jj in range(3):
        mr.append(f"ds_read_b128 {v(MA+8+8*jj,4)}, {v(XA[jj])}")
        mr.append(f"ds_read_b128 {v(MA+12+8*jj,4)}, {v(XA[jj])} offset:1024")
    vr = [f"ds_read_b128 {v(VX,4)}, {v(vMemL)} offset:{L_VX}", f"ds_read_b128 {v(VX+4,4)}, {v(vMemL)} offset:{L_VX+1024}"]
    seq([own[0], f"ds_write_b128 {v(vMemL)}, {v(MA,4)}", f"ds_write_b128 {v(vMemL)}, {v(MA+4,4)} offset:1024", '@0',
         own[1], own[2], own[3], own[4],
         own[5], '@a1', "s_waitcnt lgkmcnt(0)", "s_barrier", '@a2',
         mr[0], own[6], mr[1], f"global_store_dword {v(tMP)}, {v(tNeg)}, {s(sMEMw,2)}{sc}",
         own[7], f"global_store_dword {v(tZero)}, {v(tProg)}, {s(sPROG,2)} sc1", mr[2], own[8], mr[3], own[9], mr[4], own[10], mr[5], f"s_cmp_eq_u32 {s(sStep)}, 63", own[11], f"s_cbranch_scc1 {endlabel}", vr[0]])
    KXR, QB = WIN + 16, WIN
    kxr = [f"ds_read_b128 {v(KXR+4*i,4)}, {v(vL16)} offset:{L_KX+1024*i}" for i in range(8)]
    qorder = [(j, t) for j in range(2, 4) for t in range(2)] + [(j, 0) for j in range(4, 8)] + [(j, 1) for j in range(4, 8)]
    qs = [SM(AQ+4*t, MA+4*j, frag('Q', j, t)) for j, t in qorder]
    vd = v_dma()
    def post(acc, pk):
        return [f"v_add_f32 {v(acc)}, {v(acc)}, {v(acc+2)}", f"v_add_f32 {v(acc+1)}, {v(acc+1)}, {v(acc+3)}",
                f"v_cvt_pk_bf16_f32 {v(pk)}, {v(acc)}, {v(acc+1)}"]
    q0, q1 = post(AQ, T0), post(AQ + 4, T1)
    fl = f"!global_load_dword {v(vDum)}, {v(PZ)}, {s(sFKV,2)} sc1" if use_flags else None
    kw = [f"v_lshrrev_b32 {v(PZ)}, 1, {v(vMemL)}", f"v_bfe_u32 {v(PZ+1)}, {v(vL16)}, 9, 1", f"v_lshl_add_u32 {v(PZ+1)}, {v(PZ+1)}, 5, {v(PZ)}"]
    seq(['@b0', lg(6), qs[0], vr[1], qs[1], fl, lg(6), qs[2], kxr[0], kw[0], qs[3], kxr[1], lg(6), qs[4], kxr[2], kw[1], qs[5], lg(3), kxr[3], qs[6], kxr[4], kw[2], qs[7], vd[0],
         qs[8], kxr[5], qs[9], kxr[6], q0[0], qs[10], kxr[7], q0[1], qs[11], vd[2], q0[2]])
    nvm = 4 + (1 if use_flags else 0)
    ks = [SM(AK+4*t, MA+4*j, frag('K', j, t)) for t in range(2) for j in range(2, 8)]
    qr = []
    for y in range(4):
        off = L_Q + (64 * (y // 2) + 16 * (y % 2)) * 16
        qr += [f"ds_read_b64_tr_b16 {v(QB+4*y,2)}, {v(vQR)} offset:{off}", f"ds_read_b64_tr_b16 {v(QB+4*y+2,2)}, {v(vQR)} offset:{off+64}"]
    k0, k1 = post(AK, T2), post(AK + 4, T3)
    vs = [SM(AV+4*t, MA+4*j, frag('V', j, t)) for t in range(2) for j in range(2, 8)]
    kd = k_dma()
    seq(['@c0', ks[0], vd[3], ks[1], q1[0], ks[2], q1[1], ks[3], q1[2],
         ks[4], f"ds_write2st64_b32 {v(vQW)}, {v(T0)}, {v(T1)} offset1:1", ks[5], ks[6],
         ks[7], k0[0], ks[8], lg(0), "s_barrier", '@1', ks[9], qr[0], qr[1], ks[10], qr[2], k0[1], ks[11], qr[3], k0[2]])
    SX, KM = AQ, AK
    SMa, SMb = KXR, KXR + 4
    sx = [f"v_mfma_f32_16x16x32_bf16 {v(SX+4*kt,4)}, {v(KXR+16*kt+4*y,4)}, {v(QB+4*y,4)}, {v(SX+4*kt,4) if y else 0}" for kt in range(2) for y in range(4)]
    kr = []
    for al in range(2):
        kr += [f"ds_read_b64_tr_b16 {v(KM+4*al,2)}, {v(vKR)} offset:{L_K+2048*al}", f"ds_read_b64_tr_b16 {v(KM+4*al+2,2)}, {v(vKR)} offset:{L_K+2048*al+32}"]
    sm_ = [f"v_mfma_f32_16x16x32_bf16 {v(SMb if y%2 else SMa,4)}, {v(KM+4*(y//2),4)}, {v(QB+4*y,4)}, {v(SMb if y%2 else SMa,4) if y>=2 else 0}" for y in range(4)]
    ONES, PM = KXR + 8, KXR + 12
    PX, LACC = KXR + 16, KXR + 20
    ow11, ow20, ow21, ow30, ow31 = [win_reads([('O', u)]) for u in ((1, 1), (2, 0), (2, 1), (3, 0), (3, 1))]
    v0, v1 = post(AV, AV + 2), post(AV + 4, AV + 3)
    OACC0, OACC1 = AK, AK + 4
    ex = lambda d, r_: f"v_exp_f32 {v(d)}, {v(r_)}"
    cv = lambda d, a_, b_: f"v_cvt_pk_bf16_f32 {v(d)}, {v(a_)}, {v(b_)}"
    pv = [f"v_mfma_f32_16x16x32_bf16 {v(LACC,4)}, {v(ONES,4)}, {v(PX,4)}, 0",
          f"v_mfma_f32_16x16x16_bf16 {v(LACC,4)}, {v(ONES,2)}, {v(PM,2)}, {v(LACC,4)}",
          f"v_mfma_f32_16x16x32_bf16 {v(OACC0,4)}, {v(VX,4)}, {v(PX,4)}, 0",
          f"v_mfma_f32_16x16x32_bf16 {v(OACC1,4)}, {v(VX+4,4)}, {v(PX,4)}, 0",
          f"v_mfma_f32_16x16x16_bf16 {v(OACC0,4)}, {v(AV+2,2)}, {v(PM,2)}, {v(OACC0,4)}",
          f"v_mfma_f32_16x16x16_bf16 {v(OACC1,4)}, {v(AV+2,2)}, {v(PM+2,2)}, {v(OACC1,4)}"]
    FB, BACK = f"T_fb_{tag}", f"T_back_{tag}"
    seq(['@c1', vs[0], qr[4], kd[0], vs[1], qr[5], k1[0], lg(4), sx[0], qr[6], k1[1], lg(3), sx[1], qr[7], k1[2],
         vs[2], f"ds_write_b64 {v(PZ+1)}, {v(T2,2)} offset:{L_K}", '@d1', lg(3), sx[2],
         f"global_store_dwordx2 {v(PZ)}, {v(T2,2)}, {s(sKM,2)} sc1", lg(1),
         sx[3], kd[2], sx[4], kd[3], sx[5], ex(T0, SX), vs[3], '@d2', lg(0), "s_barrier", '@d3',
         sx[6], kr[0], kr[1], sx[7], kr[2], kr[3],
         vs[4], f"ds_read_b128 {v(ONES,4)}, {v(vL16)} offset:{L_ONES}", ex(T1, SX+1), vs[5], zread(PM), cv(PX, T0, T1), '@d4', lg(4),
         sm_[0], ex(T2, SX+2), sm_[1], ex(T3, SX+3), lg(2), sm_[2], ex(T0, SX+4), sm_[3], ex(T1, SX+5), '@2',
         vs[6], ow11[0], cv(PX+1, T2, T3), vs[7], ow11[1], cv(PX+2, T0, T1),
         vs[8], ow11[2], f"v_add_f32 {v(PZ)}, {v(SMa)}, {v(SMb+2)}", f"v_add_f32 {v(PZ+1)}, {v(SMa+1)}, {v(SMb+3)}",
         vs[9], ow11[3], ow30[2], ex(T2, SX+6), vs[10], f"s_waitcnt vmcnt({nvm+3})", ow20[0], ex(T3, SX+7), '@e1',
         vs[11], ow20[1], ow30[3], cv(PX+3, T2, T3), ex(T0, PZ), ex(T1, PZ+1), lg(8), '@e3',
         pv[0], cv(PM, T0, T1), v0[0], pv[2], v0[1], v1[0], pv[1], v1[1], v0[2], pv[3], v1[2], cv(PM+3, T0, T1),
         f"v_lshrrev_b32 {v(T2)}, 1, {v(vMemL)}",
         pv[4], ow20[2], f"v_subrev_u32 {v(T1)}, {s(sLo)}, {v(LACC)}",
         pv[5], f"global_store_dwordx2 {v(T2)}, {v(AV+2,2)}, {s(sKM,2)} offset:512 sc1", ow20[3],
         '@e4',
         f"v_cmp_lt_u32 vcc, {s(sRange)}, {v(T1)}",
         f"v_rcp_f32 {v(T0)}, {v(LACC)}",
         f"s_cbranch_vccnz {FB}", "s_nop 2"])
    A.label(BACK)
    seq([f"v_cndmask_b32 {v(OACC0+i)}, {v(OACC0+i)}, {v(OACC1+i)}, {s(sHi,2)}" for i in range(4)])
    seq([f"v_pk_mul_f32 {v(OACC0+i,2)}, {v(OACC0+i,2)}, {v(T0,2)} op_sel_hi:[1,0]" for i in (0, 2)])
    seq([cv(T2, OACC0, OACC0+1), cv(T3, OACC0+2, OACC0+3),
         f"ds_write_b64 {v(vOW)}, {v(T2,2)} offset:{L_O}", '@3',
         [f"v_mov_b64 {v(AQ+q,2)}, 0" for q in range(0, cfg.get('zs', 14), 2)], lg(0), "s_barrier"])
    def fallback():
        A.label(FB)
        seq(["s_nop 7",
             f"v_max3_f32 {v(T0)}, {v(SX)}, {v(SX+1)}, {v(SX+2)}", f"v_max3_f32 {v(T0)}, {v(T0)}, {v(SX+3)}, {v(SX+4)}",
             f"v_max3_f32 {v(T0)}, {v(T0)}, {v(SX+5)}, {v(SX+6)}", f"v_max3_f32 {v(T0)}, {v(T0)}, {v(SX+7)}, {v(PZ)}",
             f"v_max_f32 {v(T0)}, {v(T0)}, {v(PZ+1)}", f"v_mov_b32 {v(T1)}, {v(T0)}", "s_nop 1",
             f"v_permlane32_swap_b32 {v(T0)}, {v(T1)}", f"v_max_f32 {v(T0)}, {v(T0)}, {v(T1)}", f"v_mov_b32 {v(T1)}, {v(T0)}", "s_nop 1",
             f"v_permlane16_swap_b32 {v(T0)}, {v(T1)}", f"v_max_f32 {v(T0)}, {v(T0)}, {v(T1)}"])
        rs = [SX + i for i in range(8)] + [PZ, PZ + 1]
        seq([f"v_sub_f32 {v(r_)}, {v(r_)}, {v(T0)}" for r_ in rs])
        seq([ex(r_, r_) for r_ in rs])
        seq([cv(PX+i, SX+2*i, SX+2*i+1) for i in range(4)] + [cv(PM, PZ, PZ+1), cv(PM+3, PZ, PZ+1), "s_nop 1"])
        seq([pv[0], pv[2], pv[1], pv[3], pv[4], pv[5], "s_nop 7", f"v_rcp_f32 {v(T0)}, {v(LACC)}", f"s_branch {BACK}"])
    OA = VX
    PA = [AQ + 4 * i for i in range(6)] + [WIN, WIN + 4]
    os_ = lambda p, kb, hf: SM(PA[2*p+hf], OA+4*kb, frag('O', (p, kb), hf))
    t = [post(PA[T], T0 + T % 4) for T in range(8)]
    tg = lambda T: f"v_and_or_b32 {v(T0+T%4)}, {v(T0+T%4)}, -2, {s(sTag)}"
    st = lambda p: f"global_store_dwordx2 {v(vInbW)}, {v(T0+2*(p%2),2)}, {s(sINBw,2)} offset:{2048*p-4096}{sc}"
    pk = lambda T: [f"v_pk_add_f32 {v(PA[T],2)}, {v(PA[T],2)}, {v(PA[T]+2,2)}", t[T][2]]
    seq(['@f1', f"ds_read_b128 {v(OA,4)}, {v(vL16)} offset:{L_O}", f"ds_read_b128 {v(OA+4,4)}, {v(vL16)} offset:{L_O+1024}",
         ow21[0], ow21[1], [f"v_mov_b64 {v(AQ+q,2)}, 0" for q in range(cfg.get('zs', 14), 24, 2)], lg(3),
         os_(0,0,0), '@f2', lg(2), os_(0,1,0), ow21[2], os_(0,0,1), ow21[3], os_(0,1,1), ow30[0], t[0][0],
         os_(1,0,0), ow30[1], t[0][1], t[0][2], os_(1,1,0), ow31[0], tg(0), t[1][0], os_(1,0,1), zread(PA[6]), t[1][1], t[1][2], os_(1,1,1), st(0), ow31[1], t[2][0],
         os_(2,0,0), '@f3', zread(PA[7]), t[2][1], t[2][2], lg(8), os_(2,1,0), ow31[2], tg(2), t[3][0], os_(2,0,1), ow31[3], t[3][1], t[3][2], lg(8), os_(2,1,1), st(1), lg(3), t[4][0],
         os_(3,0,0), t[4][1], t[4][2], os_(3,1,0), lg(2), tg(4), t[5][0], os_(3,0,1), lg(0), t[5][1], t[5][2],
         os_(3,1,1), '@f4', st(2), t[6], tg(6), "s_nop 2", pk(7), st(3), '@4'])
    if prof and 'old' in prof:
        A("s_waitcnt vmcnt(5)"); stamp('old')
    if prof and 'old2' in prof:
        A("s_waitcnt vmcnt(4)"); stamp('old2')
    if prof and 'ack' in prof:
        A("s_waitcnt vmcnt(0)"); stamp('ack')
    SEL, RA = VX, VX + 4
    P1 = cfg.get('p1', [[60, 200], [120, 260], [180, 320], [240, 380]])
    def cost(x):
        if x.startswith('ds_read_b128'): return 12
        return 4
    def sched(times, chores, emit, t, nm=''):
        chores = list(chores)
        for tt in times:
            while chores and t + cost(chores[0]) <= tt:
                x = chores.pop(0); seq([x]); t += cost(x)
            if tt - t >= 4:
                nops((tt - t) // 4); t = tt
            if tt == times[0]: stamp(nm)
            emit(); t += 12
        seq(chores)
        stamp(nm + 'z')
    A(f"s_cmp_lt_u32 {s(sW)}, 2")
    A(f"s_cbranch_scc0 T_h2_{tag}")
    A(f"s_cmp_eq_u32 {s(sW)}, 1")
    A(f"s_cbranch_scc1 T_h1_{tag}")
    for w in range(4):
        if w == 1: A.label(f"T_h1_{tag}")
        if w == 2:
            A.label(f"T_h2_{tag}")
            A(f"s_cmp_eq_u32 {s(sW)}, 3")
            A(f"s_cbranch_scc1 T_h3_{tag}")
        if w == 3: A.label(f"T_h3_{tag}")
        t0 = [16, 40, 40, 64][w]
        qw = win_reads([('Q', 0), ('Q', 1), ('Q', 2)])
        za = [f"v_mov_b64 {v(AQ+q,2)}, 0" for q in range(0, 24, 2)]
        sc_ = [f"s_add_u32 {s(sStep)}, {s(sStep)}, 1", f"s_add_u32 {s(sSlot)}, {s(sSlot)}, 0x2000", f"s_and_b32 {s(sSlot)}, {s(sSlot)}, 0x6000",
               f"s_add_u32 {s(sKV)}, {s(sKV)}, 0x4000", f"s_addc_u32 {s(sKV+1)}, {s(sKV+1)}, 0",
               f"s_add_u32 {s(sKV2)}, {s(sKV2)}, 0x4000", f"s_addc_u32 {s(sKV2+1)}, {s(sKV2+1)}, 0",
               f"s_add_u32 {s(sKM)}, {s(sKM)}, 0x1000", f"s_addc_u32 {s(sKM+1)}, {s(sKM+1)}, 0",
               f"s_mov_b32 {s(sSpin)}, {SPIN_MAX}"]
        c1 = [f"ds_read_b128 {v(SEL,4)}, {v(vL16)} offset:{L_SEL}", f"ds_read_b32 {v(PZ)}, {v(vL16)} offset:{L_MW}"] + za[:6] + sc_[:5] + za[6:] + sc_[5:]
        c1 += [lg(0), f"v_add_u32 {v(T3)}, {s(sSlot)}, {v(PZ)}", f"v_add_u32 {v(vMR)}, {s(sSlot)}, {v(vMemL)}"]
        if prof: c1 += [f"s_mov_b32 {s(sCnt1)}, {SPIN_MAX}", '@h1a']
        nq = cfg.get('nq', [2, 2, 2, 2])[w]
        ps = pre_step()
        c1 += qw[:2] + ps[:5] + qw[2:nq] + ps[5:]
        D1, D2 = len(P1[w]), len(P2[w])
        sched(P1[w], c1, lambda: loads(IB, vMemL, sINBr), t0, 'i1')
        RP, ROK, HP = [f"T_{x}{w}_{tag}" for x in ('rp', 'rok', 'hp')]
        A.label(RP)
        for u in range(cfg.get('unr', 3)):
            A(f"s_waitcnt vmcnt({2*(D1-1)+1})")
            A(f"v_bitop3_b32 {v(T0)}, {v(IB)}, {v(IB+2)}, {s(sTag)} bitop3:0x7e")
            A(f"v_mfma_f32_16x16x32_bf16 {v(RA,4)}, {v(SEL,4)}, {v(IB,4)}, 0")
            A(f"s_waitcnt vmcnt({2*(D1-1)})")
            if u == 0: stamp('w1')
            A(f"v_bitop3_b32 {v(T1)}, {v(IB+4)}, {v(IB+6)}, {s(sTag)} bitop3:0x7e")
            A(f"v_mfma_f32_16x16x32_bf16 {v(RA,4)}, {v(SEL,4)}, {v(IB+4,4)}, {v(RA,4)}")
            A(f"v_bitop3_b32 {v(T0)}, {v(T0)}, {v(T1)}, 1 bitop3:0xa8")
            A(f"v_cmp_ne_u32 vcc, 0, {v(T0)}")
            A(f"s_cbranch_vccz {ROK}")
            A("s_mov_b64 exec, vcc")
            loads(IB, vMemL, sINBr)
            A("s_mov_b64 exec, -1")
            if prof: A(f"s_sub_u32 {s(sCnt1)}, {s(sCnt1)}, 1")
        A(f"s_sub_u32 {s(sSpin)}, {s(sSpin)}, 1")
        A(f"s_cbranch_scc0 {RP}")
        A.label(ROK)
        if cfg.get('rnop', 1) >= 0: A(f"s_nop {cfg.get('rnop', 1)}")
        dpp = lambda r_, n: f"v_add_f32_dpp {v(r_)}, {v(r_)}, {v(r_)} row_ror:{n} row_mask:0xf bank_mask:0xf"
        seq([dpp(RA, 4), dpp(RA+1, 4), "s_nop 0", dpp(RA, 8), dpp(RA+1, 8),
             f"v_cvt_pk_bf16_f32 {v(RA+2)}, {v(RA)}, {v(RA+1)}"])
        A(f"global_store_dword {v(T3)}, {v(RA+2)}, {s(sMEMw,2)}{sc}")
        stamp(5)
        t2 = 8
        A(f"s_xor_b32 {s(sTag)}, {s(sTag)}, 1")
        if use_flags:
            A(f"v_cmp_ne_u32 {s(sRdy,2)}, 0, {v(vDum)}")
            A(f"s_nop 3")
            wait_flag(A, 1); t2 += 60
        if prof:
            A(f"s_waitcnt lgkmcnt(0)")
            for k in range(6): A(f"v_writelane_b32 {v(T0)}, {s(sTM+2*k)}, {k}")
            A(f"v_writelane_b32 {v(T0)}, {s(sCnt1)}, 6")
            A(f"v_writelane_b32 {v(T0)}, {s(sCnt2)}, 7")
            A(f"s_mov_b64 exec, 0xff")
            A(f"global_store_dword {v(PZ)}, {v(T0)}, {s(sPROF,2)}")
            A(f"s_mov_b64 exec, -1")
            add64(A, sPROF, sPROF, 32)
            A(f"s_mov_b32 {s(sCnt2)}, {SPIN_MAX}")
            t2 += 60
        elif TRACE['on']:
            trace(A, 8, T0, sStep); t2 += 60
        sched(P2[w], [f"s_mov_b32 {s(sSpin)}, {SPIN_MAX}"] + qw[nq:] + [lg(0)], lambda: loads(MA, vMR, sMEMr), t2, 'i2')
        if w in FT:
            assert D2 == len(P2[3])
            A(f"s_branch {HPF}")
            continue
        A.label(HP)
        for u in range(cfg.get('unr', 3)):
            check2(D2)
            A(f"s_cbranch_vccz {ENTRY}")
            A("s_mov_b64 exec, vcc")
            loads(MA, vMR, sMEMr)
            A("s_mov_b64 exec, -1")
            if prof: A(f"s_sub_u32 {s(sCnt2)}, {s(sCnt2)}, 1")
        A(f"s_sub_u32 {s(sSpin)}, {s(sSpin)}, 1")
        A(f"s_cbranch_scc0 {HP}")
        A(f"s_branch {ENTRY}")
    fallback()

def team(A, use_flags=False, prof=False, force_slow=False, cfg={}, chain=None):
    if prof: prof = [str(x) if str(x) in ('0','1','2','3','4') else x for x in prof]
    team_prologue(A, use_flags, prof)
    end = "T_end"
    if not force_slow:
        A(f"s_cmp_lg_u64 {s(sMode,2)}, 0")
        A(f"s_cbranch_scc1 T_entry_F")
    A(f"s_branch T_entry_S")
    if not force_slow:
        team_loop(A, True, use_flags, prof, end, cfg)
    team_loop(A, False, use_flags, prof, end, cfg)
    A.label(end)
    A(f"v_lshrrev_b32 {v(PZ)}, 1, {v(vMemL)}")
    for j in range(2, 8):
        A(f"s_waitcnt lgkmcnt({7-j})")
        for M, acc in (('K', AK), ('V', AV)):
            for t in range(2): A(SM(acc+4*t, MA+4*j, frag(M, j, t)))
    A("s_nop 1")
    for n, acc in enumerate((AK, AK + 4, AV, AV + 4)):
        A(f"v_add_f32 {v(acc)}, {v(acc)}, {v(acc+2)}"); A(f"v_add_f32 {v(acc+1)}, {v(acc+1)}, {v(acc+3)}")
        A(f"v_cvt_pk_bf16_f32 {v(T0+n)}, {v(acc)}, {v(acc+1)}")
        if n % 2: A(f"global_store_dwordx2 {v(PZ)}, {v(T0+n-1,2)}, {s(sKM,2)} offset:{256*(n-1)} sc1")
    A(f"s_waitcnt vmcnt(0)")
    A(f"v_mov_b32 {v(PZ)}, 0")
    A(f"v_mov_b32 {v(PZ+1)}, 64")
    A(f"global_store_dword {v(PZ)}, {v(PZ+1)}, {s(sPROG,2)} sc1")
    trace(A, 5, PZ); dbgt(A, 14, PZ)
    if chain:
        A(f"s_lshl_b32 {s(sTmp)}, {s(sW)}, 6")
        A(f"v_lshrrev_b32 v0, 4, {v(vL16)}")
        A(f"v_add_u32 v0, {s(sTmp)}, v0")
        A(f"s_waitcnt vmcnt(0) lgkmcnt(0)")
        A(f"s_barrier")
        A(f"s_branch {chain}")
    else:
        A(f"s_endpgm")
```

```python
from common import *
L_XN, L_QK, L_KMS, L_BIAS = 0, 32768, 65536, 69632
vL16, vWL, vKst, vVst, vKmR, vVmL = 0, 1, 2, 3, 4, 5
T = 8
XF, QA, KA_, VA, VPC, VPN, KF = 16, 48, 64, 80, 96, 104, 112
WQ, WK, WV = 256, 384, 128
sW, sH, sCur, sNxt, sTmp, sTmp2, sSpin, sC, sBuf = 3, 4, 5, 6, 7, 8, 9, 10, 11
sWS, sXN, sKV, sFKV, sPROG, sKM, sO, sA, sB = 12, 14, 16, 18, 20, 22, 24, 26, 28
sFO = 50
SRD, sPTR, sLB, sOff, sCol, sStride, sWM0 = 32, 36, 44, 45, 46, 47, 48

def worker(A, NW, use_flags, osig=False, chain=False):
    L, tb = 16, 17
    ln = Lane(A, L, tb)
    A(f"v_lshrrev_b32 {v(T)}, 6, v0")
    A(f"s_load_dwordx4 {s(sPTR,4)}, s[0:1], {KA['Wq']}")
    A(f"s_load_dwordx2 {s(sPTR+4,2)}, s[0:1], {KA['Wv']}")
    A(f"s_load_dwordx2 {s(sWS,2)}, s[0:1], {KA['ws']}")
    A(f"v_readfirstlane_b32 {s(sW)}, {v(T)}")
    A(f"v_and_b32 {v(L)}, 63, v0")
    A(f"v_lshlrev_b32 {v(vL16)}, 4, {v(L)}")
    A(f"s_lshl_b32 {s(sLB)}, {s(sW)}, 15")
    A(f"s_mov_b32 {s(sStride)}, 8192")
    vSrc, vTr = 18, 19
    weight_lane_consts(A, ln, vSrc, vTr, sLB, sStride, 20)
    A(f"s_lshl_b32 {s(sTmp)}, {s(sW)}, 11")
    A(f"v_add_u32 {v(vWL)}, {s(sTmp)}, {v(vL16)}")
    ln.acc(vKst, [(3, 1, 12), (4, 1, 7), (0, 3, 4), (5, 1, 8)])
    A(f"s_lshr_b32 {s(sTmp)}, {s(sW)}, 1"); A(f"s_lshl_b32 {s(sTmp)}, {s(sTmp)}, 11")
    A(f"s_and_b32 {s(sTmp2)}, {s(sW)}, 1"); A(f"s_lshl_b32 {s(sTmp2)}, {s(sTmp2)}, 9")
    A(f"s_add_u32 {s(sTmp)}, {s(sTmp)}, {s(sTmp2)}")
    A(f"v_add_u32 {v(vKst)}, {s(sTmp)}, {v(vKst)}")
    ln.acc(vVst, [(4, 1, 10), (2, 1, 7), (3, 1, 6), (0, 2, 4), (5, 1, 8)])
    A(f"s_lshl_b32 {s(sTmp)}, {s(sW)}, 11"); A(f"s_add_u32 {s(sTmp)}, {s(sTmp)}, 8192")
    A(f"v_add_u32 {v(vVst)}, {s(sTmp)}, {v(vVst)}")
    ln.acc(vKmR, [(0, 2, 7), (5, 1, 6), (2, 2, 3)])
    ln.acc(vVmL, [(5, 1, 7), (2, 1, 6), (3, 1, 5), (0, 2, 3), (4, 1, 2)])
    A(f"s_lshl_b32 {s(sTmp)}, {s(sW)}, 10"); A(f"s_add_u32 {s(sTmp)}, {s(sTmp)}, 512")
    A(f"v_add_u32 {v(vVmL)}, {s(sTmp)}, {v(vVmL)}")
    A(f"s_mov_b32 {s(sC)}, 0x3e0293ee")
    A(f"s_waitcnt lgkmcnt(0)")
    def base(dst, terms, imm):
        A(f"s_mov_b32 {s(sTmp2)}, {imm}")
        for r_, sh in terms:
            A(f"s_lshl_b32 {s(sTmp)}, {s(r_)}, {sh}")
            A(f"s_add_u32 {s(sTmp2)}, {s(sTmp2)}, {s(sTmp)}")
        add64(A, dst, sWS, s(sTmp2))
    base(sXN, [(sW, 13)], WS_XN)
    base(sKV, [(sH, 20)], WS_KV)
    base(sFKV, [(sH, 8)], FL_KV)
    base(sPROG, [(sH, 8)], FL_PROG)
    base(sKM, [(sH, 18)], WS_KM)
    base(sO, [(sH, 13)], WS_O)
    A(f"s_lshr_b32 {s(sOff)}, {s(sH)}, 2"); A(f"s_and_b32 {s(sCol)}, {s(sH)}, 3")
    base(sFO, [(sOff, 7), (sCol, 2)], FL_SEG + FO_O)
    A(f"s_mov_b32 {s(SRD+2)}, 0x400000"); A(f"s_mov_b32 {s(SRD+3)}, 0x20000")
    A(f"s_lshl_b32 {s(sCol)}, {s(sH)}, 8"); A(f"s_lshl_b32 {s(sTmp)}, {s(sW)}, 6"); A(f"s_add_u32 {s(sCol)}, {s(sCol)}, {s(sTmp)}")
    units = []
    for mi, dst in ((1, WK), (2, WV), (0, WQ)):
        def setup(mi=mi):
            A(f"s_mov_b32 {s(SRD)}, {s(sPTR+2*mi)}"); A(f"s_and_b32 {s(SRD+1)}, {s(sPTR+2*mi+1)}, 0xffff")
        for u in range(8):
            units.append((setup if u == 0 else None, (lambda m, u=u: (sCol, (64*u + 16*m) * 8192)), dst + 16*u, 4))
    load_weight_units(A, units, vSrc, vTr, sLB, SRD, sOff, sTmp)
    A(f"s_barrier")
    trace(A, 0, T, first=True); trace(A, 1, T)
    A(f"v_and_b32 {v(20)}, 31, {v(L)}")
    A(f"v_lshrrev_b32 {v(21)}, 5, {v(L)}")
    A(f"v_lshlrev_b32 {v(21)}, 2, {v(21)}")
    A(f"v_sub_u32 {v(20)}, {v(20)}, {v(21)}")
    A(f"v_mov_b32 {v(21)}, 0xf149f2ca")
    for j in range(4):
        for i in range(4):
            A(f"v_cmp_gt_i32 vcc, {8*j+i}, {v(20)}")
            A(f"s_nop 1")
            A(f"v_cndmask_b32 {v(24+i)}, 0, {v(21)}, vcc")
        A(f"v_add_u32 {v(22)}, {L_BIAS + 1024*j}, {v(vL16)}")
        A(f"ds_write_b128 {v(22)}, {v(24,4)}")
    A(f"s_lshl_b32 {s(sWM0)}, {s(sW)}, 13")
    def xn_dma(sSeg):
        A(f"s_lshl_b32 {s(sTmp)}, {s(sSeg)}, 15")
        add64(A, sA, sXN, s(sTmp))
        add64(A, sB, sA, 4096)
        for hfi, b in enumerate((sA, sB)):
            A(f"s_add_u32 m0, {s(sWM0)}, {L_XN + 4096*hfi}")
            A(f"s_nop 0")
            for q in range(4):
                A(f"global_load_lds_dwordx4 {v(vL16)}, {s(b,2)} offset:{1024*q} sc1")
    if use_flags: wait_init(A, T, sA, sSpin)
    xn_dma(sNxt)
    A(f"s_mov_b32 {s(sCur)}, -1")
    A(f"s_mov_b32 {s(sBuf)}, {L_QK}")
    LOOP, NOG, NOA, END = "W_loop", "W_nogemm", "W_noatt", "W_end"
    A.label(LOOP)
    A(f"s_waitcnt vmcnt(0) lgkmcnt(0)")
    A(f"s_barrier")
    A(f"s_cmp_ge_u32 {s(sNxt)}, 64")
    A(f"s_cbranch_scc1 {NOG}")
    rd = lambda k: f"ds_read_b128 {v(XF+4*(k%8),4)}, {v(vL16)} offset:{L_XN+1024*k}"
    for k in range(6): A(rd(k))
    for k in range(32):
        x = v(XF + 4 * (k % 8), 4)
        A(f"s_waitcnt lgkmcnt({min(5, 31-k)})")
        A(f"v_mfma_f32_32x32x16_bf16 {v(KA_,16)}, {R(WK+4*k,4)}, {x}, {v(KA_,16) if k else 0}")
        if k + 6 < 32: A(rd(k + 6))
        A(f"v_mfma_f32_32x32x16_bf16 {v(VA,16)}, {x}, {R(WV+4*k,4)}, {v(VA,16) if k else 0}")
        A(f"v_mfma_f32_32x32x16_bf16 {v(QA,16)}, {R(WQ+4*k,4)}, {x}, {v(QA,16) if k else 0}")
    A(f"s_lshl_b32 {s(sTmp)}, {s(sNxt)}, 14")
    add64(A, sA, sKV, s(sTmp))
    A(f"v_add_u32 {v(T)}, {s(sBuf)}, {v(vWL)}")
    for i in range(8): A(f"v_cvt_pk_bf16_f32 {v(XF+i)}, {v(KA_+2*i)}, {v(KA_+2*i+1)}")
    A(f"global_store_dwordx4 {v(vKst)}, {v(XF,4)}, {s(sA,2)} sc1")
    A(f"global_store_dwordx4 {v(vKst)}, {v(XF+4,4)}, {s(sA,2)} offset:1024 sc1")
    A(f"ds_write_b128 {v(T)}, {v(XF,4)} offset:8192")
    A(f"ds_write_b128 {v(T)}, {v(XF+4,4)} offset:9216")
    for i in range(8): A(f"v_cvt_pk_bf16_f32 {v(VPN+i)}, {v(VA+2*i)}, {v(VA+2*i+1)}")
    A(f"global_store_dwordx4 {v(vVst)}, {v(VPN,4)}, {s(sA,2)} sc1")
    A(f"global_store_dwordx4 {v(vVst)}, {v(VPN+4,4)}, {s(sA,2)} offset:512 sc1")
    for i in range(8): A(f"v_cvt_pk_bf16_f32 {v(XF+8+i)}, {v(QA+2*i)}, {v(QA+2*i+1)}")
    A(f"ds_write_b128 {v(T)}, {v(XF+8,4)}")
    A(f"ds_write_b128 {v(T)}, {v(XF+12,4)} offset:1024")
    A(f"s_waitcnt vmcnt(0) lgkmcnt(0)")
    A(f"s_barrier")
    if use_flags:
        nf = A.newlabel('W_nf')
        A(f"s_cmp_lg_u32 {s(sW)}, 0"); A(f"s_cbranch_scc1 {nf}")
        A(f"s_lshl_b32 {s(sTmp)}, {s(sNxt)}, 2")
        A(f"v_mov_b32 {v(T)}, {s(sTmp)}"); A(f"v_mov_b32 {v(T+1)}, 1")
        A(f"global_store_dword {v(T)}, {v(T+1)}, {s(sFKV,2)} sc1")
        A.label(nf)
    trace(A, 80, T, sNxt)
    nx = A.newlabel('W_nx')
    A(f"s_add_u32 {s(sTmp2)}, {s(sNxt)}, {NW}")
    A(f"s_cmp_ge_u32 {s(sTmp2)}, 64"); A(f"s_cbranch_scc1 {nx}")
    xn_dma(sTmp2)
    A.label(nx)
    A.label(NOG)
    A(f"s_xor_b32 {s(sBuf)}, {s(sBuf)}, 16384")
    A(f"s_cmp_lt_i32 {s(sCur)}, 0")
    A(f"s_cbranch_scc1 {NOA}")
    SA, MA_, MB_ = QA, KA_, VA
    A(f"v_add_u32 {v(T)}, {s(sBuf)}, {v(vL16)}")
    A(f"v_add_u32 {v(T+1)}, {L_BIAS}, {v(vL16)}")
    for j in range(4): A(f"ds_read_b128 {v(SA+4*j,4)}, {v(T+1)} offset:{1024*j}")
    for k in range(8): A(f"ds_read_b128 {v(XF+4*k,4)}, {v(T)} offset:{1024*k}")
    A(f"s_waitcnt lgkmcnt(8)")
    for k in range(8): A(f"ds_read_b128 {v(MA_+4*k,4)}, {v(T)} offset:{8192+1024*k}")
    for k in range(8):
        A(f"s_waitcnt lgkmcnt({7-k})")
        A(f"v_mfma_f32_32x32x16_bf16 {v(SA,16)}, {v(MA_+4*k,4)}, {v(XF+4*k,4)}, {v(SA,16)}")
    if use_flags:
        pw, pd = A.newlabel('W_pw'), A.newlabel('W_pd')
        A(f"s_mov_b32 {s(sSpin)}, {SPIN_MAX*8}")
        A(f"v_mov_b32 {v(T)}, 0")
        A.label(pw)
        A(f"global_load_dwordx4 {v(T+4,4)}, {v(T)}, {s(sPROG,2)} sc1")
        A(f"s_waitcnt vmcnt(0)")
        A(f"v_min3_u32 {v(T+4)}, {v(T+4)}, {v(T+5)}, {v(T+6)}")
        A(f"v_min_u32 {v(T+4)}, {v(T+4)}, {v(T+7)}")
        A(f"v_cmp_lt_u32 vcc, {s(sCur)}, {v(T+4)}")
        A(f"s_cbranch_vccnz {pd}")
        A(f"s_sleep 1")
        A(f"s_sub_u32 {s(sSpin)}, {s(sSpin)}, 1")
        A(f"s_cbranch_scc0 {pw}")
        A.label(pd)
        tp(A, 0)
    A(f"s_lshl_b32 {s(sTmp)}, {s(sCur)}, 18")
    add64(A, sB, sO, s(sTmp))
    A(f"s_lshl_b32 {s(sTmp)}, {s(sCur)}, 12")
    add64(A, sA, sKM, s(sTmp))
    A(f"s_lshr_b32 {s(sTmp)}, {s(sWM0)}, 3")
    A(f"s_add_u32 m0, {s(sTmp)}, {L_KMS}")
    A(f"v_add_u32 {v(T)}, {s(sTmp)}, {v(vL16)}")
    VM = T + 4
    A(f"global_load_lds_dwordx4 {v(T)}, {s(sA,2)} sc1")
    A(f"global_load_dword {v(VM)}, {v(vVmL)}, {s(sA,2)} sc1")
    A(f"global_load_dword {v(VM+1)}, {v(vVmL)}, {s(sA,2)} offset:256 sc1")
    A(f"v_mov_b64 {v(VM+2,2)}, 0")
    A(f"v_add_u32 {v(T+1)}, {L_KMS}, {v(vKmR)}")
    A(f"v_max3_f32 {v(T+2)}, {v(SA)}, {v(SA+1)}, {v(SA+2)}")
    for i in range(3, 15, 2): A(f"v_max3_f32 {v(T+2)}, {v(T+2)}, {v(SA+i)}, {v(SA+i+1)}")
    A(f"v_max_f32 {v(T+2)}, {v(T+2)}, {v(SA+15)}")
    A(f"s_waitcnt vmcnt(0)")
    A(f"s_barrier")
    tp(A, 1)
    for w_ in range(4):
        A(f"ds_read_b64_tr_b16 {v(KF+4*w_,2)}, {v(T+1)} offset:{1024*w_}")
        A(f"ds_read_b64_tr_b16 {v(KF+4*w_+2,2)}, {v(T+1)} offset:{1024*w_+32}")
    for w_ in range(4):
        A(f"s_waitcnt lgkmcnt({6-2*w_})")
        A(f"v_mfma_f32_32x32x16_bf16 {v(MA_,16)}, {v(KF+4*w_,4)}, {v(XF+8*w_,4)}, {v(MA_,16) if w_ else 0}")
        A(f"v_mfma_f32_32x32x16_bf16 {v(MB_,16)}, {v(KF+4*w_,4)}, {v(XF+8*w_+4,4)}, {v(MB_,16) if w_ else 0}")
    tp(A, 2)
    A(f"s_nop 11")
    SM = KF
    for q, (ra, rb) in enumerate(((0, 2), (1, 3), (4, 6), (5, 7))):
        A(f"v_add_f32 {v(SM+q)}, {v(MA_+ra)}, {v(MB_+rb)}")
    A(f"v_max3_f32 {v(T+2)}, {v(T+2)}, {v(SM)}, {v(SM+1)}")
    A(f"v_max3_f32 {v(T+2)}, {v(T+2)}, {v(SM+2)}, {v(SM+3)}")
    A(f"v_mov_b32 {v(T+3)}, {v(T+2)}")
    A(f"s_nop 1")
    A(f"v_permlane32_swap_b32 {v(T+2)}, {v(T+3)}")
    A(f"v_max_f32 {v(T+2)}, {v(T+2)}, {v(T+3)}")
    A(f"v_mul_f32 {v(T+2)}, {s(sC)}, {v(T+2)}")
    regs = [SA + i for i in range(16)] + [SM + i for i in range(4)]
    for r_ in regs: A(f"v_fma_f32 {v(r_)}, {v(r_)}, {s(sC)}, -{v(T+2)}")
    for r_ in regs: A(f"v_exp_f32 {v(r_)}, {v(r_)}")
    P, PMm, OA_ = XF, XF + 8, MA_
    for i in range(8): A(f"v_cvt_pk_bf16_f32 {v(P+i)}, {v(SA+2*i)}, {v(SA+2*i+1)}")
    A(f"v_cvt_pk_bf16_f32 {v(PMm)}, {v(SM)}, {v(SM+1)}")
    A(f"v_cvt_pk_bf16_f32 {v(PMm+1)}, {v(SM+2)}, {v(SM+3)}")
    A(f"v_mov_b64 {v(PMm+2,2)}, 0")
    A(f"v_mfma_f32_32x32x16_bf16 {v(OA_,16)}, {v(VPC,4)}, {v(P,4)}, 0")
    A(f"v_add_f32 {v(T+2)}, {v(regs[0])}, {v(regs[1])}")
    A(f"v_add_f32 {v(T+3)}, {v(regs[2])}, {v(regs[3])}")
    A(f"v_mfma_f32_32x32x16_bf16 {v(OA_,16)}, {v(VPC+4,4)}, {v(P+4,4)}, {v(OA_,16)}")
    for i in range(4, 12): A(f"v_add_f32 {v(T+2+i%2)}, {v(T+2+i%2)}, {v(regs[i])}")
    A(f"v_mfma_f32_32x32x16_bf16 {v(OA_,16)}, {v(VM,4)}, {v(PMm,4)}, {v(OA_,16)}")
    for i in range(12, 20): A(f"v_add_f32 {v(T+2+i%2)}, {v(T+2+i%2)}, {v(regs[i])}")
    A(f"v_add_f32 {v(T+2)}, {v(T+2)}, {v(T+3)}")
    A(f"v_mov_b32 {v(T+3)}, {v(T+2)}")
    A(f"s_nop 1")
    A(f"v_permlane32_swap_b32 {v(T+2)}, {v(T+3)}")
    A(f"v_add_f32 {v(T+2)}, {v(T+2)}, {v(T+3)}")
    A(f"v_rcp_f32 {v(T+2)}, {v(T+2)}")
    A(f"s_nop 0")
    for i in range(16): A(f"v_mul_f32 {v(OA_+i)}, {v(OA_+i)}, {v(T+2)}")
    for i in range(8): A(f"v_cvt_pk_bf16_f32 {v(P+i)}, {v(OA_+2*i)}, {v(OA_+2*i+1)}")
    A(f"global_store_dwordx4 {v(vWL)}, {v(P,4)}, {s(sB,2)} sc1")
    A(f"global_store_dwordx4 {v(vWL)}, {v(P+4,4)}, {s(sB,2)} offset:1024 sc1")
    if osig:
        ns = A.newlabel('W_ns')
        tp(A, 3)
        A(f"s_mul_i32 {s(sTmp)}, {s(sCur)}, {FROW}")
        A(f"v_mov_b32 {v(T)}, {s(sTmp)}"); A(f"v_mov_b32 {v(T+1)}, 1")
        A(f"s_waitcnt vmcnt(0)")
        A(f"s_barrier")
        A(f"s_cmp_lg_u32 {s(sW)}, 0"); A(f"s_cbranch_scc1 {ns}")
        A(f"global_store_dword {v(T)}, {v(T+1)}, {s(sFO,2)} sc1")
        A.label(ns)
        tp(A, 4)
        trace(A, 8, T, sCur)
        tdump(A, 5, T)
    A.label(NOA)
    for i in range(0, 8, 2): A(f"v_mov_b64 {v(VPC+i,2)}, {v(VPN+i,2)}")
    A(f"s_mov_b32 {s(sCur)}, {s(sNxt)}")
    A(f"s_add_u32 {s(sNxt)}, {s(sNxt)}, {NW}")
    A(f"s_cmp_lt_u32 {s(sCur)}, 64")
    A(f"s_cbranch_scc1 {LOOP}")
    if chain:
        A(f"s_lshl_b32 {s(sTmp)}, {s(sW)}, 6")
        A(f"v_lshrrev_b32 v0, 4, {v(vL16)}")
        A(f"v_add_u32 v0, {s(sTmp)}, v0")
        A(f"s_waitcnt vmcnt(0) lgkmcnt(0)")
        A(f"s_barrier")
        A(f"s_branch {chain}")
    else:
        A(f"s_endpgm")
```

```python
import sys
from common import *
from gen import build
def mk(tests):
    A = Asm()
    A("s_cmp_lg_u32 s2, 0"); A("s_cbranch_scc1 K_exit")
    A("s_load_dwordx2 s[4:5], s[0:1], 112")
    A("v_and_b32 v1, 63, v0"); A("v_lshlrev_b32 v1, 4, v1")
    A("v_lshrrev_b32 v2, 6, v0"); A("v_lshlrev_b32 v3, 11, v2"); A("v_add_u32 v3, v3, v1")
    A("v_lshlrev_b32 v2, 8, v2")
    A("v_mov_b32 v4, 0x44444444"); A("v_lshrrev_b32 v6, 1, v1")
    for i in range(8, 256): A(f"v_mov_b32 v{i}, 0")
    for i in range(256): A(f"v_accvgpr_write_b32 a{i}, 0")
    A("s_waitcnt lgkmcnt(0)")
    for k, (name, body) in enumerate(tests):
        A("s_barrier")
        A("s_mov_b32 s10, 20")
        A("s_nop 15")
        A.label(f"U_{k}")
        A("s_cmp_eq_u32 s10, 16"); A(f"s_cbranch_scc0 U_{k}_a")
        A("s_memtime s[12:13]"); A("s_waitcnt lgkmcnt(0)"); A("s_barrier")
        A.label(f"U_{k}_a")
        body(A)
        A("s_sub_u32 s10, s10, 1"); A("s_cmp_lg_u32 s10, 0"); A(f"s_cbranch_scc1 U_{k}")
        A("s_memtime s[14:15]"); A("s_waitcnt lgkmcnt(0) vmcnt(0)")
        A("s_sub_u32 s14, s14, s12")
        A("s_nop 15")
        A("v_mov_b32 v5, s14")
        A(f"global_store_dword v2, v5, s[4:5] offset:{4*k}")
        A("s_waitcnt vmcnt(0)")
    A.label("K_exit"); A("s_endpgm")
    return build([("ub_kernel", A, 512, 96, 256)], [("ub_kernel", 8, 256, 163840)])

def sm(acc, ar, b): return f"v_smfmac_f32_16x16x64_bf16 {v(acc,4)}, {v(ar,4)}, {b}, v4"
def t_empty(A): pass
def t_smA(A):
    for i in range(32): A(sm(96+4*(i%2), 16+4*((i//2)%8), a(8*i, 8)))
def t_smV(A):
    for i in range(32): A(sm(96+4*(i%2), 16+4*((i//2)%8), v(128+8*(i%16), 8)))
def t_smA_v1(A):
    for i in range(32):
        A(sm(96+4*(i%2), 16+4*((i//2)%8), a(8*i, 8))); A(f"v_add_f32 v{60+i%8}, v70, v71")
def t_smA_v2(A):
    for i in range(32):
        A(sm(96+4*(i%2), 16+4*((i//2)%8), a(8*i, 8))); A(f"v_add_f32 v{60+i%8}, v70, v71"); A(f"v_add_f32 v{80+i%8}, v70, v71")
def t_smA_v3(A):
    for i in range(32):
        A(sm(96+4*(i%2), 16+4*((i//2)%8), a(8*i, 8))); A(f"v_add_f32 v{60+i%8}, v70, v71"); A(f"v_add_f32 v{80+i%8}, v70, v71"); A(f"v_add_f32 v{72+i%8}, v70, v71")
def t_smA_ds(A):
    for i in range(32):
        A(sm(96+4*(i%2), 16+4*((i//2)%8), a(8*i, 8))); A(f"ds_read_b128 {v(128+4*(i%16),4)}, v1 offset:{1024*(i%16)}")
    A("s_waitcnt lgkmcnt(0)")
def t_mf(A):
    for i in range(32): A(f"v_mfma_f32_16x16x32_bf16 {v(96+4*(i%2),4)}, {v(16+4*(i%8),4)}, {v(48+4*(i%8),4)}, {v(96+4*(i%2),4)}")
def t_bar(A):
    for i in range(8): A("s_barrier")
def t_trip(A):
    for i in range(4):
        A("ds_write_b64 v3, v[10:11]"); A("s_waitcnt lgkmcnt(0)"); A("s_barrier"); A("ds_read_b128 v[12:15], v1"); A("s_waitcnt lgkmcnt(0)")
def t_wr(A):
    for i in range(8):
        A("ds_write_b64 v3, v[10:11]"); A("s_waitcnt lgkmcnt(0)")
def t_wr128(A):
    for i in range(8):
        A("ds_write_b128 v3, v[12:15]"); A("s_waitcnt lgkmcnt(0)")
def t_rd(A):
    for i in range(8):
        A("ds_read_b128 v[12:15], v1"); A("s_waitcnt lgkmcnt(0)")
def t_rd8(A):
    for i in range(8): A(f"ds_read_b128 {v(128+4*i,4)}, v1 offset:{1024*i}")
    A("s_waitcnt lgkmcnt(0)")
def t_tr(A):
    for i in range(8):
        A("ds_read_b64_tr_b16 v[12:13], v1"); A("s_waitcnt lgkmcnt(0)")
def t_valu(A):
    for i in range(32): A(f"v_add_f32 v{60+i%8}, v70, v71")
def t_valud(A):
    for i in range(32): A(f"v_add_f32 v60, v60, v71")
def t_fma(A):
    for i in range(32): A(f"v_fma_f32 v{60+i%8}, v70, s10, -v71")
def t_exp(A):
    for i in range(32): A(f"v_exp_f32 v{60+i%8}, v70")
def t_perm(A):
    for i in range(32): A(f"v_permlane32_swap_b32 v{60+i%8}, v{80+i%8}")
def t_cvt(A):
    for i in range(32): A(f"v_cvt_pk_bf16_f32 v{60+i%8}, v70, v71")
def t_mov64(A):
    for i in range(32): A(f"v_mov_b64 v[{60+2*(i%8)}:{61+2*(i%8)}], 0")
def t_nop7(A):
    for i in range(8): A("s_nop 7")
def t_salu(A):
    for i in range(32): A(f"s_add_u32 s{20+i%8}, s30, s31")
def t_mfdep(A):
    for i in range(8):
        A(f"v_mfma_f32_16x16x32_bf16 v[96:99], v[16:19], v[48:51], 0"); A("s_nop 7"); A("v_add_f32 v16, v96, v97"); A("s_nop 1")
def t_memtime(A):
    for i in range(8):
        A("s_memtime s[20:21]"); A("s_waitcnt lgkmcnt(0)")
def t_pkadd(A):
    for i in range(32): A(f"v_pk_add_f32 v[{60+2*(i%8)}:{61+2*(i%8)}], v[80:81], v[82:83]")

def valu_n(n):
    def f(A):
        for i in range(n): A(f"v_add_f32 v{60+i%8}, v70, v71")
    f.__name__ = f"valu{n}"
    return f
def gap(nnop, nv, reps):
    def f(A):
        for r in range(reps):
            for i in range(nv): A(f"v_add_f32 v{60+i%8}, v70, v71")
            k = nnop
            while k > 0:
                A(f"s_nop {min(k,16)-1}"); k -= 16
    f.__name__ = f"gap_nop{nnop}_v{nv}_x{reps}"
    return f
def smv(n, k):
    def f(A):
        for i in range(n):
            A(sm(96+4*(i%2), 16+4*((i//2)%8), a(8*(i%32), 8)))
            for q in range(k): A(f"v_add_f32 v{60+(i*k+q)%16}, v90, v91")
    f.__name__ = f"sm{n}_v{k}"
    return f
def mv32(n, k):
    def f(A):
        for i in range(n):
            A(f"v_mfma_f32_32x32x16_bf16 {v(128+16*(i%2),16)}, {v(16+4*(i%8),4)}, {v(48,4)}, {v(128+16*(i%2),16)}")
            for q in range(k): A(f"v_add_f32 v{60+(i*k+q)%16}, v90, v91")
    f.__name__ = f"mf32_{n}_v{k}"
    return f

def seq(name, fn):
    fn.__name__ = name
    return fn
VA = lambda A, i: A(f"v_add_f32 v{60+i%16}, v90, v91")
EX = lambda A, i: A(f"v_exp_f32 v{60+i%16}, v90")
DS = lambda A, i: A(f"ds_read_b128 {v(128+4*(i%16),4)}, v1 offset:{1024*(i%16)}")
SA = lambda A, i: A(f"s_add_u32 s{20+i%8}, s30, s31")
SMi = lambda A, i: A(sm(96+4*(i%2), 16+4*((i//2)%8), a(8*(i%32), 8)))
MF = lambda A, i: A(f"v_mfma_f32_16x16x32_bf16 {v(96+4*(i%2),4)}, {v(16+4*(i%8),4)}, {v(48+4*(i%2),4)}, {v(96+4*(i%2),4)}")
PK = lambda A, i: A(f"v_pk_fma_f32 v[{60+2*(i%8)}:{61+2*(i%8)}], v[80:81], s[30:31], v[82:83] op_sel_hi:[1,1,0] neg_lo:[0,0,1] neg_hi:[0,0,1]")
WT = lambda A, i: A("s_waitcnt lgkmcnt(15)")
def pat(name, parts):
    def f(A):
        for n, fs in parts:
            for i in range(n):
                for k, g in enumerate(fs): g(A, i*len(fs)+k if g in (VA, EX, PK) else i)
        A("s_waitcnt lgkmcnt(0)")
    f.__name__ = name
    return f

ST4 = lambda A, i: A(f"global_store_dwordx4 v3, v[92:95], s[4:5] offset:1024")
ST2 = lambda A, i: A(f"global_store_dwordx2 v3, v[92:93], s[4:5] offset:1024")
ST1 = lambda A, i: A(f"global_store_dword v3, v92, s[4:5] offset:1024")
LD1 = lambda A, i: A(f"global_load_dword v110, v3, s[4:5] offset:1024 sc1", nochk=True)
LD4 = lambda A, i: A(f"global_load_dwordx4 v[112:115], v3, s[4:5] offset:1024 sc1", nochk=True)
DMA = lambda A, i: A(f"global_load_lds_dwordx4 v3, s[4:5] offset:1024 sc1")
NOP = lambda A, i: A("s_nop 0")
def pat2(name, op, every, n=64, lead=SMi):
    def f(A):
        A("s_mov_b32 m0, 0x4000")
        for i in range(n):
            lead(A, i)
            if i % every == 1: op(A, i)
        A("s_waitcnt vmcnt(0) lgkmcnt(0)")
    f.__name__ = name
    return f
N4 = lambda A, i: A("s_nop 3")
DPP = lambda A, i: A(f"v_add_f32_dpp v{60+i%8}, v90, v91 row_ror:4 row_mask:0xf bank_mask:0xf")

CV = lambda A, i: A(f"v_cvt_pk_bf16_f32 v{76+i%4}, v90, v91")
AO = lambda A, i: A(f"v_and_or_b32 v{76+i%4}, v90, -2, s30")
TR = lambda A, i: A(f"ds_read_b64_tr_b16 {v(128+2*(i%16),2)}, v6 offset:{512*(i%16)}")
M16 = lambda A, i: A(f"v_mfma_f32_16x16x16_bf16 {v(96+4*(i%2),4)}, {v(16+2*(i%8),2)}, {v(48+2*(i%2),2)}, {v(96+4*(i%2),4)}")
BAR = lambda A, i: A("s_barrier")
SMD = lambda A, i: A(sm(96+4*((i//2)%2), 16+4*(i%2), a(8*(i%32), 8)))
SMV = lambda A, i: A(sm(96+4*(i%2), 16+4*((i//2)%8), v(192+8*(i%8), 8)))
VD = lambda A, i: A(f"v_add_f32 v{104+(i%2)}, v{104+(i%2)}, v{106+(i%2)}")
AD2 = lambda A, i: (A(f"v_add_f32 v108, v108, v110"), A(f"v_cvt_pk_bf16_f32 v76, v109, v108"))
W0 = lambda A, i: A("s_waitcnt lgkmcnt(8)")

cnt = [0]
def tail(name, taken, nop, store=True, idle=True, parts='all'):
    def f(A):
        for r in range(8):
            if idle: A("s_nop 15"); A("s_nop 15")
            cnt[0] += 1; L = f"TL_{cnt[0]}"
            if parts in ('all', 'front'):
                A("v_bitop3_b32 v60, v20, v22, s30 bitop3:0x7e")
                A("v_mfma_f32_16x16x32_bf16 v[100:103], v[16:19], v[20:23], 0")
                A("v_bitop3_b32 v61, v24, v26, s30 bitop3:0x7e")
                A("v_mfma_f32_16x16x32_bf16 v[100:103], v[16:19], v[24:27], v[100:103]")
                A("v_bitop3_b32 v60, v60, v61, 0 bitop3:0xa8")
                A("v_cmp_ne_u32 vcc, 0, v60")
                if taken:
                    A(f"s_cbranch_vccz {L}")
                    for q in range(24): A("v_add3_u32 v70, v71, v72, v73")
                else: A(f"s_cbranch_vccnz {L}")
                A.label(L)
                if nop >= 0: A(f"s_nop {nop}")
            if parts in ('all', 'back'):
                for n in (4, 8):
                    A(f"v_add_f32_dpp v100, v100, v100 row_ror:{n} row_mask:0xf bank_mask:0xf"); A(f"v_add_f32_dpp v101, v101, v101 row_ror:{n} row_mask:0xf bank_mask:0xf")
                    if n == 4: A("s_nop 0")
                A("v_cvt_pk_bf16_f32 v102, v100, v101")
                if store: A("global_store_dword v3, v102, s[4:5] offset:1024")
        A("s_nop 15"); A("s_nop 15"); A("s_nop 15"); A("s_nop 15"); A("s_nop 15"); A("s_nop 15")
    f.__name__ = name
    return f
tests = [(f.__name__, f) for f in [tail("none", 0, 0, parts='none'), tail("taken_n1", 1, 1), tail("taken_n4", 1, 4), tail("untaken_n4", 0, 4), tail("untaken_n2", 0, 2), tail("untaken_nonop", 0, -1), tail("front_taken", 1, -1, parts='front'), tail("front_untaken", 0, -1, parts='front'), tail("back", 0, 0, parts='back'), tail("back_nostore", 0, 0, store=False, parts='back')]]
if __name__ == '__main__':
    if sys.argv[1] == 'gen':
        open('ub.s', 'w').write(mk(tests))
    else:
        from harness import *
        R_ = Runner('ub.s'); R_.run()
        p = R_.get(0, np.uint32, (4, 64))
        for k, (n, _) in enumerate(tests): print(n, ((p[:, k].mean() - p[:, 0].mean()) / 16.0 / 8).round(1))
```
